```python
import torch

def _softmax(x, axis=-1):
    return torch.softmax(x, dim=axis)
def _gelu(x):
    return torch.nn.functional.gelu(x, approximate="tanh")
def _silu(x):
    return torch.nn.functional.silu(x)
def _sigmoid(x):
    return torch.sigmoid(x)
def _layernorm(x, axis=-1, eps=1e-5):
    m = x.mean(dim=axis, keepdim=True)
    v = x.var(dim=axis, keepdim=True, unbiased=False)
    return (x - m) / torch.sqrt(v + eps)
def _scatter_add(tgt, idx, src, axis=0):
    return tgt.clone().index_add_(axis, idx, src)
def _segment_sum(src, seg, n):
    out = torch.zeros((n,) + src.shape[1:], dtype=src.dtype)
    return out.index_add_(0, seg, src)
def _pad(x, pw):
    flat = tuple(v for pair in reversed(pw) for v in pair)
    return torch.nn.functional.pad(x, flat)

kernel_name = 'standalone__gqa_block_cached__near_ridge'

def setup_inputs():

    _w = (lambda a: (lambda t: t.to(torch.bfloat16) if t.is_floating_point() else t)(torch.as_tensor(a)))
    B, Sq, D = 8, 160, 576
    Hq, Hkv, Sk, Dh = 32, 16, 2048, 128
    assert Hq % Hkv == 0, (Hq, Hkv)
    return {
        "x": _w((lambda *s: torch.randn(*s, dtype=torch.bfloat16) * 0.8)(B, Sq, D)),
        "k_cache": _w((lambda *s: torch.randn(*s, dtype=torch.bfloat16) * 0.8)(B, Hkv, Sk, Dh)),
        "v_cache": _w((lambda *s: torch.randn(*s, dtype=torch.bfloat16) * 0.05)(B, Hkv, Sk, Dh)),
        "wq": _w((lambda *s: torch.randn(*s, dtype=torch.bfloat16) * 0.8)(D, Hq * Dh) * (D ** -0.5)),
        "wo": _w((lambda *s: torch.randn(*s, dtype=torch.bfloat16) * 0.05)(Hq * Dh, D) * ((Hq * Dh) ** -0.5)),
    }

def reference(x, k_cache, v_cache, wq, wo):
    B, Sq, D = x.shape
    Hq, Dh = 32, 128
    Hkv = k_cache.shape[1]
    rep = Hq // Hkv
    q = (lambda x, *d: x.permute(*d))((x @ wq).reshape(B, Sq, Hq, Dh), 0, 2, 1, 3)
    k = (lambda x, n, axis: torch.repeat_interleave(x, n, dim=axis))(k_cache, rep, axis=1)
    v = (lambda x, n, axis: torch.repeat_interleave(x, n, dim=axis))(v_cache, rep, axis=1)
    scores = torch.einsum("bhqd,bhkd->bhqk", q, k) * (Dh ** -0.5)
    p = _softmax(scores, axis=-1)
    o = torch.einsum("bhqk,bhkd->bhqd", p, v)
    return (lambda x, *d: x.permute(*d))(o, 0, 2, 1, 3).reshape(B, Sq, Hq * Dh) @ wo
```

```python
import re

REG = re.compile(r'^(v|a|s)(\d+)$')
RNG = re.compile(r'^(v|a|s)\[(\d+):(\d+)\]$')

def regs_of(tok):
    tok = tok.strip()
    neg = tok.lstrip('-')
    if neg.startswith('abs(') or neg.startswith('|'):
        neg = neg.strip('|').replace('abs(', '').rstrip(')')
    m = REG.match(neg)
    if m: return [(m.group(1), int(m.group(2)))]
    m = RNG.match(neg)
    if m: return [(m.group(1), i) for i in range(int(m.group(2)), int(m.group(3)) + 1)]
    if neg == 'vcc': return [('s', 'vcc')]
    if neg == 'm0': return [('s', 'm0')]
    if neg == 'exec': return [('s', 'exec')]
    return []

TRANS = ('v_exp_f32', 'v_log_f32', 'v_rcp_f32', 'v_rsq_f32', 'v_sqrt_f32')

class Ins:
    __slots__ = ('text', 'op', 'dst', 'src', 'cls', 'ops', 'cregs', 'lds_dma', 'tag')
    def __init__(self, text, tag=None):
        self.text = text
        self.tag = tag
        t = text.split(';')[0].strip()
        parts = t.split(None, 1)
        self.op = parts[0]
        rest = parts[1] if len(parts) > 1 else ''
        ops = [o.strip() for o in rest.split(',')] if rest else []
        mods = ''
        if ops:
            sp = ops[-1].split()
            ops[-1] = sp[0] if sp else ''
            mods = ' '.join(sp[1:])
        self.ops = ops
        op = self.op
        self.dst = []; self.src = []; self.cregs = []; self.lds_dma = False
        R = lambda i: regs_of(ops[i]) if i < len(ops) else []
        if op.startswith('v_mfma'):
            self.cls = 'mfma'; self.dst = R(0); self.src = R(1) + R(2) + R(3); self.cregs = R(3)
        elif op.startswith('ds_read'):
            self.cls = 'dsr'; self.dst = R(0); self.src = R(1)
        elif op.startswith('ds_write'):
            self.cls = 'dsw'; self.src = sum((R(i) for i in range(len(ops))), [])
        elif op.startswith('ds_'):
            self.cls = 'dsr'; self.dst = R(0); self.src = sum((R(i) for i in range(1, len(ops))), [])
        elif op.startswith('buffer_load'):
            self.cls = 'vmem'
            if ' lds' in ' ' + mods:
                self.lds_dma = True
                self.src = sum((R(i) for i in range(len(ops))), []) + [('s', 'm0')]
            else:
                self.dst = R(0); self.src = sum((R(i) for i in range(1, len(ops))), [])
        elif op.startswith('buffer_store'):
            self.cls = 'vst'; self.src = sum((R(i) for i in range(len(ops))), [])
        elif op.startswith('buffer_atomic'):
            self.cls = 'vst'; self.src = sum((R(i) for i in range(len(ops))), [])
            if 'sc0' in mods: self.dst = R(0); self.cls = 'vmem'
        elif op.startswith('v_cmp'):
            self.cls = 'valu'; self.dst = R(0); self.src = sum((R(i) for i in range(1, len(ops))), [])
        elif op in ('v_readfirstlane_b32', 'v_readlane_b32'):
            self.cls = 'valu'; self.dst = R(0); self.src = sum((R(i) for i in range(1, len(ops))), [])
        elif op.startswith('v_'):
            self.cls = 'valu'; self.dst = R(0); self.src = sum((R(i) for i in range(1, len(ops))), [])
            if op in ('v_fmac_f32',): self.src += R(0)
            if op.startswith('v_cndmask') and len(ops) == 3: self.src += [('s', 'vcc')]
            if op in ('v_add_co_u32', 'v_addc_co_u32', 'v_sub_co_u32'):
                self.dst = R(0) + R(1); self.src = sum((R(i) for i in range(2, len(ops))), [])
            if op.startswith('v_permlane'):
                self.dst = R(0) + R(1); self.src = R(0) + R(1)
        elif op == 's_waitcnt':
            self.cls = 'wait'
        elif op == 's_nop':
            self.cls = 'nop'
        elif op in ('s_barrier', 's_endpgm', 's_branch') or op.startswith('s_cbranch') or op in ('s_setprio', 's_sleep'):
            self.cls = 'ctl'
        elif op.startswith('s_load') or op in ('s_memtime', 's_memrealtime'):
            self.cls = 'smem'; self.dst = R(0); self.src = sum((R(i) for i in range(1, len(ops))), [])
        elif op.startswith('s_cmp'):
            self.cls = 'salu'; self.src = sum((R(i) for i in range(len(ops))), [])
        elif op.startswith('s_'):
            self.cls = 'salu'; self.dst = R(0); self.src = sum((R(i) for i in range(1, len(ops))), [])
        else:
            raise ValueError('unknown op: ' + text)

    def states(self):
        if self.cls == 'nop':
            return int(self.ops[0], 0) + 1
        return 1

class Label:
    def __init__(self, name): self.name = name; self.text = name + ':'
class Raw:
    def __init__(self, text): self.text = text

class Asm:
    def __init__(self):
        self.items = []
    def __call__(self, text, tag=None):
        for line in text.strip('\n').split('\n'):
            s = line.strip()
            if not s: continue
            if s.startswith(';'):
                self.items.append(Raw('    ' + s))
            elif s.endswith(':') and ' ' not in s:
                self.items.append(Label(s[:-1]))
            else:
                self.items.append(Ins(s, tag))
    def label(self, n): self.items.append(Label(n))
    def raw(self, t): self.items.append(Raw(t))
    def mark(self): return len(self.items)
    def text(self):
        out = []
        for it in self.items:
            if isinstance(it, Ins): out.append('    ' + it.text)
            else: out.append(it.text)
        return '\n'.join(out) + '\n'

def parse_wait(ins):
    t = ins.text
    vm = re.search(r'vmcnt\((\d+)\)', t); lg = re.search(r'lgkmcnt\((\d+)\)', t)
    return (int(vm.group(1)) if vm else None, int(lg.group(1)) if lg else None)

def check_trace(trace, name='', verbose=True):
    probs = []
    pos = 0
    lastw = {}
    lastC = {}
    lgq = []
    vmq = []
    pend = {}
    stq = []
    def P(msg, ins):
        probs.append(f'{name}: {msg}: [{ins.text}]')
    for idx, ins in enumerate(trace):
        def dist(p): return pos - p - 1
        if ins.cls == 'wait':
            vm, lg = parse_wait(ins)
            if vm is not None:
                while len(vmq) > vm:
                    d = vmq.pop(0)
                    for r in d[0]:
                        if pend.get(r) is d[1]: del pend[r]
            if lg is not None:
                while len(lgq) > lg:
                    d = lgq.pop(0)
                    for r in d[0]:
                        if pend.get(r) is d[1]: del pend[r]
        for r in ins.src + ins.dst:
            if r in pend:
                P(f'reg {r} has pending load [{pend[r].text}]', ins)
        for r in ins.src:
            if r not in lastw: continue
            p, cls, w = lastw[r]
            d = dist(p)
            if cls == 'mfma':
                if ins.cls == 'mfma':
                    if r in ins.cregs and r not in [x for x in ins.src[:len(ins.src) - len(ins.cregs)]]:
                        if w.dst == ins.cregs: need = 0
                        else: need = 6
                    else: need = 8
                else: need = 8
                if d < need: P(f'mfma->{ins.cls} read {r} dist {d} < {need} (prod [{w.text}])', ins)
            elif cls == 'valu':
                if r[0] in 'va':
                    if ins.cls == 'mfma' and d < 2: P(f'valu->mfma {r} dist {d} < 2', ins)
                    if w.op in TRANS and ins.cls == 'valu' and ins.op not in TRANS and d < 1: P(f'trans->valu {r} dist {d} < 1', ins)
                    if w.op in TRANS and ins.cls in ('dsw', 'vst', 'vmem', 'dsr') and d < 1: P(f'trans->mem {r} dist {d}', ins)
                    if ins.op in ('v_readfirstlane_b32', 'v_readlane_b32') and d < 1: P(f'valu->readlane {r} dist {d}', ins)
                    if ins.op.startswith('v_permlane') and d < 2: P(f'valu->permlane {r} dist {d}', ins)
                    if 'dpp' in ins.text and d < 2: P(f'valu->dpp {r} dist {d}', ins)
                else:
                    if ins.cls in ('vmem', 'vst') and d < 5: P(f'valu sgpr->vmem {r} dist {d} < 5', ins)
                    if ins.cls == 'valu' and d < 2: P(f'valu sgpr->valu {r} dist {d} < 2', ins)
            elif cls == 'salu':
                if r == ('s', 'm0') and ins.lds_dma and d < 1: P(f'm0->dma dist {d}', ins)
        for r in ins.dst:
            if r in lastw:
                p, cls, w = lastw[r]
                d = dist(p)
                if cls == 'mfma' and ins.cls != 'mfma' and d < 8: P(f'mfma->{ins.cls} WAW {r} dist {d} < 8 (prod [{w.text}])', ins)
                if cls == 'mfma' and ins.cls == 'mfma' and w.dst != ins.dst and d < 8: P(f'mfma->mfma partial WAW {r}', ins)
                if cls == 'mfma' and ins.cls == 'mfma' and w.dst == ins.dst and ins.cregs != ins.dst and d < 8:
                    P(f'mfma->mfma WAW without chain {r} dist {d}', ins)
            if ins.cls == 'valu' and r in lastC and dist(lastC[r]) < 3:
                P(f'mfma SrcC WAR {r} dist {dist(lastC[r])} < 3', ins)
            if ins.cls == 'valu':
                for (sp, sins) in stq[-3:]:
                    if r in sins.src and r[0] in 'va' and dist(sp) < 2: P(f'store data WAR {r}', ins)
        if ins.cls == 'mfma':
            for r in ins.cregs: lastC[r] = pos
        if ins.cls in ('vst',) or (ins.cls == 'dsw'):
            stq.append((pos, ins))
        if ins.cls in ('dsr',):
            lgq.append((ins.dst, ins))
            for r in ins.dst: pend[r] = ins
        elif ins.cls == 'dsw':
            lgq.append(([], ins))
        elif ins.cls == 'smem':
            lgq.append((ins.dst, ins))
            for r in ins.dst: pend[r] = ins
        elif ins.cls in ('vmem', 'vst'):
            vmq.append((ins.dst, ins))
            for r in ins.dst: pend[r] = ins
        if len(lgq) > 15 and ins.cls in ('dsr', 'dsw'):
            pass
        if ins.cls in ('mfma', 'valu', 'salu'):
            for r in ins.dst: lastw[r] = (pos, ins.cls, ins)
        elif ins.cls in ('dsr', 'vmem', 'smem'):
            for r in ins.dst: lastw.pop(r, None)
        pos += ins.states()
    if verbose:
        for p in probs[:60]: print('HAZARD', p)
        print(f'[check {name}] {len(trace)} instrs, {len(probs)} problems')
    return probs
```

```python
from asmlib import Asm, Ins, Label, Raw

sX, sK, sV, sW, sO = 8, 12, 16, 20, 24
sWAVE, sR, sKH, sHQ, sB = 3, 4, 5, 6, 7
sT = 30
sM0K = 31
sL = 32
sFB = 33
sXG = [40, 41, 42]
sWG = [43, 44, 45]
sXo, sWo = 46, 47
sT0 = 48
sM0X, sM0W = 49, 50
sTMP = 34
vLANE = 2
def Q(j, s): return 16 + (j * 4 + s) * 4
def OKEEP(j, n): return 96 + (j * 4 + n) * 4
def S(buf, kb): return 176 + (buf * 2 + kb) * 4
def P(buf): return 192 + buf * 4
def CI(j): return 200 + 4 * j
vONES = 220
vKA = [224, 225, 226, 227]
vVA = [228 + i for i in range(8)]
vKD = [236, 237, 238, 239]
vVD = [240, 241]
vXD = [3, 4, 5, 6, 7]
vWD = [8, 9, 10, 11]
vXR = [12, 13]
vWR = [14, 15]
vE, vEP = 242, 243
vT = list(range(244, 256))
def OSEND(j, n): return (j * 4 + (n - 4)) * 4
def LS(j): return 80 + 4 * j
def KF(buf, kb, ds): return 100 + (buf * 8 + kb * 4 + ds) * 4
def VF(buf, n): return 164 + (buf * 8 + n) * 4
def QA(buf, a): return 100 + buf * 16 + a * 4
def QB(buf, j): return 132 + buf * 20 + j * 4
def QACC(j, a): return 96 + (j * 4 + a) * 4

def vr(b, n=4): return f'v[{b}:{b+n-1}]'
def ar(b, n=4): return f'a[{b}:{b+n-1}]'
def sr(b, n=4): return f's[{b}:{b+n-1}]'
def OREG(j, n): return vr(OKEEP(j, n)) if n < 4 else ar(OSEND(j, n))

MF = 'v_mfma_f32_16x16x32_bf16'
XBUF0, XBUFS = 81920, 20480
WBUF0, WBUFS = 16384, 16384
EXQ = 122880
EXF = 131072
OOB = 0x7f000000
QSCALE = 0x3e0293ee

NSTAMP = [0]
def stamp(a, prof, real=False):
    if not prof: return
    k = NSTAMP[0]; NSTAMP[0] += 1
    assert k < 16
    a(f's_mem{"real" if real else ""}time s[{60+2*k}:{61+2*k}]')
    a('s_waitcnt lgkmcnt(0)')

def interleave(a, mf, fills):
    for i, m in enumerate(mf):
        a(m)
        for f in fills.get(i, []):
            a(f)

def init(a, prof):
    a(f"""
    s_cmp_ge_u32 s2, 256
    s_cbranch_scc1 L_k1_end
    s_load_dwordx2 {sr(sX,2)}, s[0:1], 0
    s_load_dwordx2 {sr(sW,2)}, s[0:1], 24
    s_load_dwordx2 {sr(sK,2)}, s[0:1], 8
    s_load_dwordx2 {sr(sV,2)}, s[0:1], 16
    s_load_dwordx2 {sr(sO,2)}, s[0:1], 56
    """)
    if prof:
        a('s_memrealtime s[96:97]')
    stamp(a, prof)
    a(f"""
    v_lshrrev_b32 v1, 6, v0
    v_and_b32 v{vLANE}, 63, v0
    s_mov_b32 s{sX+2}, 1474560
    s_mov_b32 s{sX+3}, 0x00020000
    v_readfirstlane_b32 s{sWAVE}, v1
    s_mov_b32 s{sW+2}, 4718592
    s_mov_b32 s{sW+3}, 0x00020000
    s_mov_b32 s{sK+2}, 0x4000000
    s_mov_b32 s{sK+3}, 0x00020000
    s_mov_b32 s{sV+2}, 0x4000000
    s_mov_b32 s{sV+3}, 0x00020000
    s_mov_b32 s{sO+2}, 10485760
    s_mov_b32 s{sO+3}, 0x00020000
    s_and_b32 s34, s2, 7
    s_lshr_b32 s35, s2, 3
    s_and_b32 s36, s35, 3
    s_lshl_b32 s{sHQ}, s34, 2
    s_add_u32 s{sHQ}, s{sHQ}, s36
    s_lshr_b32 s{sB}, s35, 2
    s_and_b32 s{sR}, s{sWAVE}, 1
    s_lshr_b32 s{sKH}, s{sWAVE}, 1
    s_add_u32 s37, s{sB}, s36
    s_mul_i32 s38, s37, 43
    s_lshr_b32 s38, s38, 7
    s_mul_i32 s38, s38, 3
    s_sub_u32 s37, s37, s38
    s_mul_i32 s38, s{sB}, 184320
    s_lshl_b32 s39, s{sHQ}, 8
    """)
    for G in range(3):
        a(f"""
    s_mul_i32 s34, s37, 384
    s_add_u32 s{sXG[G]}, s38, s34
    s_mul_i32 s34, s37, 0x180000
    s_add_u32 s{sWG[G]}, s39, s34
    s_add_u32 s37, s37, 1
    s_cmp_eq_u32 s37, 3
    s_cselect_b32 s37, 0, s37
    """)
    l = f'v{vLANE}'
    t0, t1, t2, t3, t4, t5 = [f'v{x}' for x in vT[:6]]
    a(f"""
    s_lshl_b32 s34, s{sWAVE}, 3
    v_lshrrev_b32 {t0}, 3, {l}
    v_add_u32 {t0}, s34, {t0}
    v_mul_u32_u24 {t0}, 1152, {t0}
    v_and_b32 {t1}, 7, {l}
    v_lshrrev_b32 {t2}, 4, {l}
    v_xor_b32 {t1}, {t1}, {t2}
    s_lshl_b32 s35, s{sR}, 2
    v_xor_b32 {t1}, s35, {t1}
    v_lshl_add_u32 v{vXD[0]}, {t1}, 4, {t0}
    """)
    for i in range(1, 5):
        a(f'v_add_u32 v{vXD[i]}, {36864*i}, v{vXD[0]}')
    a(f"""
    s_lshl_b32 s34, s{sWAVE}, 2
    v_add_u32 {t0}, s34, {t2}
    v_lshlrev_b32 {t0}, 13, {t0}
    v_and_b32 {t3}, 15, {l}
    v_lshlrev_b32 {t1}, 2, {t2}
    v_xor_b32 {t1}, {t1}, {t3}
    v_lshl_add_u32 v{vWD[0]}, {t1}, 4, {t0}
    """)
    for i in range(1, 4):
        a(f'v_add_u32 v{vWD[i]}, {131072*i}, v{vWD[0]}')
    a(f"""
    s_lshl_b32 s34, s{sWAVE}, 10
    s_add_u32 s{sM0X}, s34, {XBUF0}
    s_add_u32 s{sM0W}, s34, {WBUF0}
    s_lshr_b32 s34, s{sHQ}, 1
    s_lshl_b32 s35, s{sB}, 4
    s_add_u32 s34, s34, s35
    s_lshl_b32 s34, s34, 19
    s_lshl_b32 s35, s{sKH}, 18
    s_add_u32 s34, s34, s35
    s_lshl_b32 s35, s{sR}, 12
    s_add_u32 s{sT0}, s34, s35
    s_lshl_b32 s34, s{sKH}, 16
    s_add_u32 s{sM0K}, s34, s35
    s_mov_b32 s{sFB}, 0
    """)
    a(f"""
    v_lshlrev_b32 {t0}, 8, {t2}
    v_xor_b32 {t1}, {t3}, {t2}
    """)
    for j in range(4):
        a(f'v_xor_b32 {t4}, {4*j}, {t1}')
        a(f'v_lshl_add_u32 v{vKD[j]}, {t4}, 4, {t0}')
    a(f"""
    v_lshlrev_b32 {t4}, 1, {t2}
    v_xor_b32 {t1}, {t3}, {t4}
    """)
    for p in range(2):
        a(f'v_xor_b32 {t4}, {8*p}, {t1}')
        a(f'v_lshl_add_u32 v{vVD[p]}, {t4}, 4, {t0}')
    a('s_waitcnt lgkmcnt(0)')

def dma_x(G, within, i, buf):
    return [f's_add_u32 m0, s{sM0X}, {buf*XBUFS + 4096*i}',
            f'buffer_load_dwordx4 v{vXD[i]}, {sr(sX)}, s{sXo} offen lds']
def dma_w(G, within, i, buf):
    return [f's_add_u32 m0, s{sM0W}, {buf*WBUFS + 4096*i}',
            f'buffer_load_dwordx4 v{vWD[i]}, {sr(sW)}, s{sWo} offen lds']
def chunk_dmas(i9):
    G, w = i9 // 3, i9 % 3
    buf = i9 % 3
    pre = [f's_add_u32 s{sXo}, s{sXG[G]}, {128*w}', f's_add_u32 s{sWo}, s{sWG[G]}, {0x80000*w}']
    grp = []
    for i in range(4):
        grp.append(dma_w(G, w, i, buf))
        grp.append(dma_x(G, w, i, buf))
    grp.append(dma_x(G, w, 4, buf))
    return pre, grp

def tile_dmas(slot):
    g = []
    for j in range(4):
        pre = [f's_add_u32 m0, s{sM0K}, {slot*16384}'] if j == 0 else []
        g.append(pre + [f'buffer_load_dwordx4 v{vKD[j]}, {sr(sK)}, s{sT} offen offset:{1024*j} nt lds'])
    for j in range(4):
        pre = [f's_add_u32 m0, s{sM0K}, {slot*16384 + 8192}'] if j == 0 else []
        g.append(pre + [f'buffer_load_dwordx4 v{vVD[j&1]}, {sr(sV)}, s{sT} offen offset:{1024*j} nt lds'])
    return g

def emit_groups(a, groups):
    for g in groups:
        for k, ins in enumerate(g):
            a(ins)
            if 'm0' in ins.split(',')[0]:
                a('s_nop 0')

def init2(a):
    l = f'v{vLANE}'
    t0, t1, t2, t3, t4, t5, t6 = [f'v{x}' for x in vT[:7]]
    a(f"""
    v_lshrrev_b32 {t2}, 4, {l}
    v_and_b32 {t3}, 15, {l}
    v_lshrrev_b32 {t5}, 2, {l}
    v_and_b32 {t5}, 3, {t5}
    v_and_b32 {t6}, 3, {l}
    s_mul_i32 s34, s{sR}, 10240
    s_add_u32 s34, s34, {XBUF0}
    v_lshlrev_b32 {t0}, 7, {t3}
    v_add_u32 {t0}, s34, {t0}
    v_lshrrev_b32 {t1}, 1, {t3}
    v_xor_b32 {t4}, {t2}, {t1}
    v_lshl_add_u32 v{vXR[0]}, {t4}, 4, {t0}
    v_xor_b32 {t4}, 4, {t4}
    v_lshl_add_u32 v{vXR[1]}, {t4}, 4, {t0}
    v_lshl_add_u32 {t0}, {t2}, 3, {t5}
    v_lshlrev_b32 {t0}, 8, {t0}
    v_add_u32 {t0}, {WBUF0}, {t0}
    s_lshl_b32 s34, s{sKH}, 1
    """)
    for sp in range(2):
        a(f"""
    s_add_u32 s35, s34, {sp}
    v_xor_b32 {t1}, s35, {t5}
    v_lshl_add_u32 {t1}, {t1}, 2, {t6}
    v_lshl_add_u32 v{vWR[sp]}, {t1}, 4, {t0}
    """)
    a(f"""
    s_lshl_b32 s35, s{sKH}, 16
    v_lshlrev_b32 {t0}, 8, {t3}
    v_add_u32 {t0}, s35, {t0}
    """)
    for sp in range(4):
        a(f"""
    s_xor_b32 s36, s34, {sp}
    s_lshl_b32 s36, s36, 2
    v_add_u32 {t1}, s36, {t2}
    v_xor_b32 {t1}, {t1}, {t3}
    v_lshl_add_u32 v{vKA[sp]}, {t1}, 4, {t0}
    """)
    a(f"""
    v_lshl_add_u32 {t0}, {t2}, 2, {t5}
    v_lshlrev_b32 {t0}, 8, {t0}
    s_add_u32 s35, s35, 8192
    v_add_u32 {t0}, s35, {t0}
    v_and_b32 {t1}, 1, {t6}
    v_lshl_add_u32 {t0}, {t1}, 3, {t0}
    v_lshrrev_b32 {t1}, 1, {t6}
    v_lshl_add_u32 {t0}, {t1}, 4, {t0}
    v_and_b32 {t1}, 1, {t2}
    v_lshl_add_u32 {t1}, {t1}, 2, {t5}
    s_lshl_b32 s36, s{sKH}, 2
    """)
    for n in range(8):
        a(f"""
    s_xor_b32 s37, s36, {n}
    v_xor_b32 {t4}, s37, {t1}
    v_lshl_add_u32 v{vVA[n]}, {t4}, 5, {t0}
    """)
    a(f"""
    s_mul_i32 s34, s{sWAVE}, 10240
    s_add_u32 s34, s34, {EXQ}
    v_lshlrev_b32 {t0}, 4, {l}
    v_add_u32 v{vE}, s34, {t0}
    s_xor_b32 s35, s{sWAVE}, 2
    s_mul_i32 s35, s35, 10240
    s_add_u32 s35, s35, {EXQ}
    v_add_u32 v{vEP}, s35, {t0}
    """)
    zero_acc(a, keep=False)
    for i in range(4):
        a(f'v_mov_b32 v{vONES+i}, 0x3f803f80')
    for j in range(5):
        for i in range(4):
            a(f'v_mov_b32 v{CI(j)+i}, 0')

def zero_acc(a, keep=True):
    for i in range(100):
        a(f'v_accvgpr_write_b32 a{i}, 0')
    for i in range(32):
        a(f'v_accvgpr_write_b32 a{VF(1,0)+i}, 0')
    for i in range(4):
        a(f'v_mov_b32 v{P(1)+i}, 0')
    if keep:
        for i in range(80):
            a(f'v_mov_b32 v{96+i}, 0')

def qfrag_reads(u):
    i9, ks = u // 2, u % 2
    buf, fb = i9 % 3, u % 2
    r = []
    for j in range(5):
        r.append(f'ds_read_b128 {ar(QB(fb, j))}, v{vXR[ks]} offset:{XBUFS*buf + 2048*j}')
    for sp in range(2):
        for t in range(2):
            for h in range(2):
                r.append(f'ds_read_b64_tr_b16 {ar(QA(fb, 2*sp+t)+2*h, 2)}, v{vWR[sp]} offset:{WBUFS*buf + 8192*ks + 1024*h + 8*t}')
    A = r[5:]; B = r[:5]
    return [A[0], A[1], B[0], B[1], B[2], B[3], B[4]] + A[2:]

def qproj(a, prof):
    for i9 in range(3):
        pre, grp = chunk_dmas(i9)
        for p in pre: a(p)
        emit_groups(a, grp)
    a(f's_mov_b32 s{sT}, s{sT0}')
    emit_groups(a, tile_dmas(0))
    a(f's_add_u32 s{sT}, s{sT}, 8192')
    stamp(a, prof)
    init2(a)
    stamp(a, prof)
    a('s_waitcnt vmcnt(26)')
    stamp(a, prof)
    a('s_barrier')
    stamp(a, prof)
    for r in qfrag_reads(0): a(r)
    vm_at = {1: 17, 3: 17, 5: 9, 7: 9, 9: 9, 11: 9, 13: 9, 15: 8}
    pend = []
    for u in range(18):
        fb = u % 2
        if u % 2 == 1:
            if u in vm_at: a(f's_waitcnt vmcnt({vm_at[u]}) lgkmcnt(0)')
            else: a('s_waitcnt lgkmcnt(0)')
            a('s_barrier')
            if u in (1, 5, 9, 13, 17): stamp(a, prof)
            c = u // 2
            assert not pend
            if c + 3 <= 8:
                pre, grp = chunk_dmas(c + 3)
                pend = [pre + grp[0]] + grp[1:]
            elif c + 3 == 9:
                pend = tile_dmas(1) + [[f's_add_u32 s{sT}, s{sT}, 8192']]
            elif c + 3 == 10:
                pend = tile_dmas(2) + [[f's_add_u32 s{sT}, s{sT}, 8192']]
        else:
            a('s_waitcnt lgkmcnt(0)')
        mf = []
        for t in range(4):
            for j in range(5):
                c_ = '0' if u == 0 else vr(QACC(j, t))
                mf.append(f'{MF} {vr(QACC(j,t))}, {ar(QA(fb,t))}, {ar(QB(fb,j))}, {c_}')
        fills = {}
        reads = qfrag_reads(u + 1) if u < 17 else []
        g = 0
        while reads:
            fills.setdefault(g, []).extend(reads[:2]); reads = reads[2:]; g += 1
        g = 7
        nmax = 6 if u % 2 == 1 else 99
        cnt = 0
        while pend and g < 19 and cnt < nmax:
            grp = pend.pop(0)
            fills.setdefault(g, []).extend(grp[:-1])
            if grp[-1].startswith('buffer'):
                fills.setdefault(g + 1, []).append(grp[-1])
                g += 2
            else:
                fills[g].append(grp[-1]); g += 1
            cnt += 1
        if u % 2 == 0: assert not pend, (u, pend)
        interleave(a, mf, fills)
    assert not pend

def qfin(a, prof):
    stamp(a, prof)
    a(f's_mov_b32 s34, {hex(QSCALE)}')
    a('s_nop 7')
    for j in range(5):
        for t in range(4):
            for i in range(4):
                a(f'v_mul_f32 v{QACC(j,t)+i}, s34, v{QACC(j,t)+i}')
        for sp in range(2):
            for t in range(2):
                b = QACC(j, 2*sp + t)
                a(f'v_cvt_pk_bf16_f32 v{Q(j,sp)+2*t}, v{b}, v{b+1}')
                a(f'v_cvt_pk_bf16_f32 v{Q(j,sp)+2*t+1}, v{b+2}, v{b+3}')
        for sp in range(2):
            a(f'ds_write_b128 v{vE}, {vr(Q(j,sp))} offset:{(j*2+sp)*1024}')
    for i in range(80):
        a(f'v_mov_b32 v{96+i}, 0')
    a('s_waitcnt lgkmcnt(0)')
    a('s_barrier')
    for j in range(5):
        for sp in range(2):
            a(f'ds_read_b128 {vr(Q(j,2+sp))}, v{vEP} offset:{(j*2+sp)*1024}')

def k_reads(buf, slot):
    return [f'ds_read_b128 {ar(KF(buf,kb,ds))}, v{vKA[ds]} offset:{slot*16384 + kb*4096}' for kb in range(2) for ds in range(4)]
def v_reads(buf, slot):
    return [f'ds_read_b64_tr_b16 {ar(VF(buf,n)+2*h, 2)}, v{vVA[n]} offset:{slot*16384 + h*4096}' for n in range(8) for h in range(2)]
def qk_mf(j, kbuf, sbuf, cinit=True):
    m = []
    for kb in range(2):
        for ds in range(4):
            c = (vr(CI(j)) if cinit else '0') if ds == 0 else vr(S(sbuf, kb))
            m.append(f'{MF} {vr(S(sbuf,kb))}, {ar(KF(kbuf,kb,ds))}, {vr(Q(j,ds))}, {c}')
    return m
def pv_mf(j, vbuf, pbuf):
    m = [f'{MF} {ar(LS(j))}, {vr(vONES)}, {vr(P(pbuf))}, {ar(LS(j))}']
    for n in range(8):
        m.append(f'{MF} {OREG(j,n)}, {ar(VF(vbuf,n))}, {vr(P(pbuf))}, {OREG(j,n)}')
    return m

def pre_loop(a, prof):
    a.label('L_attn0')
    for r in k_reads(0, 0) + v_reads(0, 0): a(r)
    a('s_waitcnt vmcnt(8) lgkmcnt(0)')
    a('s_barrier')
    stamp(a, prof)
    mf = qk_mf(0, 0, 0)
    kr = k_reads(1, 1)
    td = tile_dmas(3)
    fills = {}
    for i in range(8):
        fills[i] = [kr[i]]
    interleave(a, mf, fills)
    emit_groups(a, td)
    a(f's_add_u32 s{sT}, s{sT}, 8192')
    a(f's_mov_b32 s{sL}, 0')

def step(a, t):
    td = tile_dmas(t % 4)
    vreads = v_reads((t + 1) & 1, (t + 1) % 4)
    kreads = k_reads(t & 1, (t + 2) % 4)
    for j in range(5):
        pn = (t + j) & 1
        if j < 4: qk = qk_mf(j + 1, t & 1, (pn + 1) & 1)
        else: qk = qk_mf(0, (t + 1) & 1, (pn + 1) & 1)
        if j == 0: pv = pv_mf(4, (t - 1) & 1, (pn + 1) & 1)
        else: pv = pv_mf(j - 1, t & 1, (pn + 1) & 1)
        mf = qk + pv
        fills = {g: [] for g in range(17)}
        for e in range(8):
            reg = S(pn, e // 4) + (e % 4)
            fills[2 * e].append(f'v_exp_f32 v{reg}, v{reg}')
        cv = []
        for c in range(4):
            b = S(pn, c // 2) + 2 * (c % 2)
            cv.append(f'v_cvt_pk_bf16_f32 v{P(pn)+c}, v{b}, v{b+1}')
        free2 = [1, 5, 9, 13, 16]
        free1 = [3, 7, 11, 15]
        rd = []
        if j in (1, 2): rd = [vreads.pop(0) for _ in range(6)]
        elif j == 3: rd = [vreads.pop(0) for _ in range(4)]
        elif j == 4: rd = list(kreads)
        order = [(1, 2), (3, 1), (5, 2), (7, 1), (9, 2)]
        for g, k in order:
            for _ in range(k):
                if rd: fills[g].append(rd.pop(0))
        assert not rd
        for c, g in enumerate(free1):
            fills[g].append(cv[c])
        if j < 4:
            d0 = td[2 * j]; d1 = td[2 * j + 1]
            if len(d0) == 2:
                fills[11].append(d0[0])
            gA, gB = (13, 16) if j < 3 else (9, 13)
            fills[gA].append(d0[-1]); fills[gB].append(d1[-1])
        if j == 3:
            fills[16] += ['s_waitcnt vmcnt(16) lgkmcnt(0)', 's_barrier']
        if j == 4:
            fills[13].append(f's_add_u32 s{sT}, s{sT}, 8192')
        interleave(a, mf, fills)

def loop(a):
    a.label('L_loop')
    for t in range(4): step(a, t)
    a(f"""
    s_add_u32 s{sL}, s{sL}, 1
    s_cmp_eq_u32 s{sL}, 7
    s_cselect_b32 s{sT}, {hex(OOB)}, s{sT}
    s_cmp_lt_u32 s{sL}, 8
    s_cbranch_scc1 L_loop
    """)

def final_pv(a):
    for m in pv_mf(4, 1, 1): a(m)

def epilogue(a, prof):
    t = [f'v{x}' for x in vT]
    l = f'v{vLANE}'
    stamp(a, prof)
    a('s_nop 7')
    for j in range(5):
        a(f'v_accvgpr_read_b32 {t[j]}, a{LS(j)}')
    a(f"""
    v_mov_b32 {t[5]}, 0x33800000
    v_mov_b32 {t[6]}, 0x4e800000
    s_mov_b64 s[36:37], 0
    """)
    for j in range(5):
        a(f'v_cmp_nge_f32 vcc, {t[j]}, {t[5]}')
        a(f's_or_b64 s[36:37], s[36:37], vcc')
        a(f'v_cmp_nle_f32 vcc, {t[j]}, {t[6]}')
        a(f's_or_b64 s[36:37], s[36:37], vcc')
    a(f"""
    s_cmp_lg_u64 s[36:37], 0
    s_cselect_b32 s38, 1, 0
    v_mov_b32 {t[5]}, s38
    s_lshl_b32 s34, s{sWAVE}, 2
    s_add_u32 s34, s34, {EXF}
    v_mov_b32 {t[6]}, s34
    ds_write_b32 {t[6]}, {t[5]}
    s_mul_i32 s34, s{sWAVE}, 1280
    s_add_u32 s34, s34, {EXF+256}
    v_lshlrev_b32 {t[7]}, 2, {l}
    v_add_u32 {t[6]}, s34, {t[7]}
    """)
    for j in range(5):
        a(f'ds_write_b32 {t[6]}, {t[j]} offset:{256*j}')
    a(f"""
    s_xor_b32 s35, s{sWAVE}, 2
    s_mul_i32 s34, s35, 1280
    s_add_u32 s34, s34, {EXF+256}
    v_add_u32 {t[7]}, s34, {t[7]}
    v_mov_b32 {t[8]}, {EXF}
    s_waitcnt vmcnt(0) lgkmcnt(0)
    s_barrier
    ds_read_b128 v[{S(0,0)}:{S(0,0)+3}], {t[8]}
    """)
    for j in range(5):
        a(f'ds_read_b32 v{S(1,0)+j}, {t[7]} offset:{256*j}')
    a(f"""
    s_mul_i32 s34, s{sWAVE}, 20480
    v_lshlrev_b32 {t[9]}, 4, {l}
    v_add_u32 {t[6]}, s34, {t[9]}
    s_mul_i32 s34, s35, 20480
    v_add_u32 {t[7]}, s34, {t[9]}
    """)
    for j in range(5):
        for n in range(4):
            a(f'ds_write_b128 {t[6]}, {ar(OSEND(j,4+n))} offset:{(j*4+n)*1024}')
        if j == 0:
            a('s_waitcnt lgkmcnt(4)')
            b = S(0, 0)
            a(f"""
    v_or_b32 v{b}, v{b}, v{b+1}
    v_or3_b32 v{b}, v{b}, v{b+2}, v{b+3}
    s_nop 0
    v_readfirstlane_b32 s38, v{b}
    s_xor_b32 s39, s{sFB}, 1
    s_and_b32 s38, s38, s39
    s_cmp_lg_u32 s38, 0
    s_cbranch_scc1 L_fallback
    """)
            for jj in range(5):
                a(f'v_add_f32 {t[jj]}, {t[jj]}, v{S(1,0)+jj}')
            for jj in range(5):
                a(f'v_rcp_f32 {t[jj]}, {t[jj]}')
    a('s_waitcnt lgkmcnt(0)')
    a('s_barrier')
    for j in range(5):
        for n in range(4):
            a(f'ds_read_b128 {vr(Q(j,n))}, {t[7]} offset:{(j*4+n)*1024}')
    a(f"""
    s_mul_i32 s34, s{sB}, 10
    s_mul_i32 s35, s{sR}, 5
    s_add_u32 s34, s34, s35
    s_lshl_b32 s34, s34, 7
    s_lshl_b32 s35, s{sHQ}, 2
    s_add_u32 s34, s34, s35
    s_lshl_b32 s35, s{sKH}, 1
    s_add_u32 s34, s34, s35
    s_lshl_b32 s34, s34, 10
    """)
    for j in range(5):
        a(f's_waitcnt lgkmcnt({min(12, 16-4*j)})')
        for n in range(4):
            for i in range(4):
                a(f'v_add_f32 v{OKEEP(j,n)+i}, v{OKEEP(j,n)+i}, v{Q(j,n)+i}')
        for n in range(4):
            for i in range(4):
                a(f'v_mul_f32 v{OKEEP(j,n)+i}, {t[j]}, v{OKEEP(j,n)+i}')
        for u in range(2):
            for hh in range(2):
                b = OKEEP(j, 2*u + hh)
                a(f'v_cvt_pk_bf16_f32 v{Q(j,u)+2*hh}, v{b}, v{b+1}')
                a(f'v_cvt_pk_bf16_f32 v{Q(j,u)+2*hh+1}, v{b+2}, v{b+3}')
        if j > 0: a(f's_add_u32 s34, s34, {128*1024}')
        for u in range(2):
            a(f'buffer_store_dwordx4 {vr(Q(j,u))}, {t[9]}, {sr(sO)}, s34 offen offset:{1024*u}')
    if prof:
        a('s_waitcnt vmcnt(0)')
        stamp(a, prof)
        a('s_memrealtime s[98:99]')
        a('s_waitcnt lgkmcnt(0)')
        a(f"""
    s_lshl_b32 s34, s2, 2
    s_add_u32 s34, s34, s{sWAVE}
    s_lshl_b32 s34, s34, 7
    s_add_u32 s34, s34, 0x1000000
    s_mov_b32 s{sO+2}, 0x2000000
    v_mov_b32 {t[0]}, s34
    """)
        for k in range(NSTAMP[0]):
            a(f's_sub_u32 s35, s{60+2*k}, s60')
            a(f'v_mov_b32 v{16+k}, s35')
            a(f'buffer_store_dword v{16+k}, {t[0]}, {sr(sO)}, 0 offen offset:{4*k}')
        a('v_mov_b32 v40, s96')
        a('v_mov_b32 v41, s98')
        a(f'buffer_store_dword v40, {t[0]}, {sr(sO)}, 0 offen offset:120')
        a(f'buffer_store_dword v41, {t[0]}, {sr(sO)}, 0 offen offset:124')
    a('s_branch L_k1_end')

def fallback(a):
    t = [f'v{x}' for x in vT]
    l = f'v{vLANE}'
    a.label('L_fallback')
    a('s_waitcnt vmcnt(0) lgkmcnt(0)')
    a('s_barrier')
    for j in range(5):
        a(f'v_mov_b32 {t[j]}, 0xff800000')
    a(f's_mov_b32 s{sT}, s{sT0}')
    a(f's_mov_b32 s{sL}, 0')
    a.label('L_fb_loop')
    a(f's_mov_b32 m0, s{sM0K}')
    a('s_nop 0')
    for j in range(4):
        a(f'buffer_load_dwordx4 v{vKD[j]}, {sr(sK)}, s{sT} offen offset:{1024*j} lds')
    a('s_waitcnt vmcnt(0)')
    a('s_barrier')
    for r in k_reads(0, 0): a(r)
    a('s_waitcnt lgkmcnt(0)')
    a('s_barrier')
    for j in range(5):
        for m in qk_mf(j, 0, 0, cinit=False): a(m)
        a('s_nop 7')
        b0, b1 = S(0, 0), S(0, 1)
        a(f'v_max3_f32 {t[j]}, {t[j]}, v{b0}, v{b0+1}')
        a(f'v_max3_f32 {t[j]}, {t[j]}, v{b0+2}, v{b0+3}')
        a(f'v_max3_f32 {t[j]}, {t[j]}, v{b1}, v{b1+1}')
        a(f'v_max3_f32 {t[j]}, {t[j]}, v{b1+2}, v{b1+3}')
    a(f"""
    s_add_u32 s{sT}, s{sT}, 8192
    s_add_u32 s{sL}, s{sL}, 1
    s_cmp_lt_u32 s{sL}, 32
    s_cbranch_scc1 L_fb_loop
    """)
    a(f"""
    s_mul_i32 s34, s{sWAVE}, 1280
    s_add_u32 s34, s34, {EXF}
    v_lshlrev_b32 {t[7]}, 2, {l}
    v_add_u32 {t[6]}, s34, {t[7]}
    """)
    for j in range(5):
        a(f'ds_write_b32 {t[6]}, {t[j]} offset:{256*j}')
    a(f"""
    s_waitcnt lgkmcnt(0)
    s_barrier
    v_and_b32 {t[7]}, 15, {l}
    v_lshlrev_b32 {t[7]}, 2, {t[7]}
    s_mul_i32 s34, s{sR}, 1280
    s_add_u32 s34, s34, {EXF}
    v_add_u32 {t[7]}, s34, {t[7]}
    """)
    for j in range(5):
        regs = [S(0,0)+i for i in range(8)]
        k = 0
        for kh in range(2):
            for g in range(4):
                a(f'ds_read_b32 v{regs[k]}, {t[7]} offset:{kh*2560 + j*256 + g*64}')
                k += 1
        a('s_waitcnt lgkmcnt(0)')
        a(f'v_max3_f32 {t[8]}, v{regs[0]}, v{regs[1]}, v{regs[2]}')
        a(f'v_max3_f32 {t[8]}, {t[8]}, v{regs[3]}, v{regs[4]}')
        a(f'v_max3_f32 {t[8]}, {t[8]}, v{regs[5]}, v{regs[6]}')
        a(f'v_max_f32 {t[8]}, {t[8]}, v{regs[7]}')
        for i in range(4):
            a(f'v_sub_f32 v{CI(j)+i}, 0, {t[8]}')
    zero_acc(a, keep=True)
    a(f's_mov_b32 s{sFB}, 1')
    a(f's_mov_b32 s{sT}, s{sT0}')
    a('s_barrier')
    for slot in range(3):
        emit_groups(a, tile_dmas(slot))
        a(f's_add_u32 s{sT}, s{sT}, 8192')
    a('s_waitcnt vmcnt(16)')
    a('s_barrier')
    a('s_branch L_attn0')

def gen_k1(prof=False):
    NSTAMP[0] = 0
    segs = {}
    def seg(name, f, *args):
        x = Asm(); f(x, *args); segs[name] = x; return x
    seg('init', init, prof)
    seg('qproj', qproj, prof)
    seg('qfin', qfin, prof)
    seg('pre', pre_loop, prof)
    seg('loop', loop)
    seg('fin', final_pv)
    seg('epi', epilogue, prof)
    seg('fb', fallback)
    order = ['init', 'qproj', 'qfin', 'pre', 'loop', 'fin', 'epi', 'fb']
    return segs, order
```

```python
from asmlib import Asm
MF = 'v_mfma_f32_16x16x32_bf16'
sWO, sO, sOUT = 8, 12, 16
sW, sMT, sNT = 3, 4, 5
sA, sB, sM0, sL = 20, 21, 22, 23
OOB = 0x7f000000
D = 8
NWG = 243
def vr(b, n=4): return f'v[{b}:{b+n-1}]'
def sr(b, n=4): return f's[{b}:{b+n-1}]'
def ACC(nb, mb): return 16 + (nb * 3 + mb) * 4
def OR(slot, mb): return 64 + (slot * 3 + mb) * 4
def AF(buf, nb): return 160 + (buf * 4 + nb) * 4
vWO = [3, 4, 5, 6]; vO = [7, 8, 9]; vRD = [10, 11, 12, 13]; vL = 2
T = [192, 193, 194, 195, 196]
SLOT = 4096

NST = [0]
def stamp(a, prof):
    if not prof: return
    k = NST[0]; NST[0] += 1
    a(f's_memtime s[{60+2*k}:{61+2*k}]')
    a('s_waitcnt lgkmcnt(0)')

def loads(slot):
    g = [f's_add_u32 m0, s{sM0}, {slot*SLOT}']
    r = [f'buffer_load_dwordx4 {vr(OR(slot,mb))}, v{vO[mb]}, {sr(sO)}, s{sA} offen' for mb in range(3)]
    d = [f'buffer_load_dwordx4 v{vWO[p]}, {sr(sWO)}, s{sB} offen offset:{1024*p} lds' for p in range(4)]
    post = [f's_add_u32 s{sA}, s{sA}, 1024', f's_add_u32 s{sB}, s{sB}, 36864']
    return g, r, d, post
def areads(buf, slot):
    return [f'ds_read_b64_tr_b16 {vr(AF(buf,nb)+2*h,2)}, v{vRD[nb]} offset:{slot*SLOT + h*2048}' for nb in range(4) for h in range(2)]

def kstep(a, u, do_loads, do_reads, vm):
    a(f's_waitcnt vmcnt({vm}) lgkmcnt(0)')
    rd = areads((u + 1) & 1, (u + 1) % D) if do_reads else []
    g, r, d, post = loads(u % D)
    mf = [f'{MF} {vr(ACC(nb,mb))}, {vr(AF(u&1,nb))}, {vr(OR(u%D,mb))}, {vr(ACC(nb,mb))}' for mb in range(3) for nb in range(4)]
    fills = {0: rd[0:2], 1: rd[2:4], 2: rd[4:6], 3: rd[6:8]}
    if do_loads:
        fills[3] = fills[3] + [g[0]]
        fills.update({4: [d[0]], 5: [d[1], r[0]], 6: [d[2]], 7: [d[3]], 8: [r[1]], 11: [r[2]] + post})
    for i, m in enumerate(mf):
        a(m)
        for f in fills.get(i, []): a(f)

def gen_k2(prof=False, var=''):
    NST[0] = 0
    segs = {}
    a = Asm(); segs['init'] = a
    t = [f'v{x}' for x in T]
    a(f"""
    s_cmp_ge_u32 s2, {NWG}
    s_cbranch_scc1 L_k2_end
    s_load_dwordx2 {sr(sWO,2)}, s[0:1], 32
    s_load_dwordx2 {sr(sO,2)}, s[0:1], 56
    s_load_dwordx2 {sr(sOUT,2)}, s[0:1], 40
    """)
    if prof: a('s_memrealtime s[96:97]')
    stamp(a, prof)
    a(f"""
    v_lshrrev_b32 v1, 6, v0
    v_and_b32 v{vL}, 63, v0
    s_mov_b32 s{sWO+2}, 4718592
    s_mov_b32 s{sWO+3}, 0x00020000
    v_readfirstlane_b32 s{sW}, v1
    s_mov_b32 s{sO+2}, 10485760
    s_mov_b32 s{sO+3}, 0x00020000
    s_mov_b32 s{sOUT+2}, 1474560
    s_mov_b32 s{sOUT+3}, 0x00020000
    s_and_b32 s24, s2, 7
    s_lshr_b32 s25, s2, 3
    s_mul_i32 s26, s24, 30
    s_min_u32 s27, s24, 3
    s_add_u32 s26, s26, s27
    s_add_u32 s26, s26, s25
    ; ntg = L/81 ; rem = L%81 ; mt = rem/3 ; nt = 3*ntg + rem%3
    s_mul_i32 s27, s26, 811
    s_lshr_b32 s27, s27, 16
    s_mul_i32 s28, s27, 81
    s_sub_u32 s28, s26, s28
    s_mul_i32 s29, s28, 171
    s_lshr_b32 s{sMT}, s29, 9
    s_mul_i32 s29, s{sMT}, 3
    s_sub_u32 s29, s28, s29
    s_mul_i32 s27, s27, 3
    s_add_u32 s{sNT}, s27, s29
    s_mul_i32 s24, s{sMT}, {3*131072}
    s_lshl_b32 s25, s{sW}, 15
    s_add_u32 s{sA}, s24, s25
    s_mul_i32 s{sB}, s{sW}, 1179648
    s_mul_i32 s{sM0}, s{sW}, {D*SLOT}
    v_lshlrev_b32 {t[0]}, 4, v{vL}
    v_mov_b32 v{vO[0]}, {t[0]}
    v_add_u32 v{vO[1]}, 131072, {t[0]}
    v_add_u32 v{vO[2]}, 262144, {t[0]}
    s_lshl_b32 s24, s{sNT}, 7
    v_lshrrev_b32 {t[0]}, 3, v{vL}
    v_mul_u32_u24 {t[0]}, 1152, {t[0]}
    v_add_u32 {t[0]}, s24, {t[0]}
    v_lshrrev_b32 {t[1]}, 4, v{vL}
    v_lshlrev_b32 {t[1]}, 1, {t[1]}
    v_and_b32 {t[2]}, 7, v{vL}
    v_xor_b32 {t[1]}, {t[1]}, {t[2]}
    v_lshl_add_u32 v{vWO[0]}, {t[1]}, 4, {t[0]}
    """)
    for p in range(1, 4):
        a(f'v_add_u32 v{vWO[p]}, {p*(8*1152-1024)}, v{vWO[0]}')
    a(f"""
    v_lshrrev_b32 {t[0]}, 4, v{vL}
    v_lshrrev_b32 {t[1]}, 2, v{vL}
    v_and_b32 {t[1]}, 3, {t[1]}
    v_lshl_add_u32 {t[0]}, {t[0]}, 2, {t[1]}
    v_lshrrev_b32 {t[1]}, 1, {t[0]}
    v_and_b32 {t[1]}, 3, {t[1]}
    v_lshlrev_b32 {t[0]}, 7, {t[0]}
    v_add_u32 {t[0]}, s{sM0}, {t[0]}
    v_and_b32 {t[2]}, 1, v{vL}
    v_lshl_add_u32 {t[0]}, {t[2]}, 3, {t[0]}
    v_lshrrev_b32 {t[2]}, 1, v{vL}
    v_and_b32 {t[2]}, 1, {t[2]}
    v_lshl_add_u32 {t[0]}, {t[2]}, 4, {t[0]}
    """)
    for nb in range(4):
        a(f'v_xor_b32 {t[2]}, {nb}, {t[1]}')
        a(f'v_lshl_add_u32 v{vRD[nb]}, {t[2]}, 5, {t[0]}')
    a('s_waitcnt lgkmcnt(0)')
    if 'noO' in var: a(f's_mov_b32 s{sA}, {hex(OOB)}')
    if 'noW' in var: a(f's_mov_b32 s{sB}, {hex(OOB)}')
    for slot in range(D):
        g, r, d, post = loads(slot)
        a(g[0])
        for x in r + d + post: a(x)
    for i in range(48): a(f'v_mov_b32 v{16+i}, 0')
    stamp(a, prof)
    a(f's_waitcnt vmcnt({7*(D-1)})')
    stamp(a, prof)
    for x in areads(0, 0): a(x)
    a(f's_mov_b32 s{sL}, 0')
    a = Asm(); segs['loop'] = a
    a.label('L_k2_loop')
    for u in range(D):
        kstep(a, u, True, True, 7 * (D - 2))
    a(f"""
    s_add_u32 s{sL}, s{sL}, 1
    s_cmp_lt_u32 s{sL}, {32//D - 1}
    s_cbranch_scc1 L_k2_loop
    """)
    a = Asm(); segs['tail'] = a
    for u in range(D):
        kstep(a, u, False, u < D - 1, max(0, 7 * (D - 2 - u)))
    a = Asm(); segs['epi'] = a
    stamp(a, prof)
    a(f"""
    s_barrier
    s_mul_i32 s24, s{sW}, 12288
    v_lshlrev_b32 {t[0]}, 4, v{vL}
    v_add_u32 {t[1]}, s24, {t[0]}
    s_lshl_b32 s24, s{sW}, 10
    v_add_u32 {t[4]}, s24, {t[0]}
    s_nop 3
    """)
    for nb in range(4):
        for mb in range(3):
            a(f'ds_write_b128 {t[1]}, {vr(ACC(nb,mb))} offset:{(mb*4+nb)*1024}')
    a(f"""
    s_waitcnt lgkmcnt(0)
    s_barrier
    """)
    for w in range(4):
        for mb in range(3):
            a(f'ds_read_b128 {vr(64 + (w*3+mb)*4)}, {t[4]} offset:{w*12288 + mb*4096}')
    a(f"""
    s_mul_i32 s24, s{sMT}, {48*1152}
    s_lshl_b32 s25, s{sNT}, 7
    s_add_u32 s24, s24, s25
    s_lshl_b32 s25, s{sW}, 5
    s_add_u32 s24, s24, s25
    v_and_b32 {t[2]}, 15, v{vL}
    v_mul_u32_u24 {t[2]}, 1152, {t[2]}
    v_lshrrev_b32 {t[3]}, 4, v{vL}
    v_lshl_add_u32 {t[2]}, {t[3]}, 3, {t[2]}
    s_waitcnt lgkmcnt(0)
    """)
    for mb in range(3):
        for i in range(4):
            r0 = 64 + mb * 4 + i
            a(f'v_add_f32 v{r0}, v{r0}, v{r0+12}')
            a(f'v_add_f32 v{r0+24}, v{r0+24}, v{r0+36}')
            a(f'v_add_f32 v{r0}, v{r0}, v{r0+24}')
        b = 64 + mb * 4
        a(f'v_cvt_pk_bf16_f32 v{16+2*mb}, v{b}, v{b+1}')
        a(f'v_cvt_pk_bf16_f32 v{17+2*mb}, v{b+2}, v{b+3}')
        a(f'buffer_store_dwordx2 {vr(16+2*mb,2)}, {t[2]}, {sr(sOUT)}, s24 offen')
        if mb < 2: a(f's_add_u32 s24, s24, {16*1152}')
    if prof:
        a('s_waitcnt vmcnt(0)')
        stamp(a, prof)
        a('s_memrealtime s[98:99]')
        a('s_waitcnt lgkmcnt(0)')
        a(f"""
    s_lshl_b32 s34, s2, 2
    s_add_u32 s34, s34, s{sW}
    s_lshl_b32 s34, s34, 7
    s_add_u32 s34, s34, 0x1100000
    s_mov_b32 s{sO+2}, 0x2000000
    v_mov_b32 {t[0]}, s34
    """)
        for k in range(NST[0]):
            a(f's_sub_u32 s35, s{60+2*k}, s60')
            a(f'v_mov_b32 v{100+k}, s35')
            a(f'buffer_store_dword v{100+k}, {t[0]}, {sr(sO)}, 0 offen offset:{4*k}')
        a('v_mov_b32 v140, s96')
        a('v_mov_b32 v141, s98')
        a(f'buffer_store_dword v140, {t[0]}, {sr(sO)}, 0 offen offset:120')
        a(f'buffer_store_dword v141, {t[0]}, {sr(sO)}, 0 offen offset:124')
    return segs, ['init', 'loop', 'tail', 'epi']
```

```python
import sys, struct, math
sys.path.insert(0, 'gen')
from asmlib import Asm, Ins, check_trace
import k1, k2

NAME = 'standalone__gqa_block_cached__near_ridge'

def desc(name, vgpr=512, accum=256, sgpr=102):
    return f""".amdhsa_kernel {name}
  .amdhsa_next_free_vgpr {vgpr}
  .amdhsa_next_free_sgpr {sgpr}
  .amdhsa_accum_offset {accum}
  .amdhsa_group_segment_fixed_size 0
  .amdhsa_kernarg_size 64
  .amdhsa_user_sgpr_count 2
  .amdhsa_user_sgpr_kernarg_segment_ptr 1
  .amdhsa_system_sgpr_workgroup_id_x 1
.end_amdhsa_kernel
"""

def ins_only(asm): return [i for i in asm.items if isinstance(i, Ins)]

def check_k1(segs):
    I = {k: ins_only(v) for k, v in segs.items()}
    tr = I['init'] + I['qproj'] + I['qfin'] + I['pre'] + I['loop'] + I['loop'] + I['fin'] + I['epi']
    p = check_trace(tr, 'k1 main')
    epi = I['epi']
    cut = [n for n, i in enumerate(epi) if 'L_fallback' in i.text][0]
    fb = I['fb']
    l0 = [n for n, i in enumerate(fb) if 'L_fb_loop' in i.text][0]
    body_start = [n for n, i in enumerate(fb) if i.text.startswith('s_mov_b32 m0')][0]
    fb2 = fb[:l0 + 1] + fb[body_start:]
    tr2 = I['pre'] + I['loop'] + I['fin'] + epi[:cut + 1] + fb2 + I['pre'] + I['loop'] + I['fin'] + epi
    p += check_trace(tr2, 'k1 fallback')
    return p

def check_k2(segs):
    I = {k: ins_only(v) for k, v in segs.items()}
    return check_trace(I['init'] + I['loop'] + I['loop'] + I['tail'] + I['epi'], 'k2')

def build(prof=False, k1only=False, var=''):
    q = struct.unpack('<I', struct.pack('<f', 128 ** -0.5 * math.log2(math.e)))[0]
    assert q == k1.QSCALE, hex(q)
    if 'fused' in var:
        k1.FUSED = 2 if 'fused2' in var else True; k1only = True
    segs, order = k1.gen_k1(prof)
    probs = check_k1(segs)
    hdr = open('cdna_kernels/' + NAME + '.s.ref').read().split('; Override launch')[0]
    out = [hdr]
    kn = NAME + '_kernel'
    kn2 = 'gqa_outproj_kernel'
    if k1only:
        out.append('; @launch grid=(256,1,1) block=(256,1,1) lds=163840\n')
    else:
        out.append(f'; @launch kernel={kn} grid=(256,1,1) block=(256,1,1) lds=163840\n')
        out.append(f'; @launch kernel={kn2} grid=(243,1,1) block=(256,1,1) lds=131072\n')
        if 'k2twice' in var: out.append(f'; @launch kernel={kn2} grid=(243,1,1) block=(256,1,1) lds=131072\n')
    out.append('.amdgcn_target "amdgcn-amd-amdhsa--gfx950"\n.text\n')
    out.append(f'.globl {kn}\n.p2align 8\n.type {kn},@function\n{kn}:\n')
    for o in order: out.append(segs[o].text())
    out.append('L_k1_end:\n    s_endpgm\n')
    if not k1only:
        s2, o2 = k2.gen_k2(prof, var)
        probs += check_k2(s2)
        out.append(f'.globl {kn2}\n.p2align 8\n.type {kn2},@function\n{kn2}:\n')
        for o in o2: out.append(s2[o].text())
        out.append('L_k2_end:\n    s_endpgm\n')
    out.append('.section .rodata,"a"\n.p2align 6\n')
    out.append(desc(kn))
    if not k1only:
        out.append('.p2align 6\n' + desc(kn2, 256, 256))
    return ''.join(out), probs

if __name__ == '__main__':
    prof = 'prof' in sys.argv
    outp = [a for a in sys.argv[1:] if a.endswith('.s')]
    txt, probs = build(prof=prof, k1only='k1only' in sys.argv, var=' '.join(sys.argv))
    open(outp[0] if outp else 'k1.s', 'w').write(txt)
    print('lines', txt.count('\n'), 'bytes', len(txt))
```

```python
from asmlib import Asm, Ins, Label, Raw

sX, sK, sV, sW, sO = 8, 12, 16, 20, 24
sWO = 52
sWAVE, sR, sKH, sHQ, sB = 3, 4, 5, 6, 7
sT = 30
sM0K = 31
sL = 32
sFB = 33
sXG = [40, 41, 42]
sWG = [43, 44, 45]
sXo, sWo = 46, 47
sT0 = 48
sM0X, sM0W = 49, 50
sTMP = 34
vLANE = 2
def Q(j, s): return 16 + (j * 4 + s) * 4
def OKEEP(j, n): return 96 + (j * 4 + n) * 4
def S(buf, kb): return 176 + (buf * 2 + kb) * 4
def P(buf): return 192 + buf * 4
def CI(j): return 200 + 4 * j
vONES = 220
vKA = [224, 225, 226, 227]
vVA = [228 + i for i in range(8)]
vKD = [236, 237, 238, 239]
vVD = [240, 241]
vXD = [3, 4, 5, 6, 7]
vWD = [8, 9, 10, 11]
vXR = [12, 13]
vWR = [14, 15]
vE, vEP = 242, 243
vT = list(range(244, 256))
def OSEND(j, n): return (j * 4 + (n - 4)) * 4
def LS(j): return 80 + 4 * j
def KF(buf, kb, ds): return 100 + (buf * 8 + kb * 4 + ds) * 4
def VF(buf, n): return 164 + (buf * 8 + n) * 4
def QA(buf, a): return 100 + buf * 16 + a * 4
def QB(buf, j): return 132 + buf * 20 + j * 4
def QACC(j, a): return 96 + (j * 4 + a) * 4

def vr(b, n=4): return f'v[{b}:{b+n-1}]'
def ar(b, n=4): return f'a[{b}:{b+n-1}]'
def sr(b, n=4): return f's[{b}:{b+n-1}]'
def OREG(j, n): return vr(OKEEP(j, n)) if n < 4 else ar(OSEND(j, n))

MF = 'v_mfma_f32_16x16x32_bf16'
XBUF0, XBUFS = 81920, 20480
WBUF0, WBUFS = 16384, 16384
EXQ = 122880
EXF = 131072
OOB = 0x7f000000
TOUCH = True
QSCALE = 0x3e0293ee

NSTAMP = [0]
def stamp(a, prof, real=False):
    if not prof: return
    k = NSTAMP[0]; NSTAMP[0] += 1
    assert k < 16
    a(f's_mem{"real" if real else ""}time s[{60+2*k}:{61+2*k}]')
    a('s_waitcnt lgkmcnt(0)')

def interleave(a, mf, fills):
    for i, m in enumerate(mf):
        a(m)
        for f in fills.get(i, []):
            a(f)

def init(a, prof):
    a(f"""
    s_cmp_ge_u32 s2, 256
    s_cbranch_scc1 L_k1_end
    s_load_dwordx2 {sr(sX,2)}, s[0:1], 0
    s_load_dwordx2 {sr(sW,2)}, s[0:1], 24
    s_load_dwordx2 {sr(sK,2)}, s[0:1], 8
    s_load_dwordx2 {sr(sV,2)}, s[0:1], 16
    s_load_dwordx2 {sr(sO,2)}, s[0:1], 56
    s_load_dwordx2 {sr(sWO,2)}, s[0:1], 32
    """)
    if prof:
        a('s_memrealtime s[96:97]')
    stamp(a, prof)
    a(f"""
    v_lshrrev_b32 v1, 6, v0
    v_and_b32 v{vLANE}, 63, v0
    s_mov_b32 s{sX+2}, 1474560
    s_mov_b32 s{sX+3}, 0x00020000
    v_readfirstlane_b32 s{sWAVE}, v1
    s_mov_b32 s{sW+2}, 4718592
    s_mov_b32 s{sW+3}, 0x00020000
    s_mov_b32 s{sK+2}, 0x4000000
    s_mov_b32 s{sK+3}, 0x00020000
    s_mov_b32 s{sV+2}, 0x4000000
    s_mov_b32 s{sV+3}, 0x00020000
    s_mov_b32 s{sO+2}, 10485760
    s_mov_b32 s{sO+3}, 0x00020000
    s_mov_b32 s{sWO+2}, 4718592
    s_mov_b32 s{sWO+3}, 0x00020000
    s_and_b32 s34, s2, 7
    s_lshr_b32 s35, s2, 3
    s_and_b32 s36, s35, 3
    s_lshl_b32 s{sHQ}, s34, 2
    s_add_u32 s{sHQ}, s{sHQ}, s36
    s_lshr_b32 s{sB}, s35, 2
    s_and_b32 s{sR}, s{sWAVE}, 1
    s_lshr_b32 s{sKH}, s{sWAVE}, 1
    s_add_u32 s37, s{sB}, s36
    s_mul_i32 s38, s37, 43
    s_lshr_b32 s38, s38, 7
    s_mul_i32 s38, s38, 3
    s_sub_u32 s37, s37, s38
    s_mul_i32 s38, s{sB}, 184320
    s_lshl_b32 s39, s{sHQ}, 8
    """)
    for G in range(3):
        a(f"""
    s_mul_i32 s34, s37, 384
    s_add_u32 s{sXG[G]}, s38, s34
    s_mul_i32 s34, s37, 0x180000
    s_add_u32 s{sWG[G]}, s39, s34
    s_add_u32 s37, s37, 1
    s_cmp_eq_u32 s37, 3
    s_cselect_b32 s37, 0, s37
    """)
    l = f'v{vLANE}'
    t0, t1, t2, t3, t4, t5 = [f'v{x}' for x in vT[:6]]
    a(f"""
    s_lshl_b32 s34, s{sWAVE}, 3
    v_lshrrev_b32 {t0}, 3, {l}
    v_add_u32 {t0}, s34, {t0}
    v_mul_u32_u24 {t0}, 1152, {t0}
    v_and_b32 {t1}, 7, {l}
    v_lshrrev_b32 {t2}, 4, {l}
    v_xor_b32 {t1}, {t1}, {t2}
    s_lshl_b32 s35, s{sR}, 2
    v_xor_b32 {t1}, s35, {t1}
    v_lshl_add_u32 v{vXD[0]}, {t1}, 4, {t0}
    """)
    for i in range(1, 5):
        a(f'v_add_u32 v{vXD[i]}, {36864*i}, v{vXD[0]}')
    a(f"""
    s_lshl_b32 s34, s{sWAVE}, 2
    v_add_u32 {t0}, s34, {t2}
    v_lshlrev_b32 {t0}, 13, {t0}
    v_and_b32 {t3}, 15, {l}
    v_lshlrev_b32 {t1}, 2, {t2}
    v_xor_b32 {t1}, {t1}, {t3}
    v_lshl_add_u32 v{vWD[0]}, {t1}, 4, {t0}
    """)
    for i in range(1, 4):
        a(f'v_add_u32 v{vWD[i]}, {131072*i}, v{vWD[0]}')
    a(f"""
    s_lshl_b32 s34, s{sWAVE}, 10
    s_add_u32 s{sM0X}, s34, {XBUF0}
    s_add_u32 s{sM0W}, s34, {WBUF0}
    s_lshr_b32 s34, s{sHQ}, 1
    s_lshl_b32 s35, s{sB}, 4
    s_add_u32 s34, s34, s35
    s_lshl_b32 s34, s34, 19
    s_lshl_b32 s35, s{sKH}, 18
    s_add_u32 s34, s34, s35
    s_lshl_b32 s35, s{sR}, 12
    s_add_u32 s{sT0}, s34, s35
    s_lshl_b32 s34, s{sKH}, 16
    s_add_u32 s{sM0K}, s34, s35
    s_mov_b32 s{sFB}, 0
    """)
    a(f"""
    v_lshlrev_b32 {t0}, 8, {t2}
    v_xor_b32 {t1}, {t3}, {t2}
    """)
    for j in range(4):
        a(f'v_xor_b32 {t4}, {4*j}, {t1}')
        a(f'v_lshl_add_u32 v{vKD[j]}, {t4}, 4, {t0}')
    a(f"""
    v_lshlrev_b32 {t4}, 1, {t2}
    v_xor_b32 {t1}, {t3}, {t4}
    """)
    for p in range(2):
        a(f'v_xor_b32 {t4}, {8*p}, {t1}')
        a(f'v_lshl_add_u32 v{vVD[p]}, {t4}, 4, {t0}')
    a('s_waitcnt lgkmcnt(0)')

def dma_x(G, within, i, buf):
    return [f's_add_u32 m0, s{sM0X}, {buf*XBUFS + 4096*i}',
            f'buffer_load_dwordx4 v{vXD[i]}, {sr(sX)}, s{sXo} offen lds']
def dma_w(G, within, i, buf):
    return [f's_add_u32 m0, s{sM0W}, {buf*WBUFS + 4096*i}',
            f'buffer_load_dwordx4 v{vWD[i]}, {sr(sW)}, s{sWo} offen lds']
def chunk_dmas(i9):
    G, w = i9 // 3, i9 % 3
    buf = i9 % 3
    pre = [f's_add_u32 s{sXo}, s{sXG[G]}, {128*w}', f's_add_u32 s{sWo}, s{sWG[G]}, {0x80000*w}']
    grp = []
    for i in range(4):
        grp.append(dma_w(G, w, i, buf))
        grp.append(dma_x(G, w, i, buf))
    grp.append(dma_x(G, w, 4, buf))
    return pre, grp

def tile_dmas(slot):
    g = []
    for j in range(4):
        pre = [f's_add_u32 m0, s{sM0K}, {slot*16384}'] if j == 0 else []
        g.append(pre + [f'buffer_load_dwordx4 v{vKD[j]}, {sr(sK)}, s{sT} offen offset:{1024*j} nt lds'])
    for j in range(4):
        pre = [f's_add_u32 m0, s{sM0K}, {slot*16384 + 8192}'] if j == 0 else []
        g.append(pre + [f'buffer_load_dwordx4 v{vVD[j&1]}, {sr(sV)}, s{sT} offen offset:{1024*j} nt lds'])
    return g

def emit_groups(a, groups):
    for g in groups:
        for k, ins in enumerate(g):
            a(ins)
            if 'm0' in ins.split(',')[0]:
                a('s_nop 0')

def init2(a):
    l = f'v{vLANE}'
    t0, t1, t2, t3, t4, t5, t6 = [f'v{x}' for x in vT[:7]]
    a(f"""
    v_lshrrev_b32 {t2}, 4, {l}
    v_and_b32 {t3}, 15, {l}
    v_lshrrev_b32 {t5}, 2, {l}
    v_and_b32 {t5}, 3, {t5}
    v_and_b32 {t6}, 3, {l}
    s_mul_i32 s34, s{sR}, 10240
    s_add_u32 s34, s34, {XBUF0}
    v_lshlrev_b32 {t0}, 7, {t3}
    v_add_u32 {t0}, s34, {t0}
    v_lshrrev_b32 {t1}, 1, {t3}
    v_xor_b32 {t4}, {t2}, {t1}
    v_lshl_add_u32 v{vXR[0]}, {t4}, 4, {t0}
    v_xor_b32 {t4}, 4, {t4}
    v_lshl_add_u32 v{vXR[1]}, {t4}, 4, {t0}
    v_lshl_add_u32 {t0}, {t2}, 3, {t5}
    v_lshlrev_b32 {t0}, 8, {t0}
    v_add_u32 {t0}, {WBUF0}, {t0}
    s_lshl_b32 s34, s{sKH}, 1
    """)
    for sp in range(2):
        a(f"""
    s_add_u32 s35, s34, {sp}
    v_xor_b32 {t1}, s35, {t5}
    v_lshl_add_u32 {t1}, {t1}, 2, {t6}
    v_lshl_add_u32 v{vWR[sp]}, {t1}, 4, {t0}
    """)
    a(f"""
    s_lshl_b32 s35, s{sKH}, 16
    v_lshlrev_b32 {t0}, 8, {t3}
    v_add_u32 {t0}, s35, {t0}
    """)
    for sp in range(4):
        a(f"""
    s_xor_b32 s36, s34, {sp}
    s_lshl_b32 s36, s36, 2
    v_add_u32 {t1}, s36, {t2}
    v_xor_b32 {t1}, {t1}, {t3}
    v_lshl_add_u32 v{vKA[sp]}, {t1}, 4, {t0}
    """)
    a(f"""
    v_lshl_add_u32 {t0}, {t2}, 2, {t5}
    v_lshlrev_b32 {t0}, 8, {t0}
    s_add_u32 s35, s35, 8192
    v_add_u32 {t0}, s35, {t0}
    v_and_b32 {t1}, 1, {t6}
    v_lshl_add_u32 {t0}, {t1}, 3, {t0}
    v_lshrrev_b32 {t1}, 1, {t6}
    v_lshl_add_u32 {t0}, {t1}, 4, {t0}
    v_and_b32 {t1}, 1, {t2}
    v_lshl_add_u32 {t1}, {t1}, 2, {t5}
    s_lshl_b32 s36, s{sKH}, 2
    """)
    for n in range(8):
        a(f"""
    s_xor_b32 s37, s36, {n}
    v_xor_b32 {t4}, s37, {t1}
    v_lshl_add_u32 v{vVA[n]}, {t4}, 5, {t0}
    """)
    a(f"""
    s_mul_i32 s34, s{sWAVE}, 10240
    s_add_u32 s34, s34, {EXQ}
    v_lshlrev_b32 {t0}, 4, {l}
    v_add_u32 v{vE}, s34, {t0}
    s_xor_b32 s35, s{sWAVE}, 2
    s_mul_i32 s35, s35, 10240
    s_add_u32 s35, s35, {EXQ}
    v_add_u32 v{vEP}, s35, {t0}
    """)
    zero_acc(a, keep=False)
    for i in range(4):
        a(f'v_mov_b32 v{vONES+i}, 0x3f803f80')
    for j in range(5):
        for i in range(4):
            a(f'v_mov_b32 v{CI(j)+i}, 0')

def zero_acc(a, keep=True):
    for i in range(100):
        a(f'v_accvgpr_write_b32 a{i}, 0')
    for i in range(32):
        a(f'v_accvgpr_write_b32 a{VF(1,0)+i}, 0')
    for i in range(4):
        a(f'v_mov_b32 v{P(1)+i}, 0')
    if keep:
        for i in range(80):
            a(f'v_mov_b32 v{96+i}, 0')

def qfrag_reads(u):
    i9, ks = u // 2, u % 2
    buf, fb = i9 % 3, u % 2
    r = []
    for j in range(5):
        r.append(f'ds_read_b128 {ar(QB(fb, j))}, v{vXR[ks]} offset:{XBUFS*buf + 2048*j}')
    for sp in range(2):
        for t in range(2):
            for h in range(2):
                r.append(f'ds_read_b64_tr_b16 {ar(QA(fb, 2*sp+t)+2*h, 2)}, v{vWR[sp]} offset:{WBUFS*buf + 8192*ks + 1024*h + 8*t}')
    A = r[5:]; B = r[:5]
    return [A[0], A[1], B[0], B[1], B[2], B[3], B[4]] + A[2:]

def qproj(a, prof):
    for i9 in range(3):
        pre, grp = chunk_dmas(i9)
        for p in pre: a(p)
        emit_groups(a, grp)
    a(f's_mov_b32 s{sT}, s{sT0}')
    emit_groups(a, tile_dmas(0))
    a(f's_add_u32 s{sT}, s{sT}, 8192')
    stamp(a, prof)
    init2(a)
    stamp(a, prof)
    a('s_waitcnt vmcnt(26)')
    stamp(a, prof)
    a('s_barrier')
    stamp(a, prof)
    for r in qfrag_reads(0): a(r)
    vm_at = {1: 17, 3: 17, 5: 9, 7: 9, 9: 9, 11: 9, 13: 9, 15: 8}
    pend = []
    for u in range(18):
        fb = u % 2
        if u % 2 == 1:
            if u in vm_at: a(f's_waitcnt vmcnt({vm_at[u]}) lgkmcnt(0)')
            else: a('s_waitcnt lgkmcnt(0)')
            a('s_barrier')
            if u in (1, 5, 9, 13, 17): stamp(a, prof)
            c = u // 2
            assert not pend
            if c + 3 <= 8:
                pre, grp = chunk_dmas(c + 3)
                pend = [pre + grp[0]] + grp[1:]
            elif c + 3 == 9:
                pend = tile_dmas(1) + [[f's_add_u32 s{sT}, s{sT}, 8192']]
            elif c + 3 == 10:
                pend = tile_dmas(2) + [[f's_add_u32 s{sT}, s{sT}, 8192']]
        else:
            a('s_waitcnt lgkmcnt(0)')
        mf = []
        for t in range(4):
            for j in range(5):
                c_ = '0' if u == 0 else vr(QACC(j, t))
                mf.append(f'{MF} {vr(QACC(j,t))}, {ar(QA(fb,t))}, {ar(QB(fb,j))}, {c_}')
        fills = {}
        reads = qfrag_reads(u + 1) if u < 17 else []
        g = 0
        while reads:
            fills.setdefault(g, []).extend(reads[:2]); reads = reads[2:]; g += 1
        g = 7
        nmax = 6 if u % 2 == 1 else 99
        cnt = 0
        while pend and g < 19 and cnt < nmax:
            grp = pend.pop(0)
            fills.setdefault(g, []).extend(grp[:-1])
            if grp[-1].startswith('buffer'):
                fills.setdefault(g + 1, []).append(grp[-1])
                g += 2
            else:
                fills[g].append(grp[-1]); g += 1
            cnt += 1
        if u % 2 == 0: assert not pend, (u, pend)
        interleave(a, mf, fills)
    assert not pend

def qfin(a, prof):
    stamp(a, prof)
    a(f's_mov_b32 s34, {hex(QSCALE)}')
    a('s_nop 7')
    for j in range(5):
        for t in range(4):
            for i in range(4):
                a(f'v_mul_f32 v{QACC(j,t)+i}, s34, v{QACC(j,t)+i}')
        for sp in range(2):
            for t in range(2):
                b = QACC(j, 2*sp + t)
                a(f'v_cvt_pk_bf16_f32 v{Q(j,sp)+2*t}, v{b}, v{b+1}')
                a(f'v_cvt_pk_bf16_f32 v{Q(j,sp)+2*t+1}, v{b+2}, v{b+3}')
        for sp in range(2):
            a(f'ds_write_b128 v{vE}, {vr(Q(j,sp))} offset:{(j*2+sp)*1024}')
    for i in range(80):
        a(f'v_mov_b32 v{96+i}, 0')
    a('s_waitcnt lgkmcnt(0)')
    a('s_barrier')
    for j in range(5):
        for sp in range(2):
            a(f'ds_read_b128 {vr(Q(j,2+sp))}, v{vEP} offset:{(j*2+sp)*1024}')

def k_reads(buf, slot):
    return [f'ds_read_b128 {ar(KF(buf,kb,ds))}, v{vKA[ds]} offset:{slot*16384 + kb*4096}' for kb in range(2) for ds in range(4)]
def v_reads(buf, slot):
    return [f'ds_read_b64_tr_b16 {ar(VF(buf,n)+2*h, 2)}, v{vVA[n]} offset:{slot*16384 + h*4096}' for n in range(8) for h in range(2)]
def qk_mf(j, kbuf, sbuf, cinit=True):
    m = []
    for kb in range(2):
        for ds in range(4):
            c = (vr(CI(j)) if cinit else '0') if ds == 0 else vr(S(sbuf, kb))
            m.append(f'{MF} {vr(S(sbuf,kb))}, {ar(KF(kbuf,kb,ds))}, {vr(Q(j,ds))}, {c}')
    return m
def pv_mf(j, vbuf, pbuf):
    m = [f'{MF} {ar(LS(j))}, {vr(vONES)}, {vr(P(pbuf))}, {ar(LS(j))}']
    for n in range(8):
        m.append(f'{MF} {OREG(j,n)}, {ar(VF(vbuf,n))}, {vr(P(pbuf))}, {OREG(j,n)}')
    return m

def pre_loop(a, prof):
    a.label('L_attn0')
    for r in k_reads(0, 0) + v_reads(0, 0): a(r)
    a('s_waitcnt vmcnt(8) lgkmcnt(0)')
    a('s_barrier')
    stamp(a, prof)
    mf = qk_mf(0, 0, 0)
    kr = k_reads(1, 1)
    td = tile_dmas(3)
    fills = {}
    for i in range(8):
        fills[i] = [kr[i]]
    interleave(a, mf, fills)
    emit_groups(a, td)
    a(f's_add_u32 s{sT}, s{sT}, 8192')
    a(f's_mov_b32 s{sL}, 0')
    if TOUCH:
        a(f's_lshl_b32 s34, s2, 2')
        a(f's_add_u32 s34, s34, s{sWAVE}')
        a(f's_mul_i32 s34, s34, 4608')
        a(f's_mul_i32 s35, s{sWAVE}, 5120')
        a(f's_add_u32 m0, s35, 131072')
        a(f'v_lshlrev_b32 v{vT[0]}, 4, v{vLANE}')
        for k in range(4):
            a(f'buffer_load_dwordx4 v{vT[0]}, {sr(sWO)}, s34 offen offset:{1024*k} lds')
        a(f's_add_u32 s34, s34, 4096 - 3072')
        a(f's_add_u32 m0, m0, 1024')
        a('s_nop 0')
        a(f'buffer_load_dwordx4 v{vT[0]}, {sr(sWO)}, s34 offen offset:3072 lds')

def step(a, t):
    td = tile_dmas(t % 4)
    vreads = v_reads((t + 1) & 1, (t + 1) % 4)
    kreads = k_reads(t & 1, (t + 2) % 4)
    for j in range(5):
        pn = (t + j) & 1
        if j < 4: qk = qk_mf(j + 1, t & 1, (pn + 1) & 1)
        else: qk = qk_mf(0, (t + 1) & 1, (pn + 1) & 1)
        if j == 0: pv = pv_mf(4, (t - 1) & 1, (pn + 1) & 1)
        else: pv = pv_mf(j - 1, t & 1, (pn + 1) & 1)
        mf = qk + pv
        fills = {g: [] for g in range(17)}
        for e in range(8):
            reg = S(pn, e // 4) + (e % 4)
            fills[2 * e].append(f'v_exp_f32 v{reg}, v{reg}')
        cv = []
        for c in range(4):
            b = S(pn, c // 2) + 2 * (c % 2)
            cv.append(f'v_cvt_pk_bf16_f32 v{P(pn)+c}, v{b}, v{b+1}')
        free2 = [1, 5, 9, 13, 16]
        free1 = [3, 7, 11, 15]
        rd = []
        if j in (1, 2): rd = [vreads.pop(0) for _ in range(6)]
        elif j == 3: rd = [vreads.pop(0) for _ in range(4)]
        elif j == 4: rd = list(kreads)
        order = [(1, 2), (3, 1), (5, 2), (7, 1), (9, 2)]
        for g, k in order:
            for _ in range(k):
                if rd: fills[g].append(rd.pop(0))
        assert not rd
        for c, g in enumerate(free1):
            fills[g].append(cv[c])
        if j < 4:
            d0 = td[2 * j]; d1 = td[2 * j + 1]
            if len(d0) == 2:
                fills[11].append(d0[0])
            gA, gB = (13, 16) if j < 3 else (9, 13)
            fills[gA].append(d0[-1]); fills[gB].append(d1[-1])
        if j == 3:
            fills[16] += ['s_waitcnt vmcnt(16) lgkmcnt(0)', 's_barrier']
        if j == 4:
            fills[13].append(f's_add_u32 s{sT}, s{sT}, 8192')
        interleave(a, mf, fills)

def loop(a):
    a.label('L_loop')
    for t in range(4): step(a, t)
    a(f"""
    s_add_u32 s{sL}, s{sL}, 1
    s_cmp_eq_u32 s{sL}, 7
    s_cselect_b32 s{sT}, {hex(OOB)}, s{sT}
    s_cmp_lt_u32 s{sL}, 8
    s_cbranch_scc1 L_loop
    """)

def final_pv(a):
    for m in pv_mf(4, 1, 1): a(m)

def epilogue(a, prof):
    t = [f'v{x}' for x in vT]
    l = f'v{vLANE}'
    stamp(a, prof)
    a('s_nop 7')
    for j in range(5):
        a(f'v_accvgpr_read_b32 {t[j]}, a{LS(j)}')
    a(f"""
    v_mov_b32 {t[5]}, 0x33800000
    v_mov_b32 {t[6]}, 0x4e800000
    s_mov_b64 s[36:37], 0
    """)
    for j in range(5):
        a(f'v_cmp_nge_f32 vcc, {t[j]}, {t[5]}')
        a(f's_or_b64 s[36:37], s[36:37], vcc')
        a(f'v_cmp_nle_f32 vcc, {t[j]}, {t[6]}')
        a(f's_or_b64 s[36:37], s[36:37], vcc')
    a(f"""
    s_cmp_lg_u64 s[36:37], 0
    s_cselect_b32 s38, 1, 0
    v_mov_b32 {t[5]}, s38
    s_lshl_b32 s34, s{sWAVE}, 2
    s_add_u32 s34, s34, {EXF}
    v_mov_b32 {t[6]}, s34
    ds_write_b32 {t[6]}, {t[5]}
    s_mul_i32 s34, s{sWAVE}, 1280
    s_add_u32 s34, s34, {EXF+256}
    v_lshlrev_b32 {t[7]}, 2, {l}
    v_add_u32 {t[6]}, s34, {t[7]}
    """)
    for j in range(5):
        a(f'ds_write_b32 {t[6]}, {t[j]} offset:{256*j}')
    a(f"""
    s_xor_b32 s35, s{sWAVE}, 2
    s_mul_i32 s34, s35, 1280
    s_add_u32 s34, s34, {EXF+256}
    v_add_u32 {t[7]}, s34, {t[7]}
    v_mov_b32 {t[8]}, {EXF}
    s_waitcnt vmcnt(0) lgkmcnt(0)
    s_barrier
    ds_read_b128 v[{S(0,0)}:{S(0,0)+3}], {t[8]}
    """)
    for j in range(5):
        a(f'ds_read_b32 v{S(1,0)+j}, {t[7]} offset:{256*j}')
    a(f"""
    s_mul_i32 s34, s{sWAVE}, 20480
    v_lshlrev_b32 {t[9]}, 4, {l}
    v_add_u32 {t[6]}, s34, {t[9]}
    s_mul_i32 s34, s35, 20480
    v_add_u32 {t[7]}, s34, {t[9]}
    """)
    for j in range(5):
        for n in range(4):
            a(f'ds_write_b128 {t[6]}, {ar(OSEND(j,4+n))} offset:{(j*4+n)*1024}')
        if j == 0:
            a('s_waitcnt lgkmcnt(4)')
            b = S(0, 0)
            a(f"""
    v_or_b32 v{b}, v{b}, v{b+1}
    v_or3_b32 v{b}, v{b}, v{b+2}, v{b+3}
    s_nop 0
    v_readfirstlane_b32 s38, v{b}
    s_xor_b32 s39, s{sFB}, 1
    s_and_b32 s38, s38, s39
    s_cmp_lg_u32 s38, 0
    s_cbranch_scc1 L_fallback
    """)
            for jj in range(5):
                a(f'v_add_f32 {t[jj]}, {t[jj]}, v{S(1,0)+jj}')
            for jj in range(5):
                a(f'v_rcp_f32 {t[jj]}, {t[jj]}')
    a('s_waitcnt lgkmcnt(0)')
    a('s_barrier')
    for j in range(5):
        for n in range(4):
            a(f'ds_read_b128 {vr(Q(j,n))}, {t[7]} offset:{(j*4+n)*1024}')
    a(f"""
    s_mul_i32 s34, s{sB}, 10
    s_mul_i32 s35, s{sR}, 5
    s_add_u32 s34, s34, s35
    s_lshl_b32 s34, s34, 7
    s_lshl_b32 s35, s{sHQ}, 2
    s_add_u32 s34, s34, s35
    s_lshl_b32 s35, s{sKH}, 1
    s_add_u32 s34, s34, s35
    s_lshl_b32 s34, s34, 10
    """)
    for j in range(5):
        a(f's_waitcnt lgkmcnt({min(12, 16-4*j)})')
        for n in range(4):
            for i in range(4):
                a(f'v_add_f32 v{OKEEP(j,n)+i}, v{OKEEP(j,n)+i}, v{Q(j,n)+i}')
        for n in range(4):
            for i in range(4):
                a(f'v_mul_f32 v{OKEEP(j,n)+i}, {t[j]}, v{OKEEP(j,n)+i}')
        for u in range(2):
            for hh in range(2):
                b = OKEEP(j, 2*u + hh)
                a(f'v_cvt_pk_bf16_f32 v{Q(j,u)+2*hh}, v{b}, v{b+1}')
                a(f'v_cvt_pk_bf16_f32 v{Q(j,u)+2*hh+1}, v{b+2}, v{b+3}')
        if j > 0: a(f's_add_u32 s34, s34, {128*1024}')
        for u in range(2):
            a(f'buffer_store_dwordx4 {vr(Q(j,u))}, {t[9]}, {sr(sO)}, s34 offen offset:{1024*u}')
    if prof:
        a('s_waitcnt vmcnt(0)')
        stamp(a, prof)
        a('s_memrealtime s[98:99]')
        a('s_waitcnt lgkmcnt(0)')
        a(f"""
    s_lshl_b32 s34, s2, 2
    s_add_u32 s34, s34, s{sWAVE}
    s_lshl_b32 s34, s34, 7
    s_add_u32 s34, s34, 0x1000000
    s_mov_b32 s{sO+2}, 0x2000000
    v_mov_b32 {t[0]}, s34
    """)
        for k in range(NSTAMP[0]):
            a(f's_sub_u32 s35, s{60+2*k}, s60')
            a(f'v_mov_b32 v{16+k}, s35')
            a(f'buffer_store_dword v{16+k}, {t[0]}, {sr(sO)}, 0 offen offset:{4*k}')
        a('v_mov_b32 v40, s96')
        a('v_mov_b32 v41, s98')
        a(f'buffer_store_dword v40, {t[0]}, {sr(sO)}, 0 offen offset:120')
        a(f'buffer_store_dword v41, {t[0]}, {sr(sO)}, 0 offen offset:124')
    a('s_branch L_k1_end')

def fallback(a):
    t = [f'v{x}' for x in vT]
    l = f'v{vLANE}'
    a.label('L_fallback')
    a('s_waitcnt vmcnt(0) lgkmcnt(0)')
    a('s_barrier')
    for j in range(5):
        a(f'v_mov_b32 {t[j]}, 0xff800000')
    a(f's_mov_b32 s{sT}, s{sT0}')
    a(f's_mov_b32 s{sL}, 0')
    a.label('L_fb_loop')
    a(f's_mov_b32 m0, s{sM0K}')
    a('s_nop 0')
    for j in range(4):
        a(f'buffer_load_dwordx4 v{vKD[j]}, {sr(sK)}, s{sT} offen offset:{1024*j} lds')
    a('s_waitcnt vmcnt(0)')
    a('s_barrier')
    for r in k_reads(0, 0): a(r)
    a('s_waitcnt lgkmcnt(0)')
    a('s_barrier')
    for j in range(5):
        for m in qk_mf(j, 0, 0, cinit=False): a(m)
        a('s_nop 7')
        b0, b1 = S(0, 0), S(0, 1)
        a(f'v_max3_f32 {t[j]}, {t[j]}, v{b0}, v{b0+1}')
        a(f'v_max3_f32 {t[j]}, {t[j]}, v{b0+2}, v{b0+3}')
        a(f'v_max3_f32 {t[j]}, {t[j]}, v{b1}, v{b1+1}')
        a(f'v_max3_f32 {t[j]}, {t[j]}, v{b1+2}, v{b1+3}')
    a(f"""
    s_add_u32 s{sT}, s{sT}, 8192
    s_add_u32 s{sL}, s{sL}, 1
    s_cmp_lt_u32 s{sL}, 32
    s_cbranch_scc1 L_fb_loop
    """)
    a(f"""
    s_mul_i32 s34, s{sWAVE}, 1280
    s_add_u32 s34, s34, {EXF}
    v_lshlrev_b32 {t[7]}, 2, {l}
    v_add_u32 {t[6]}, s34, {t[7]}
    """)
    for j in range(5):
        a(f'ds_write_b32 {t[6]}, {t[j]} offset:{256*j}')
    a(f"""
    s_waitcnt lgkmcnt(0)
    s_barrier
    v_and_b32 {t[7]}, 15, {l}
    v_lshlrev_b32 {t[7]}, 2, {t[7]}
    s_mul_i32 s34, s{sR}, 1280
    s_add_u32 s34, s34, {EXF}
    v_add_u32 {t[7]}, s34, {t[7]}
    """)
    for j in range(5):
        regs = [S(0,0)+i for i in range(8)]
        k = 0
        for kh in range(2):
            for g in range(4):
                a(f'ds_read_b32 v{regs[k]}, {t[7]} offset:{kh*2560 + j*256 + g*64}')
                k += 1
        a('s_waitcnt lgkmcnt(0)')
        a(f'v_max3_f32 {t[8]}, v{regs[0]}, v{regs[1]}, v{regs[2]}')
        a(f'v_max3_f32 {t[8]}, {t[8]}, v{regs[3]}, v{regs[4]}')
        a(f'v_max3_f32 {t[8]}, {t[8]}, v{regs[5]}, v{regs[6]}')
        a(f'v_max_f32 {t[8]}, {t[8]}, v{regs[7]}')
        for i in range(4):
            a(f'v_sub_f32 v{CI(j)+i}, 0, {t[8]}')
    zero_acc(a, keep=True)
    a(f's_mov_b32 s{sFB}, 1')
    a(f's_mov_b32 s{sT}, s{sT0}')
    a('s_barrier')
    for slot in range(3):
        emit_groups(a, tile_dmas(slot))
        a(f's_add_u32 s{sT}, s{sT}, 8192')
    a('s_waitcnt vmcnt(16)')
    a('s_barrier')
    a('s_branch L_attn0')

def gen_k1(prof=False):
    NSTAMP[0] = 0
    segs = {}
    def seg(name, f, *args):
        x = Asm(); f(x, *args); segs[name] = x; return x
    seg('init', init, prof)
    seg('qproj', qproj, prof)
    seg('qfin', qfin, prof)
    seg('pre', pre_loop, prof)
    seg('loop', loop)
    seg('fin', final_pv)
    seg('epi', epilogue, prof)
    seg('fb', fallback)
    order = ['init', 'qproj', 'qfin', 'pre', 'loop', 'fin', 'epi', 'fb']
    return segs, order
```

```python
from asmlib import Asm
MF = 'v_mfma_f32_16x16x32_bf16'
sWO, sO, sOUT = 8, 12, 16
sW, sMT, sNT = 3, 4, 5
sA, sB, sM0, sL, sBLK = 20, 21, 22, 23, 30
OOB = 0x7f000000
D = 8
NWG = 243
def vr(b, n=4): return f'v[{b}:{b+n-1}]'
def sr(b, n=4): return f's[{b}:{b+n-1}]'
def ACC(nb, mb): return 16 + (nb * 3 + mb) * 4
def OR(slot, mb): return 64 + (slot * 3 + mb) * 4
def AF(buf, nb): return 160 + (buf * 4 + nb) * 4
vWO = [3, 4, 5, 6]; vO = [7, 8, 9]; vRD = [10, 11, 12, 13]; vL = 2
T = [192, 193, 194, 195, 196]
SLOT = 4096

NST = [0]
def stamp(a, prof):
    if not prof: return
    k = NST[0]; NST[0] += 1
    a(f's_memtime s[{60+2*k}:{61+2*k}]')
    a('s_waitcnt lgkmcnt(0)')

def loads(slot):
    g = [f's_add_u32 m0, s{sM0}, {slot*SLOT}']
    r = [f'buffer_load_dwordx4 {vr(OR(slot,mb))}, v{vO[mb]}, {sr(sO)}, s{sA} offen' for mb in range(3)]
    d = [f'buffer_load_dwordx4 v{vWO[p]}, {sr(sWO)}, s{sB} offen offset:{1024*p} lds' for p in range(4)]
    post = [f's_add_u32 s{sA}, s{sA}, 1024', f's_add_u32 s{sB}, s{sB}, 36864']
    return g, r, d, post
def areads(buf, slot):
    return [f'ds_read_b64_tr_b16 {vr(AF(buf,nb)+2*h,2)}, v{vRD[nb]} offset:{slot*SLOT + h*2048}' for nb in range(4) for h in range(2)]

def kstep(a, u, do_loads, do_reads, vm):
    a(f's_waitcnt vmcnt({vm}) lgkmcnt(0)')
    rd = areads((u + 1) & 1, (u + 1) % D) if do_reads else []
    g, r, d, post = loads(u % D)
    mf = [f'{MF} {vr(ACC(nb,mb))}, {vr(AF(u&1,nb))}, {vr(OR(u%D,mb))}, {vr(ACC(nb,mb))}' for mb in range(3) for nb in range(4)]
    fills = {0: rd[0:2], 1: rd[2:4], 2: rd[4:6], 3: rd[6:8]}
    if do_loads:
        fills[3] = fills[3] + [g[0]]
        fills.update({4: [d[0]], 5: [d[1], r[0]], 6: [d[2]], 7: [d[3]], 8: [r[1]], 11: [r[2]] + post})
    for i, m in enumerate(mf):
        a(m)
        for f in fills.get(i, []): a(f)

def wrap(a):
    a(f"""
    s_add_u32 s{sBLK}, s{sBLK}, 1
    s_cmp_eq_u32 s{sBLK}, 4
    s_cselect_b32 s24, 32768, 0
    s_cselect_b32 s25, {32*36864}, 0
    s_sub_u32 s{sA}, s{sA}, s24
    s_sub_u32 s{sB}, s{sB}, s25
    """)

def gen_k2(prof=False, var=''):
    NST[0] = 0
    segs = {}
    a = Asm(); segs['init'] = a
    t = [f'v{x}' for x in T]
    a(f"""
    s_cmp_ge_u32 s2, {NWG}
    s_cbranch_scc1 L_k2_end
    s_load_dwordx2 {sr(sWO,2)}, s[0:1], 32
    s_load_dwordx2 {sr(sO,2)}, s[0:1], 56
    s_load_dwordx2 {sr(sOUT,2)}, s[0:1], 40
    """)
    if prof: a('s_memrealtime s[96:97]')
    stamp(a, prof)
    a(f"""
    v_lshrrev_b32 v1, 6, v0
    v_and_b32 v{vL}, 63, v0
    s_mov_b32 s{sWO+2}, 4718592
    s_mov_b32 s{sWO+3}, 0x00020000
    v_readfirstlane_b32 s{sW}, v1
    s_mov_b32 s{sO+2}, 10485760
    s_mov_b32 s{sO+3}, 0x00020000
    s_mov_b32 s{sOUT+2}, 1474560
    s_mov_b32 s{sOUT+3}, 0x00020000
    s_and_b32 s24, s2, 7
    s_lshr_b32 s25, s2, 3
    s_mul_i32 s26, s24, 30
    s_min_u32 s27, s24, 3
    s_add_u32 s26, s26, s27
    s_add_u32 s26, s26, s25
    ; ntg = L/81 ; rem = L%81 ; mt = rem/3 ; nt = 3*ntg + rem%3
    s_mul_i32 s27, s26, 811
    s_lshr_b32 s27, s27, 16
    s_mul_i32 s28, s27, 81
    s_sub_u32 s28, s26, s28
    s_mul_i32 s29, s28, 171
    s_lshr_b32 s{sMT}, s29, 9
    s_mul_i32 s29, s{sMT}, 3
    s_sub_u32 s29, s28, s29
    s_mul_i32 s27, s27, 3
    s_add_u32 s{sNT}, s27, s29
    s_mul_i32 s24, s{sMT}, {3*131072}
    s_lshl_b32 s25, s{sW}, 15
    s_add_u32 s{sA}, s24, s25
    s_mul_i32 s{sB}, s{sW}, 1179648
    s_mul_i32 s{sM0}, s{sW}, {D*SLOT}
    s_add_u32 s{sBLK}, s{sMT}, s{sNT}
    s_and_b32 s{sBLK}, s{sBLK}, {0 if 'norot' in var else 3}
    s_lshl_b32 s24, s{sBLK}, 13
    s_add_u32 s{sA}, s{sA}, s24
    s_mul_i32 s24, s{sBLK}, {8*36864}
    s_add_u32 s{sB}, s{sB}, s24
    v_lshlrev_b32 {t[0]}, 4, v{vL}
    v_mov_b32 v{vO[0]}, {t[0]}
    v_add_u32 v{vO[1]}, 131072, {t[0]}
    v_add_u32 v{vO[2]}, 262144, {t[0]}
    s_lshl_b32 s24, s{sNT}, 7
    v_lshrrev_b32 {t[0]}, 3, v{vL}
    v_mul_u32_u24 {t[0]}, 1152, {t[0]}
    v_add_u32 {t[0]}, s24, {t[0]}
    v_lshrrev_b32 {t[1]}, 4, v{vL}
    v_lshlrev_b32 {t[1]}, 1, {t[1]}
    v_and_b32 {t[2]}, 7, v{vL}
    v_xor_b32 {t[1]}, {t[1]}, {t[2]}
    v_lshl_add_u32 v{vWO[0]}, {t[1]}, 4, {t[0]}
    """)
    for p in range(1, 4):
        a(f'v_add_u32 v{vWO[p]}, {p*(8*1152-1024)}, v{vWO[0]}')
    a(f"""
    v_lshrrev_b32 {t[0]}, 4, v{vL}
    v_lshrrev_b32 {t[1]}, 2, v{vL}
    v_and_b32 {t[1]}, 3, {t[1]}
    v_lshl_add_u32 {t[0]}, {t[0]}, 2, {t[1]}
    v_lshrrev_b32 {t[1]}, 1, {t[0]}
    v_and_b32 {t[1]}, 3, {t[1]}
    v_lshlrev_b32 {t[0]}, 7, {t[0]}
    v_add_u32 {t[0]}, s{sM0}, {t[0]}
    v_and_b32 {t[2]}, 1, v{vL}
    v_lshl_add_u32 {t[0]}, {t[2]}, 3, {t[0]}
    v_lshrrev_b32 {t[2]}, 1, v{vL}
    v_and_b32 {t[2]}, 1, {t[2]}
    v_lshl_add_u32 {t[0]}, {t[2]}, 4, {t[0]}
    """)
    for nb in range(4):
        a(f'v_xor_b32 {t[2]}, {nb}, {t[1]}')
        a(f'v_lshl_add_u32 v{vRD[nb]}, {t[2]}, 5, {t[0]}')
    a('s_waitcnt lgkmcnt(0)')
    if 'noO' in var: a(f's_mov_b32 s{sA}, {hex(OOB)}')
    if 'noW' in var: a(f's_mov_b32 s{sB}, {hex(OOB)}')
    for slot in range(D):
        g, r, d, post = loads(slot)
        a(g[0])
        for x in r + d + post: a(x)
    wrap(a)
    for i in range(48): a(f'v_mov_b32 v{16+i}, 0')
    stamp(a, prof)
    a(f's_waitcnt vmcnt({7*(D-1)})')
    stamp(a, prof)
    for x in areads(0, 0): a(x)
    a(f's_mov_b32 s{sL}, 0')
    a = Asm(); segs['loop'] = a
    a.label('L_k2_loop')
    for u in range(D):
        kstep(a, u, True, True, 7 * (D - 2))
    wrap(a)
    a(f"""
    s_add_u32 s{sL}, s{sL}, 1
    s_cmp_lt_u32 s{sL}, {32//D - 1}
    s_cbranch_scc1 L_k2_loop
    """)
    a = Asm(); segs['tail'] = a
    for u in range(D):
        kstep(a, u, False, u < D - 1, max(0, 7 * (D - 2 - u)))
    a = Asm(); segs['epi'] = a
    stamp(a, prof)
    a(f"""
    s_barrier
    s_mul_i32 s24, s{sW}, 12288
    v_lshlrev_b32 {t[0]}, 4, v{vL}
    v_add_u32 {t[1]}, s24, {t[0]}
    s_lshl_b32 s24, s{sW}, 10
    v_add_u32 {t[4]}, s24, {t[0]}
    s_nop 3
    """)
    for nb in range(4):
        for mb in range(3):
            a(f'ds_write_b128 {t[1]}, {vr(ACC(nb,mb))} offset:{(mb*4+nb)*1024}')
    a(f"""
    s_waitcnt lgkmcnt(0)
    s_barrier
    """)
    for w in range(4):
        for mb in range(3):
            a(f'ds_read_b128 {vr(64 + (w*3+mb)*4)}, {t[4]} offset:{w*12288 + mb*4096}')
    a(f"""
    s_mul_i32 s24, s{sMT}, {48*1152}
    s_lshl_b32 s25, s{sNT}, 7
    s_add_u32 s24, s24, s25
    s_lshl_b32 s25, s{sW}, 5
    s_add_u32 s24, s24, s25
    v_and_b32 {t[2]}, 15, v{vL}
    v_mul_u32_u24 {t[2]}, 1152, {t[2]}
    v_lshrrev_b32 {t[3]}, 4, v{vL}
    v_lshl_add_u32 {t[2]}, {t[3]}, 3, {t[2]}
    s_waitcnt lgkmcnt(0)
    """)
    for mb in range(3):
        for i in range(4):
            r0 = 64 + mb * 4 + i
            a(f'v_add_f32 v{r0}, v{r0}, v{r0+12}')
            a(f'v_add_f32 v{r0+24}, v{r0+24}, v{r0+36}')
            a(f'v_add_f32 v{r0}, v{r0}, v{r0+24}')
        b = 64 + mb * 4
        a(f'v_cvt_pk_bf16_f32 v{16+2*mb}, v{b}, v{b+1}')
        a(f'v_cvt_pk_bf16_f32 v{17+2*mb}, v{b+2}, v{b+3}')
        a(f'buffer_store_dwordx2 {vr(16+2*mb,2)}, {t[2]}, {sr(sOUT)}, s24 offen')
        if mb < 2: a(f's_add_u32 s24, s24, {16*1152}')
    if prof:
        a('s_waitcnt vmcnt(0)')
        stamp(a, prof)
        a('s_memrealtime s[98:99]')
        a('s_waitcnt lgkmcnt(0)')
        a(f"""
    s_lshl_b32 s34, s2, 2
    s_add_u32 s34, s34, s{sW}
    s_lshl_b32 s34, s34, 7
    s_add_u32 s34, s34, 0x1100000
    s_mov_b32 s{sO+2}, 0x2000000
    v_mov_b32 {t[0]}, s34
    """)
        for k in range(NST[0]):
            a(f's_sub_u32 s35, s{60+2*k}, s60')
            a(f'v_mov_b32 v{100+k}, s35')
            a(f'buffer_store_dword v{100+k}, {t[0]}, {sr(sO)}, 0 offen offset:{4*k}')
        a('v_mov_b32 v140, s96')
        a('v_mov_b32 v141, s98')
        a(f'buffer_store_dword v140, {t[0]}, {sr(sO)}, 0 offen offset:120')
        a(f'buffer_store_dword v141, {t[0]}, {sr(sO)}, 0 offen offset:124')
    return segs, ['init', 'loop', 'tail', 'epi']
```

```python
from asmlib import Asm, Ins, Label, Raw

sX, sK, sV, sW, sO = 8, 12, 16, 20, 24
sWO = 52
sWAVE, sR, sKH, sHQ, sB = 3, 4, 5, 6, 7
sT = 30
sM0K = 31
sL = 32
sFB = 33
sXG = [40, 41, 42]
sWG = [43, 44, 45]
sXo, sWo = 46, 47
sT0 = 48
sM0X, sM0W = 49, 50
sTMP = 34
vLANE = 2
def Q(j, s): return 16 + (j * 4 + s) * 4
def OKEEP(j, n): return 96 + (j * 4 + n) * 4
def S(buf, kb): return 176 + (buf * 2 + kb) * 4
def P(buf): return 192 + buf * 4
def CI(j): return 200 + 4 * j
vONES = 220
vKA = [224, 225, 226, 227]
vVA = [228 + i for i in range(8)]
vKD = [236, 237, 238, 239]
vVD = [240, 241]
vXD = [3, 4, 5, 6, 7]
vWD = [8, 9, 10, 11]
vXR = [12, 13]
vWR = [14, 15]
vE, vEP = 242, 243
vT = list(range(244, 256))
def OSEND(j, n): return (j * 4 + (n - 4)) * 4
def LS(j): return 80 + 4 * j
def KF(buf, kb, ds): return 100 + (buf * 8 + kb * 4 + ds) * 4
def VF(buf, n): return 164 + (buf * 8 + n) * 4
def QA(buf, a): return 100 + buf * 16 + a * 4
def QB(buf, j): return 132 + buf * 20 + j * 4
def QACC(j, a): return 96 + (j * 4 + a) * 4

def vr(b, n=4): return f'v[{b}:{b+n-1}]'
def ar(b, n=4): return f'a[{b}:{b+n-1}]'
def sr(b, n=4): return f's[{b}:{b+n-1}]'
def OREG(j, n): return vr(OKEEP(j, n)) if n < 4 else ar(OSEND(j, n))

MF = 'v_mfma_f32_16x16x32_bf16'
XBUF0, XBUFS = 81920, 20480
WBUF0, WBUFS = 16384, 16384
EXQ = 122880
EXF = 131072
OOB = 0x7f000000
TOUCH = True
FUSED = False
QSCALE = 0x3e0293ee

NSTAMP = [0]
def stamp(a, prof, real=False):
    if not prof: return
    k = NSTAMP[0]; NSTAMP[0] += 1
    assert k < 16
    a(f's_mem{"real" if real else ""}time s[{60+2*k}:{61+2*k}]')
    a('s_waitcnt lgkmcnt(0)')

def interleave(a, mf, fills):
    for i, m in enumerate(mf):
        a(m)
        for f in fills.get(i, []):
            a(f)

def init(a, prof):
    a(f"""
    s_cmp_ge_u32 s2, 256
    s_cbranch_scc1 L_k1_end
    s_load_dwordx2 {sr(sX,2)}, s[0:1], 0
    s_load_dwordx2 {sr(sW,2)}, s[0:1], 24
    s_load_dwordx2 {sr(sK,2)}, s[0:1], 8
    s_load_dwordx2 {sr(sV,2)}, s[0:1], 16
    s_load_dwordx2 {sr(sO,2)}, s[0:1], 56
    s_load_dwordx2 {sr(sWO,2)}, s[0:1], 32
    """)
    if FUSED:
        a('s_load_dwordx2 s[56:57], s[0:1], 40')
        a('s_load_dwordx2 s[92:93], s[0:1], 48')
        a('s_mov_b32 s58, 1474560')
        a('s_mov_b32 s59, 0x00020000')
        a('s_mov_b32 s94, 256')
        a('s_mov_b32 s95, 0x00020000')
    if prof:
        a('s_memrealtime s[96:97]')
    stamp(a, prof)
    a(f"""
    v_lshrrev_b32 v1, 6, v0
    v_and_b32 v{vLANE}, 63, v0
    s_mov_b32 s{sX+2}, 1474560
    s_mov_b32 s{sX+3}, 0x00020000
    v_readfirstlane_b32 s{sWAVE}, v1
    s_mov_b32 s{sW+2}, 4718592
    s_mov_b32 s{sW+3}, 0x00020000
    s_mov_b32 s{sK+2}, 0x4000000
    s_mov_b32 s{sK+3}, 0x00020000
    s_mov_b32 s{sV+2}, 0x4000000
    s_mov_b32 s{sV+3}, 0x00020000
    s_mov_b32 s{sO+2}, 10485760
    s_mov_b32 s{sO+3}, 0x00020000
    s_mov_b32 s{sWO+2}, 4718592
    s_mov_b32 s{sWO+3}, 0x00020000
    s_and_b32 s34, s2, 7
    s_lshr_b32 s35, s2, 3
    s_and_b32 s36, s35, 3
    s_lshl_b32 s{sHQ}, s34, 2
    s_add_u32 s{sHQ}, s{sHQ}, s36
    s_lshr_b32 s{sB}, s35, 2
    s_and_b32 s{sR}, s{sWAVE}, 1
    s_lshr_b32 s{sKH}, s{sWAVE}, 1
    s_add_u32 s37, s{sB}, s36
    s_mul_i32 s38, s37, 43
    s_lshr_b32 s38, s38, 7
    s_mul_i32 s38, s38, 3
    s_sub_u32 s37, s37, s38
    s_mul_i32 s38, s{sB}, 184320
    s_lshl_b32 s39, s{sHQ}, 8
    """)
    for G in range(3):
        a(f"""
    s_mul_i32 s34, s37, 384
    s_add_u32 s{sXG[G]}, s38, s34
    s_mul_i32 s34, s37, 0x180000
    s_add_u32 s{sWG[G]}, s39, s34
    s_add_u32 s37, s37, 1
    s_cmp_eq_u32 s37, 3
    s_cselect_b32 s37, 0, s37
    """)
    l = f'v{vLANE}'
    t0, t1, t2, t3, t4, t5 = [f'v{x}' for x in vT[:6]]
    a(f"""
    s_lshl_b32 s34, s{sWAVE}, 3
    v_lshrrev_b32 {t0}, 3, {l}
    v_add_u32 {t0}, s34, {t0}
    v_mul_u32_u24 {t0}, 1152, {t0}
    v_and_b32 {t1}, 7, {l}
    v_lshrrev_b32 {t2}, 4, {l}
    v_xor_b32 {t1}, {t1}, {t2}
    s_lshl_b32 s35, s{sR}, 2
    v_xor_b32 {t1}, s35, {t1}
    v_lshl_add_u32 v{vXD[0]}, {t1}, 4, {t0}
    """)
    for i in range(1, 5):
        a(f'v_add_u32 v{vXD[i]}, {36864*i}, v{vXD[0]}')
    a(f"""
    s_lshl_b32 s34, s{sWAVE}, 2
    v_add_u32 {t0}, s34, {t2}
    v_lshlrev_b32 {t0}, 13, {t0}
    v_and_b32 {t3}, 15, {l}
    v_lshlrev_b32 {t1}, 2, {t2}
    v_xor_b32 {t1}, {t1}, {t3}
    v_lshl_add_u32 v{vWD[0]}, {t1}, 4, {t0}
    """)
    for i in range(1, 4):
        a(f'v_add_u32 v{vWD[i]}, {131072*i}, v{vWD[0]}')
    a(f"""
    s_lshl_b32 s34, s{sWAVE}, 10
    s_add_u32 s{sM0X}, s34, {XBUF0}
    s_add_u32 s{sM0W}, s34, {WBUF0}
    s_lshr_b32 s34, s{sHQ}, 1
    s_lshl_b32 s35, s{sB}, 4
    s_add_u32 s34, s34, s35
    s_lshl_b32 s34, s34, 19
    s_lshl_b32 s35, s{sKH}, 18
    s_add_u32 s34, s34, s35
    s_lshl_b32 s35, s{sR}, 12
    s_add_u32 s{sT0}, s34, s35
    s_lshl_b32 s34, s{sKH}, 16
    s_add_u32 s{sM0K}, s34, s35
    s_mov_b32 s{sFB}, 0
    """)
    a(f"""
    v_lshlrev_b32 {t0}, 8, {t2}
    v_xor_b32 {t1}, {t3}, {t2}
    """)
    for j in range(4):
        a(f'v_xor_b32 {t4}, {4*j}, {t1}')
        a(f'v_lshl_add_u32 v{vKD[j]}, {t4}, 4, {t0}')
    a(f"""
    v_lshlrev_b32 {t4}, 1, {t2}
    v_xor_b32 {t1}, {t3}, {t4}
    """)
    for p in range(2):
        a(f'v_xor_b32 {t4}, {8*p}, {t1}')
        a(f'v_lshl_add_u32 v{vVD[p]}, {t4}, 4, {t0}')
    a('s_waitcnt lgkmcnt(0)')

def dma_x(G, within, i, buf):
    return [f's_add_u32 m0, s{sM0X}, {buf*XBUFS + 4096*i}',
            f'buffer_load_dwordx4 v{vXD[i]}, {sr(sX)}, s{sXo} offen lds']
def dma_w(G, within, i, buf):
    return [f's_add_u32 m0, s{sM0W}, {buf*WBUFS + 4096*i}',
            f'buffer_load_dwordx4 v{vWD[i]}, {sr(sW)}, s{sWo} offen lds']
def chunk_dmas(i9):
    G, w = i9 // 3, i9 % 3
    buf = i9 % 3
    pre = [f's_add_u32 s{sXo}, s{sXG[G]}, {128*w}', f's_add_u32 s{sWo}, s{sWG[G]}, {0x80000*w}']
    grp = []
    for i in range(4):
        grp.append(dma_w(G, w, i, buf))
        grp.append(dma_x(G, w, i, buf))
    grp.append(dma_x(G, w, 4, buf))
    return pre, grp

def tile_dmas(slot):
    g = []
    for j in range(4):
        pre = [f's_add_u32 m0, s{sM0K}, {slot*16384}'] if j == 0 else []
        g.append(pre + [f'buffer_load_dwordx4 v{vKD[j]}, {sr(sK)}, s{sT} offen offset:{1024*j} nt lds'])
    for j in range(4):
        pre = [f's_add_u32 m0, s{sM0K}, {slot*16384 + 8192}'] if j == 0 else []
        g.append(pre + [f'buffer_load_dwordx4 v{vVD[j&1]}, {sr(sV)}, s{sT} offen offset:{1024*j} nt lds'])
    return g

def emit_groups(a, groups):
    for g in groups:
        for k, ins in enumerate(g):
            a(ins)
            if 'm0' in ins.split(',')[0]:
                a('s_nop 0')

def init2(a):
    l = f'v{vLANE}'
    t0, t1, t2, t3, t4, t5, t6 = [f'v{x}' for x in vT[:7]]
    a(f"""
    v_lshrrev_b32 {t2}, 4, {l}
    v_and_b32 {t3}, 15, {l}
    v_lshrrev_b32 {t5}, 2, {l}
    v_and_b32 {t5}, 3, {t5}
    v_and_b32 {t6}, 3, {l}
    s_mul_i32 s34, s{sR}, 10240
    s_add_u32 s34, s34, {XBUF0}
    v_lshlrev_b32 {t0}, 7, {t3}
    v_add_u32 {t0}, s34, {t0}
    v_lshrrev_b32 {t1}, 1, {t3}
    v_xor_b32 {t4}, {t2}, {t1}
    v_lshl_add_u32 v{vXR[0]}, {t4}, 4, {t0}
    v_xor_b32 {t4}, 4, {t4}
    v_lshl_add_u32 v{vXR[1]}, {t4}, 4, {t0}
    v_lshl_add_u32 {t0}, {t2}, 3, {t5}
    v_lshlrev_b32 {t0}, 8, {t0}
    v_add_u32 {t0}, {WBUF0}, {t0}
    s_lshl_b32 s34, s{sKH}, 1
    """)
    for sp in range(2):
        a(f"""
    s_add_u32 s35, s34, {sp}
    v_xor_b32 {t1}, s35, {t5}
    v_lshl_add_u32 {t1}, {t1}, 2, {t6}
    v_lshl_add_u32 v{vWR[sp]}, {t1}, 4, {t0}
    """)
    a(f"""
    s_lshl_b32 s35, s{sKH}, 16
    v_lshlrev_b32 {t0}, 8, {t3}
    v_add_u32 {t0}, s35, {t0}
    """)
    for sp in range(4):
        a(f"""
    s_xor_b32 s36, s34, {sp}
    s_lshl_b32 s36, s36, 2
    v_add_u32 {t1}, s36, {t2}
    v_xor_b32 {t1}, {t1}, {t3}
    v_lshl_add_u32 v{vKA[sp]}, {t1}, 4, {t0}
    """)
    a(f"""
    v_lshl_add_u32 {t0}, {t2}, 2, {t5}
    v_lshlrev_b32 {t0}, 8, {t0}
    s_add_u32 s35, s35, 8192
    v_add_u32 {t0}, s35, {t0}
    v_and_b32 {t1}, 1, {t6}
    v_lshl_add_u32 {t0}, {t1}, 3, {t0}
    v_lshrrev_b32 {t1}, 1, {t6}
    v_lshl_add_u32 {t0}, {t1}, 4, {t0}
    v_and_b32 {t1}, 1, {t2}
    v_lshl_add_u32 {t1}, {t1}, 2, {t5}
    s_lshl_b32 s36, s{sKH}, 2
    """)
    for n in range(8):
        a(f"""
    s_xor_b32 s37, s36, {n}
    v_xor_b32 {t4}, s37, {t1}
    v_lshl_add_u32 v{vVA[n]}, {t4}, 5, {t0}
    """)
    a(f"""
    s_mul_i32 s34, s{sWAVE}, 10240
    s_add_u32 s34, s34, {EXQ}
    v_lshlrev_b32 {t0}, 4, {l}
    v_add_u32 v{vE}, s34, {t0}
    s_xor_b32 s35, s{sWAVE}, 2
    s_mul_i32 s35, s35, 10240
    s_add_u32 s35, s35, {EXQ}
    v_add_u32 v{vEP}, s35, {t0}
    """)
    zero_acc(a, keep=False)
    for i in range(4):
        a(f'v_mov_b32 v{vONES+i}, 0x3f803f80')
    for j in range(5):
        for i in range(4):
            a(f'v_mov_b32 v{CI(j)+i}, 0')

def zero_acc(a, keep=True):
    for i in range(100):
        a(f'v_accvgpr_write_b32 a{i}, 0')
    for i in range(32):
        a(f'v_accvgpr_write_b32 a{VF(1,0)+i}, 0')
    for i in range(4):
        a(f'v_mov_b32 v{P(1)+i}, 0')
    if keep:
        for i in range(80):
            a(f'v_mov_b32 v{96+i}, 0')

def qfrag_reads(u):
    i9, ks = u // 2, u % 2
    buf, fb = i9 % 3, u % 2
    r = []
    for j in range(5):
        r.append(f'ds_read_b128 {ar(QB(fb, j))}, v{vXR[ks]} offset:{XBUFS*buf + 2048*j}')
    for sp in range(2):
        for t in range(2):
            for h in range(2):
                r.append(f'ds_read_b64_tr_b16 {ar(QA(fb, 2*sp+t)+2*h, 2)}, v{vWR[sp]} offset:{WBUFS*buf + 8192*ks + 1024*h + 8*t}')
    A = r[5:]; B = r[:5]
    return [A[0], A[1], B[0], B[1], B[2], B[3], B[4]] + A[2:]

def qproj(a, prof):
    for i9 in range(3):
        pre, grp = chunk_dmas(i9)
        for p in pre: a(p)
        emit_groups(a, grp)
    a(f's_mov_b32 s{sT}, s{sT0}')
    emit_groups(a, tile_dmas(0))
    a(f's_add_u32 s{sT}, s{sT}, 8192')
    stamp(a, prof)
    init2(a)
    stamp(a, prof)
    a('s_waitcnt vmcnt(26)')
    stamp(a, prof)
    a('s_barrier')
    stamp(a, prof)
    for r in qfrag_reads(0): a(r)
    vm_at = {1: 17, 3: 17, 5: 9, 7: 9, 9: 9, 11: 9, 13: 9, 15: 8}
    pend = []
    for u in range(18):
        fb = u % 2
        if u % 2 == 1:
            if u in vm_at: a(f's_waitcnt vmcnt({vm_at[u]}) lgkmcnt(0)')
            else: a('s_waitcnt lgkmcnt(0)')
            a('s_barrier')
            if u in (1, 9, 17): stamp(a, prof)
            c = u // 2
            assert not pend
            if c + 3 <= 8:
                pre, grp = chunk_dmas(c + 3)
                pend = [pre + grp[0]] + grp[1:]
            elif c + 3 == 9:
                pend = tile_dmas(1) + [[f's_add_u32 s{sT}, s{sT}, 8192']]
            elif c + 3 == 10:
                pend = tile_dmas(2) + [[f's_add_u32 s{sT}, s{sT}, 8192']]
        else:
            a('s_waitcnt lgkmcnt(0)')
        mf = []
        for t in range(4):
            for j in range(5):
                c_ = '0' if u == 0 else vr(QACC(j, t))
                mf.append(f'{MF} {vr(QACC(j,t))}, {ar(QA(fb,t))}, {ar(QB(fb,j))}, {c_}')
        fills = {}
        reads = qfrag_reads(u + 1) if u < 17 else []
        g = 0
        while reads:
            fills.setdefault(g, []).extend(reads[:2]); reads = reads[2:]; g += 1
        g = 7
        nmax = 6 if u % 2 == 1 else 99
        cnt = 0
        while pend and g < 19 and cnt < nmax:
            grp = pend.pop(0)
            fills.setdefault(g, []).extend(grp[:-1])
            if grp[-1].startswith('buffer'):
                fills.setdefault(g + 1, []).append(grp[-1])
                g += 2
            else:
                fills[g].append(grp[-1]); g += 1
            cnt += 1
        if u % 2 == 0: assert not pend, (u, pend)
        interleave(a, mf, fills)
    assert not pend

def qfin(a, prof):
    stamp(a, prof)
    a(f's_mov_b32 s34, {hex(QSCALE)}')
    a('s_nop 7')
    for j in range(5):
        for t in range(4):
            for i in range(4):
                a(f'v_mul_f32 v{QACC(j,t)+i}, s34, v{QACC(j,t)+i}')
        for sp in range(2):
            for t in range(2):
                b = QACC(j, 2*sp + t)
                a(f'v_cvt_pk_bf16_f32 v{Q(j,sp)+2*t}, v{b}, v{b+1}')
                a(f'v_cvt_pk_bf16_f32 v{Q(j,sp)+2*t+1}, v{b+2}, v{b+3}')
        for sp in range(2):
            a(f'ds_write_b128 v{vE}, {vr(Q(j,sp))} offset:{(j*2+sp)*1024}')
    for i in range(80):
        a(f'v_mov_b32 v{96+i}, 0')
    a('s_waitcnt lgkmcnt(0)')
    a('s_barrier')
    for j in range(5):
        for sp in range(2):
            a(f'ds_read_b128 {vr(Q(j,2+sp))}, v{vEP} offset:{(j*2+sp)*1024}')

def k_reads(buf, slot):
    return [f'ds_read_b128 {ar(KF(buf,kb,ds))}, v{vKA[ds]} offset:{slot*16384 + kb*4096}' for kb in range(2) for ds in range(4)]
def v_reads(buf, slot):
    return [f'ds_read_b64_tr_b16 {ar(VF(buf,n)+2*h, 2)}, v{vVA[n]} offset:{slot*16384 + h*4096}' for n in range(8) for h in range(2)]
def qk_mf(j, kbuf, sbuf, cinit=True):
    m = []
    for kb in range(2):
        for ds in range(4):
            c = (vr(CI(j)) if cinit else '0') if ds == 0 else vr(S(sbuf, kb))
            m.append(f'{MF} {vr(S(sbuf,kb))}, {ar(KF(kbuf,kb,ds))}, {vr(Q(j,ds))}, {c}')
    return m
def pv_mf(j, vbuf, pbuf):
    m = [f'{MF} {ar(LS(j))}, {vr(vONES)}, {vr(P(pbuf))}, {ar(LS(j))}']
    for n in range(8):
        m.append(f'{MF} {OREG(j,n)}, {ar(VF(vbuf,n))}, {vr(P(pbuf))}, {OREG(j,n)}')
    return m

def pre_loop(a, prof):
    a.label('L_attn0')
    for r in k_reads(0, 0) + v_reads(0, 0): a(r)
    a('s_waitcnt vmcnt(8) lgkmcnt(0)')
    a('s_barrier')
    stamp(a, prof)
    mf = qk_mf(0, 0, 0)
    kr = k_reads(1, 1)
    td = tile_dmas(3)
    fills = {}
    for i in range(8):
        fills[i] = [kr[i]]
    interleave(a, mf, fills)
    emit_groups(a, td)
    a(f's_add_u32 s{sT}, s{sT}, 8192')
    a(f's_mov_b32 s{sL}, 0')
    if TOUCH:
        a(f's_lshl_b32 s34, s2, 2')
        a(f's_add_u32 s34, s34, s{sWAVE}')
        a(f's_mul_i32 s34, s34, 4608')
        a(f's_mul_i32 s35, s{sWAVE}, 5120')
        a(f's_add_u32 m0, s35, 131072')
        a(f'v_lshlrev_b32 v{vT[0]}, 4, v{vLANE}')
        for k in range(4):
            a(f'buffer_load_dwordx4 v{vT[0]}, {sr(sWO)}, s34 offen offset:{1024*k} lds')
        a(f's_add_u32 s34, s34, 4096 - 3072')
        a(f's_add_u32 m0, m0, 1024')
        a('s_nop 0')
        a(f'buffer_load_dwordx4 v{vT[0]}, {sr(sWO)}, s34 offen offset:3072 lds')

def step(a, t):
    td = tile_dmas(t % 4)
    vreads = v_reads((t + 1) & 1, (t + 1) % 4)
    kreads = k_reads(t & 1, (t + 2) % 4)
    for j in range(5):
        pn = (t + j) & 1
        if j < 4: qk = qk_mf(j + 1, t & 1, (pn + 1) & 1)
        else: qk = qk_mf(0, (t + 1) & 1, (pn + 1) & 1)
        if j == 0: pv = pv_mf(4, (t - 1) & 1, (pn + 1) & 1)
        else: pv = pv_mf(j - 1, t & 1, (pn + 1) & 1)
        mf = qk + pv
        fills = {g: [] for g in range(17)}
        for e in range(8):
            reg = S(pn, e // 4) + (e % 4)
            fills[2 * e].append(f'v_exp_f32 v{reg}, v{reg}')
        cv = []
        for c in range(4):
            b = S(pn, c // 2) + 2 * (c % 2)
            cv.append(f'v_cvt_pk_bf16_f32 v{P(pn)+c}, v{b}, v{b+1}')
        free2 = [1, 5, 9, 13, 16]
        free1 = [3, 7, 11, 15]
        rd = []
        if j in (1, 2): rd = [vreads.pop(0) for _ in range(6)]
        elif j == 3: rd = [vreads.pop(0) for _ in range(4)]
        elif j == 4: rd = list(kreads)
        order = [(1, 2), (3, 1), (5, 2), (7, 1), (9, 2)]
        for g, k in order:
            for _ in range(k):
                if rd: fills[g].append(rd.pop(0))
        assert not rd
        for c, g in enumerate(free1):
            fills[g].append(cv[c])
        if j < 4:
            d0 = td[2 * j]; d1 = td[2 * j + 1]
            if len(d0) == 2:
                fills[11].append(d0[0])
            gA, gB = (13, 16) if j < 3 else (9, 13)
            fills[gA].append(d0[-1]); fills[gB].append(d1[-1])
        if j == 3:
            fills[16] += ['s_waitcnt vmcnt(16) lgkmcnt(0)', 's_barrier']
        if j == 4:
            fills[13].append(f's_add_u32 s{sT}, s{sT}, 8192')
        interleave(a, mf, fills)

def loop(a):
    a.label('L_loop')
    for t in range(4): step(a, t)
    a(f"""
    s_add_u32 s{sL}, s{sL}, 1
    s_cmp_eq_u32 s{sL}, 7
    s_cselect_b32 s{sT}, {hex(OOB)}, s{sT}
    s_cmp_lt_u32 s{sL}, 8
    s_cbranch_scc1 L_loop
    """)

def final_pv(a):
    for m in pv_mf(4, 1, 1): a(m)

def epilogue(a, prof):
    t = [f'v{x}' for x in vT]
    l = f'v{vLANE}'
    stamp(a, prof)
    a('s_nop 7')
    for j in range(5):
        a(f'v_accvgpr_read_b32 {t[j]}, a{LS(j)}')
    a(f"""
    v_mov_b32 {t[5]}, 0x33800000
    v_mov_b32 {t[6]}, 0x4e800000
    s_mov_b64 s[36:37], 0
    """)
    for j in range(5):
        a(f'v_cmp_nge_f32 vcc, {t[j]}, {t[5]}')
        a(f's_or_b64 s[36:37], s[36:37], vcc')
        a(f'v_cmp_nle_f32 vcc, {t[j]}, {t[6]}')
        a(f's_or_b64 s[36:37], s[36:37], vcc')
    a(f"""
    s_cmp_lg_u64 s[36:37], 0
    s_cselect_b32 s38, 1, 0
    v_mov_b32 {t[5]}, s38
    s_lshl_b32 s34, s{sWAVE}, 2
    s_add_u32 s34, s34, {EXF}
    v_mov_b32 {t[6]}, s34
    ds_write_b32 {t[6]}, {t[5]}
    s_mul_i32 s34, s{sWAVE}, 1280
    s_add_u32 s34, s34, {EXF+256}
    v_lshlrev_b32 {t[7]}, 2, {l}
    v_add_u32 {t[6]}, s34, {t[7]}
    """)
    for j in range(5):
        a(f'ds_write_b32 {t[6]}, {t[j]} offset:{256*j}')
    a(f"""
    s_xor_b32 s35, s{sWAVE}, 2
    s_mul_i32 s34, s35, 1280
    s_add_u32 s34, s34, {EXF+256}
    v_add_u32 {t[7]}, s34, {t[7]}
    v_mov_b32 {t[8]}, {EXF}
    s_waitcnt vmcnt(0) lgkmcnt(0)
    s_barrier
    ds_read_b128 v[{S(0,0)}:{S(0,0)+3}], {t[8]}
    """)
    for j in range(5):
        a(f'ds_read_b32 v{S(1,0)+j}, {t[7]} offset:{256*j}')
    a(f"""
    s_mul_i32 s34, s{sWAVE}, 20480
    v_lshlrev_b32 {t[9]}, 4, {l}
    v_add_u32 {t[6]}, s34, {t[9]}
    s_mul_i32 s34, s35, 20480
    v_add_u32 {t[7]}, s34, {t[9]}
    """)
    for j in range(5):
        for n in range(4):
            a(f'ds_write_b128 {t[6]}, {ar(OSEND(j,4+n))} offset:{(j*4+n)*1024}')
        if j == 0:
            a('s_waitcnt lgkmcnt(4)')
            b = S(0, 0)
            a(f"""
    v_or_b32 v{b}, v{b}, v{b+1}
    v_or3_b32 v{b}, v{b}, v{b+2}, v{b+3}
    s_nop 0
    v_readfirstlane_b32 s38, v{b}
    s_xor_b32 s39, s{sFB}, 1
    s_and_b32 s38, s38, s39
    s_cmp_lg_u32 s38, 0
    s_cbranch_scc1 L_fallback
    """)
            for jj in range(5):
                a(f'v_add_f32 {t[jj]}, {t[jj]}, v{S(1,0)+jj}')
            for jj in range(5):
                a(f'v_rcp_f32 {t[jj]}, {t[jj]}')
    a('s_waitcnt lgkmcnt(0)')
    a('s_barrier')
    for j in range(5):
        for n in range(4):
            a(f'ds_read_b128 {vr(Q(j,n))}, {t[7]} offset:{(j*4+n)*1024}')
    a(f"""
    s_mul_i32 s34, s{sB}, 10
    s_mul_i32 s35, s{sR}, 5
    s_add_u32 s34, s34, s35
    s_lshl_b32 s34, s34, 7
    s_lshl_b32 s35, s{sHQ}, 2
    s_add_u32 s34, s34, s35
    s_lshl_b32 s35, s{sKH}, 1
    s_add_u32 s34, s34, s35
    s_lshl_b32 s34, s34, 10
    """)
    for j in range(5):
        a(f's_waitcnt lgkmcnt({min(12, 16-4*j)})')
        for n in range(4):
            for i in range(4):
                a(f'v_add_f32 v{OKEEP(j,n)+i}, v{OKEEP(j,n)+i}, v{Q(j,n)+i}')
        for n in range(4):
            for i in range(4):
                a(f'v_mul_f32 v{OKEEP(j,n)+i}, {t[j]}, v{OKEEP(j,n)+i}')
        for u in range(2):
            for hh in range(2):
                b = OKEEP(j, 2*u + hh)
                a(f'v_cvt_pk_bf16_f32 v{Q(j,u)+2*hh}, v{b}, v{b+1}')
                a(f'v_cvt_pk_bf16_f32 v{Q(j,u)+2*hh+1}, v{b+2}, v{b+3}')
        if j > 0: a(f's_add_u32 s34, s34, {128*1024}')
        for u in range(2):
            a(f'buffer_store_dwordx4 {vr(Q(j,u))}, {t[9]}, {sr(sO)}, s34 offen offset:{1024*u}' + (' sc1' if FUSED else ''))
    if FUSED:
        import tail
        tail.gen_tail(a, prof)
    elif prof:
        a('s_waitcnt vmcnt(0)')
        stamp(a, prof)
        dump_stamps(a, t[0])
    a('s_branch L_k1_end')

def dump_stamps(a, tv):
    if True:
        a('s_memrealtime s[98:99]')
        a('s_waitcnt lgkmcnt(0)')
        a(f"""
    s_lshl_b32 s34, s2, 2
    s_add_u32 s34, s34, s{sWAVE}
    s_lshl_b32 s34, s34, 7
    s_add_u32 s34, s34, 0x1000000
    s_mov_b32 s{sO+2}, 0x2000000
    v_mov_b32 {tv}, s34
    """)
        for k in range(NSTAMP[0]):
            a(f's_sub_u32 s35, s{60+2*k}, s60')
            a(f'v_mov_b32 v{200+k}, s35')
            a(f'buffer_store_dword v{200+k}, {tv}, {sr(sO)}, 0 offen offset:{4*k}')
        a('v_mov_b32 v230, s96')
        a('v_mov_b32 v231, s98')
        a(f'buffer_store_dword v230, {tv}, {sr(sO)}, 0 offen offset:120')
        a(f'buffer_store_dword v231, {tv}, {sr(sO)}, 0 offen offset:124')

def fallback(a):
    t = [f'v{x}' for x in vT]
    l = f'v{vLANE}'
    a.label('L_fallback')
    a('s_waitcnt vmcnt(0) lgkmcnt(0)')
    a('s_barrier')
    for j in range(5):
        a(f'v_mov_b32 {t[j]}, 0xff800000')
    a(f's_mov_b32 s{sT}, s{sT0}')
    a(f's_mov_b32 s{sL}, 0')
    a.label('L_fb_loop')
    a(f's_mov_b32 m0, s{sM0K}')
    a('s_nop 0')
    for j in range(4):
        a(f'buffer_load_dwordx4 v{vKD[j]}, {sr(sK)}, s{sT} offen offset:{1024*j} lds')
    a('s_waitcnt vmcnt(0)')
    a('s_barrier')
    for r in k_reads(0, 0): a(r)
    a('s_waitcnt lgkmcnt(0)')
    a('s_barrier')
    for j in range(5):
        for m in qk_mf(j, 0, 0, cinit=False): a(m)
        a('s_nop 7')
        b0, b1 = S(0, 0), S(0, 1)
        a(f'v_max3_f32 {t[j]}, {t[j]}, v{b0}, v{b0+1}')
        a(f'v_max3_f32 {t[j]}, {t[j]}, v{b0+2}, v{b0+3}')
        a(f'v_max3_f32 {t[j]}, {t[j]}, v{b1}, v{b1+1}')
        a(f'v_max3_f32 {t[j]}, {t[j]}, v{b1+2}, v{b1+3}')
    a(f"""
    s_add_u32 s{sT}, s{sT}, 8192
    s_add_u32 s{sL}, s{sL}, 1
    s_cmp_lt_u32 s{sL}, 32
    s_cbranch_scc1 L_fb_loop
    """)
    a(f"""
    s_mul_i32 s34, s{sWAVE}, 1280
    s_add_u32 s34, s34, {EXF}
    v_lshlrev_b32 {t[7]}, 2, {l}
    v_add_u32 {t[6]}, s34, {t[7]}
    """)
    for j in range(5):
        a(f'ds_write_b32 {t[6]}, {t[j]} offset:{256*j}')
    a(f"""
    s_waitcnt lgkmcnt(0)
    s_barrier
    v_and_b32 {t[7]}, 15, {l}
    v_lshlrev_b32 {t[7]}, 2, {t[7]}
    s_mul_i32 s34, s{sR}, 1280
    s_add_u32 s34, s34, {EXF}
    v_add_u32 {t[7]}, s34, {t[7]}
    """)
    for j in range(5):
        regs = [S(0,0)+i for i in range(8)]
        k = 0
        for kh in range(2):
            for g in range(4):
                a(f'ds_read_b32 v{regs[k]}, {t[7]} offset:{kh*2560 + j*256 + g*64}')
                k += 1
        a('s_waitcnt lgkmcnt(0)')
        a(f'v_max3_f32 {t[8]}, v{regs[0]}, v{regs[1]}, v{regs[2]}')
        a(f'v_max3_f32 {t[8]}, {t[8]}, v{regs[3]}, v{regs[4]}')
        a(f'v_max3_f32 {t[8]}, {t[8]}, v{regs[5]}, v{regs[6]}')
        a(f'v_max_f32 {t[8]}, {t[8]}, v{regs[7]}')
        for i in range(4):
            a(f'v_sub_f32 v{CI(j)+i}, 0, {t[8]}')
    zero_acc(a, keep=True)
    a(f's_mov_b32 s{sFB}, 1')
    a(f's_mov_b32 s{sT}, s{sT0}')
    a('s_barrier')
    for slot in range(3):
        emit_groups(a, tile_dmas(slot))
        a(f's_add_u32 s{sT}, s{sT}, 8192')
    a('s_waitcnt vmcnt(16)')
    a('s_barrier')
    a('s_branch L_attn0')

def gen_k1(prof=False):
    NSTAMP[0] = 0
    segs = {}
    def seg(name, f, *args):
        x = Asm(); f(x, *args); segs[name] = x; return x
    seg('init', init, prof)
    seg('qproj', qproj, prof)
    seg('qfin', qfin, prof)
    seg('pre', pre_loop, prof)
    seg('loop', loop)
    seg('fin', final_pv)
    seg('epi', epilogue, prof)
    seg('fb', fallback)
    order = ['init', 'qproj', 'qfin', 'pre', 'loop', 'fin', 'epi', 'fb']
    return segs, order
```

```python
from asmlib import Asm
import k1
from k1 import vr, ar, sr, MF, sWAVE, sB, sO, sWO, vLANE, stamp
sOUT, sDBG = 56, 92
sMT, sNT, sA, sBo, sM0 = 40, 41, 42, 43, 44
X = 10
DO = 7
NWG = 243
SLOT = 4096
def ACC(nb, mb): return 16 + (nb * 3 + mb) * 4
def OR(slot, mb): return 64 + (slot * 3 + mb) * 4
def AF(buf, nb): return 148 + (buf * 4 + nb) * 4
vWO = [180, 181, 182, 183]; vO = [184, 185, 186]; vRD = [188, 189, 190, 191]
T = [192, 193, 194, 195, 196, 197]

def tile_init(a):
    t = [f'v{x}' for x in T]
    l = f'v{vLANE}'
    a(f"""
    s_and_b32 s34, s2, 7
    s_lshr_b32 s35, s2, 3
    s_mul_i32 s36, s34, 30
    s_min_u32 s37, s34, 3
    s_add_u32 s36, s36, s37
    s_add_u32 s36, s36, s35
    s_mul_i32 s37, s36, 811
    s_lshr_b32 s37, s37, 16
    s_mul_i32 s38, s37, 81
    s_sub_u32 s38, s36, s38
    s_mul_i32 s39, s38, 171
    s_lshr_b32 s{sMT}, s39, 9
    s_mul_i32 s39, s{sMT}, 3
    s_sub_u32 s39, s38, s39
    s_mul_i32 s37, s37, 3
    s_add_u32 s{sNT}, s37, s39
    s_mul_i32 s34, s{sMT}, {3*131072}
    s_lshl_b32 s35, s{sWAVE}, 15
    s_add_u32 s{sA}, s34, s35
    s_mul_i32 s{sBo}, s{sWAVE}, 1179648
    s_mul_i32 s{sM0}, s{sWAVE}, {X*SLOT}
    v_lshlrev_b32 {t[0]}, 4, {l}
    v_mov_b32 v{vO[0]}, {t[0]}
    v_add_u32 v{vO[1]}, 131072, {t[0]}
    v_add_u32 v{vO[2]}, 262144, {t[0]}
    s_lshl_b32 s34, s{sNT}, 7
    v_lshrrev_b32 {t[0]}, 3, {l}
    v_mul_u32_u24 {t[0]}, 1152, {t[0]}
    v_add_u32 {t[0]}, s34, {t[0]}
    v_lshrrev_b32 {t[1]}, 4, {l}
    v_lshlrev_b32 {t[1]}, 1, {t[1]}
    v_and_b32 {t[2]}, 7, {l}
    v_xor_b32 {t[1]}, {t[1]}, {t[2]}
    v_lshl_add_u32 v{vWO[0]}, {t[1]}, 4, {t[0]}
    """)
    for p in range(1, 4):
        a(f'v_add_u32 v{vWO[p]}, {p*(8*1152-1024)}, v{vWO[0]}')
    a(f"""
    v_lshrrev_b32 {t[0]}, 4, {l}
    v_lshrrev_b32 {t[1]}, 2, {l}
    v_and_b32 {t[1]}, 3, {t[1]}
    v_lshl_add_u32 {t[0]}, {t[0]}, 2, {t[1]}
    v_lshrrev_b32 {t[1]}, 1, {t[0]}
    v_and_b32 {t[1]}, 3, {t[1]}
    v_lshlrev_b32 {t[0]}, 7, {t[0]}
    v_add_u32 {t[0]}, s{sM0}, {t[0]}
    v_and_b32 {t[2]}, 1, {l}
    v_lshl_add_u32 {t[0]}, {t[2]}, 3, {t[0]}
    v_lshrrev_b32 {t[2]}, 1, {l}
    v_and_b32 {t[2]}, 1, {t[2]}
    v_lshl_add_u32 {t[0]}, {t[2]}, 4, {t[0]}
    """)
    for nb in range(4):
        a(f'v_xor_b32 {t[2]}, {nb}, {t[1]}')
        a(f'v_lshl_add_u32 v{vRD[nb]}, {t[2]}, 5, {t[0]}')

class VQ:
    def __init__(self): self.q = []
    def add(self, tag): self.q.append(tag)
    def need(self, tags):
        last = -1
        for i, t in enumerate(self.q):
            if t in tags: last = i
        n = len(self.q) - 1 - last
        self.q = self.q[last + 1:]
        return n

def w_ops(k):
    slot = k % X
    return ([f's_add_u32 m0, s{sM0}, {slot*SLOT}'],
            [f'buffer_load_dwordx4 v{vWO[p]}, {sr(sWO)}, s{sBo} offen offset:{1024*p} lds' for p in range(4)],
            [f's_add_u32 s{sBo}, s{sBo}, 36864'])
def o_ops(k):
    slot = k % DO
    return ([f'buffer_load_dwordx4 {vr(OR(slot,mb))}, v{vO[mb]}, {sr(sO)}, s{sA} offen sc1' for mb in range(3)],
            [f's_add_u32 s{sA}, s{sA}, 1024'])
def areads(k):
    slot = k % X
    return [f'ds_read_b64_tr_b16 {vr(AF(k&1,nb)+2*h,2)}, v{vRD[nb]} offset:{slot*SLOT + h*2048}' for nb in range(4) for h in range(2)]

def gen_tail(a, prof):
    t = [f'v{x}' for x in T]
    l = f'v{vLANE}'
    tile_init(a)
    a('s_waitcnt vmcnt(0)')
    a('s_barrier')
    stamp(a, prof)
    a(f"""
    s_cmp_lg_u32 s{sWAVE}, 0
    s_cbranch_scc1 L_t_nosig
    s_lshl_b32 s34, s{sB}, 5
    v_mov_b32 {t[0]}, s34
    v_mov_b32 {t[1]}, 1
    s_mov_b64 exec, 1
    buffer_atomic_add {t[1]}, {t[0]}, {sr(sDBG)}, 0 offen sc1
    s_mov_b64 exec, -1
    """)
    a.label('L_t_nosig')
    a(f"""
    s_cmp_ge_u32 s2, {NWG}
    s_cbranch_scc1 L_k1_end
    """)
    q = VQ()
    for k in range(X):
        pre, d, post = w_ops(k)
        a(pre[0]); a('s_nop 0')
        for x in d: a(x); q.add(('W', k))
        a(post[0])
    for i in range(48): a(f'v_mov_b32 v{16+i}, 0')
    a(f"""
    s_cmp_lg_u32 s{sWAVE}, 0
    s_cbranch_scc1 L_t_nopoll
    s_mul_i32 s34, s{sMT}, 48
    s_mul_i32 s35, s34, 52429
    s_lshr_b32 s35, s35, 23
    s_add_u32 s34, s34, 47
    s_min_u32 s34, s34, 1279
    s_mul_i32 s36, s34, 52429
    s_lshr_b32 s36, s36, 23
    s_lshl_b32 s35, s35, 5
    s_lshl_b32 s36, s36, 5
    v_mov_b32 {t[0]}, s35
    v_mov_b32 {t[1]}, s36
    s_mov_b32 s37, 0
    """)
    a.label('L_t_poll')
    a(f"""
    buffer_load_dword {t[2]}, {t[0]}, {sr(sDBG)}, 0 offen sc1
    buffer_load_dword {t[3]}, {t[1]}, {sr(sDBG)}, 0 offen sc1
    s_add_u32 s37, s37, 1
    s_waitcnt vmcnt(0)
    v_min_u32 {t[2]}, {t[2]}, {t[3]}
    s_cmp_gt_u32 s37, 0x40000
    s_cbranch_scc1 L_t_nopoll
    v_readfirstlane_b32 s38, {t[2]}
    s_cmp_lt_u32 s38, 32
    s_cbranch_scc1 L_t_poll
    """)
    a.label('L_t_nopoll')
    a('s_barrier')
    stamp(a, prof)
    for k in range(DO):
        ld, post = o_ops(k)
        for x in ld: a(x); q.add(('O', k))
        a(post[0])
    n = q.need([('W', 0)])
    a(f's_waitcnt vmcnt({n})')
    for x in areads(0): a(x)
    for u in range(32):
        need = [('O', u)] + ([('W', u + 1)] if u + 1 < 32 else [])
        n = q.need(need)
        a(f's_waitcnt vmcnt({min(n, 63)}) lgkmcnt(0)')
        rd = areads(u + 1) if u + 1 < 32 else []
        mf = [f'{MF} {vr(ACC(nb,mb))}, {vr(AF(u&1,nb))}, {vr(OR(u%DO,mb))}, {vr(ACC(nb,mb))}' for mb in range(3) for nb in range(4)]
        fills = {0: rd[0:2], 1: rd[2:4], 2: rd[4:6], 3: rd[6:8]}
        tags = {}
        if u + X < 32:
            pre, d, post = w_ops(u + X)
            fills[3] = fills[3] + pre
            fills[4] = [d[0]]; fills[5] = [d[1]]; fills[6] = [d[2]]; fills[7] = [d[3]] + post
        if u + DO < 32:
            ld, post2 = o_ops(u + DO)
            fills.setdefault(5, []).append(ld[0]); fills.setdefault(8, []).append(ld[1]); fills.setdefault(11, []).extend([ld[2]] + post2)
        for i, m in enumerate(mf):
            a(m)
            for f in fills.get(i, []):
                a(f)
                if f.startswith('buffer_load'):
                    q.add(('W', u + X) if ' lds' in f else ('O', u + DO))
    stamp(a, prof)
    a(f"""
    s_barrier
    s_mul_i32 s34, s{sWAVE}, 12288
    v_lshlrev_b32 {t[0]}, 4, {l}
    v_add_u32 {t[1]}, s34, {t[0]}
    s_lshl_b32 s34, s{sWAVE}, 10
    v_add_u32 {t[4]}, s34, {t[0]}
    s_nop 3
    """)
    for nb in range(4):
        for mb in range(3):
            a(f'ds_write_b128 {t[1]}, {vr(ACC(nb,mb))} offset:{(mb*4+nb)*1024}')
    a(f"""
    s_waitcnt lgkmcnt(0)
    s_barrier
    """)
    for w in range(4):
        for mb in range(3):
            a(f'ds_read_b128 {vr(64 + (w*3+mb)*4)}, {t[4]} offset:{w*12288 + mb*4096}')
    a(f"""
    s_mul_i32 s34, s{sMT}, {48*1152}
    s_lshl_b32 s35, s{sNT}, 7
    s_add_u32 s34, s34, s35
    s_lshl_b32 s35, s{sWAVE}, 5
    s_add_u32 s34, s34, s35
    v_and_b32 {t[2]}, 15, {l}
    v_mul_u32_u24 {t[2]}, 1152, {t[2]}
    v_lshrrev_b32 {t[3]}, 4, {l}
    v_lshl_add_u32 {t[2]}, {t[3]}, 3, {t[2]}
    s_waitcnt lgkmcnt(0)
    """)
    for mb in range(3):
        for i in range(4):
            r0 = 64 + mb * 4 + i
            a(f'v_add_f32 v{r0}, v{r0}, v{r0+12}')
            a(f'v_add_f32 v{r0+24}, v{r0+24}, v{r0+36}')
            a(f'v_add_f32 v{r0}, v{r0}, v{r0+24}')
        b = 64 + mb * 4
        a(f'v_cvt_pk_bf16_f32 v{16+2*mb}, v{b}, v{b+1}')
        a(f'v_cvt_pk_bf16_f32 v{17+2*mb}, v{b+2}, v{b+3}')
        a(f'buffer_store_dwordx2 {vr(16+2*mb,2)}, {t[2]}, {sr(sOUT)}, s34 offen')
        if mb < 2: a(f's_add_u32 s34, s34, {16*1152}')
    if prof:
        a('s_waitcnt vmcnt(0)')
        stamp(a, prof)
        k1.dump_stamps(a, t[0])
```

```python
from asmlib import Asm, Ins, Label, Raw

sX, sK, sV, sW, sO = 8, 12, 16, 20, 24
sWO = 52
sWAVE, sR, sKH, sHQ, sB = 3, 4, 5, 6, 7
sT = 30
sM0K = 31
sL = 32
sFB = 33
sXG = [40, 41, 42]
sWG = [43, 44, 45]
sXo, sWo = 46, 47
sT0 = 48
sM0X, sM0W = 49, 50
sTW = 51
vTCH = 255
sTMP = 34
vLANE = 2
def Q(j, s): return 16 + (j * 4 + s) * 4
def OKEEP(j, n): return 96 + (j * 4 + n) * 4
def S(buf, kb): return 176 + (buf * 2 + kb) * 4
def P(buf): return 192 + buf * 4
def CI(j): return 200 + 4 * j
vONES = 220
vKA = [224, 225, 226, 227]
vVA = [228 + i for i in range(8)]
vKD = [236, 237, 238, 239]
vVD = [240, 241]
vXD = [3, 4, 5, 6, 7]
vWD = [8, 9, 10, 11]
vXR = [12, 13]
vWR = [14, 15]
vE, vEP = 242, 243
vT = list(range(244, 256))
def OSEND(j, n): return (j * 4 + (n - 4)) * 4
def LS(j): return 80 + 4 * j
def KF(buf, kb, ds): return 100 + (buf * 8 + kb * 4 + ds) * 4
def VF(buf, n): return 164 + (buf * 8 + n) * 4
def QA(buf, a): return 100 + buf * 16 + a * 4
def QB(buf, j): return 132 + buf * 20 + j * 4
def QACC(j, a): return 96 + (j * 4 + a) * 4

def vr(b, n=4): return f'v[{b}:{b+n-1}]'
def ar(b, n=4): return f'a[{b}:{b+n-1}]'
def sr(b, n=4): return f's[{b}:{b+n-1}]'
def OREG(j, n): return vr(OKEEP(j, n)) if n < 4 else ar(OSEND(j, n))

MF = 'v_mfma_f32_16x16x32_bf16'
XBUF0, XBUFS = 81920, 20480
WBUF0, WBUFS = 16384, 16384
EXQ = 122880
EXF = 131072
OOB = 0x7f000000
TOUCH_LDS = 143360
import os
FILL0 = int(os.environ.get('FILL0', 9))
TOUCH = os.environ.get("NOTOUCH") is None
FUSED = False
QSCALE = 0x3e0293ee

NSTAMP = [0]
def stamp(a, prof, real=False):
    if not prof: return
    k = NSTAMP[0]; NSTAMP[0] += 1
    assert k < 16
    a(f's_mem{"real" if real else ""}time s[{60+2*k}:{61+2*k}]')
    a('s_waitcnt lgkmcnt(0)')

def interleave(a, mf, fills):
    for i, m in enumerate(mf):
        a(m)
        for f in fills.get(i, []):
            a(f)

def init(a, prof):
    a(f"""
    s_cmp_ge_u32 s2, 256
    s_cbranch_scc1 L_k1_end
    s_load_dwordx2 {sr(sX,2)}, s[0:1], 0
    s_load_dwordx2 {sr(sW,2)}, s[0:1], 24
    s_load_dwordx2 {sr(sK,2)}, s[0:1], 8
    s_load_dwordx2 {sr(sV,2)}, s[0:1], 16
    s_load_dwordx2 {sr(sO,2)}, s[0:1], 56
    s_load_dwordx2 {sr(sWO,2)}, s[0:1], 32
    """)
    if FUSED:
        a('s_load_dwordx2 s[56:57], s[0:1], 40')
        a('s_load_dwordx2 s[92:93], s[0:1], 48')
        a('s_mov_b32 s58, 1474560')
        a('s_mov_b32 s59, 0x00020000')
        a('s_mov_b32 s94, 256')
        a('s_mov_b32 s95, 0x00020000')
    if prof:
        a('s_memrealtime s[96:97]')
    stamp(a, prof)
    a(f"""
    v_lshrrev_b32 v1, 6, v0
    v_and_b32 v{vLANE}, 63, v0
    s_mov_b32 s{sX+2}, 1474560
    s_mov_b32 s{sX+3}, 0x00020000
    v_readfirstlane_b32 s{sWAVE}, v1
    s_mov_b32 s{sW+2}, 4718592
    s_mov_b32 s{sW+3}, 0x00020000
    s_mov_b32 s{sK+2}, 0x4000000
    s_mov_b32 s{sK+3}, 0x00020000
    s_mov_b32 s{sV+2}, 0x4000000
    s_mov_b32 s{sV+3}, 0x00020000
    s_mov_b32 s{sO+2}, 10485760
    s_mov_b32 s{sO+3}, 0x00020000
    s_mov_b32 s{sWO+2}, 4718592
    s_mov_b32 s{sWO+3}, 0x00020000
    s_and_b32 s34, s2, 7
    s_lshr_b32 s35, s2, 3
    s_and_b32 s36, s35, 3
    s_lshl_b32 s{sHQ}, s34, 2
    s_add_u32 s{sHQ}, s{sHQ}, s36
    s_lshr_b32 s{sB}, s35, 2
    s_and_b32 s{sR}, s{sWAVE}, 1
    s_lshr_b32 s{sKH}, s{sWAVE}, 1
    s_add_u32 s37, s{sB}, s36
    s_mul_i32 s38, s37, 43
    s_lshr_b32 s38, s38, 7
    s_mul_i32 s38, s38, 3
    s_sub_u32 s37, s37, s38
    s_mul_i32 s38, s{sB}, 184320
    s_lshl_b32 s39, s{sHQ}, 8
    """)
    for G in range(3):
        a(f"""
    s_mul_i32 s34, s37, 384
    s_add_u32 s{sXG[G]}, s38, s34
    s_mul_i32 s34, s37, 0x180000
    s_add_u32 s{sWG[G]}, s39, s34
    s_add_u32 s37, s37, 1
    s_cmp_eq_u32 s37, 3
    s_cselect_b32 s37, 0, s37
    """)
    l = f'v{vLANE}'
    t0, t1, t2, t3, t4, t5 = [f'v{x}' for x in vT[:6]]
    a(f"""
    s_lshl_b32 s34, s{sWAVE}, 3
    v_lshrrev_b32 {t0}, 3, {l}
    v_add_u32 {t0}, s34, {t0}
    v_mul_u32_u24 {t0}, 1152, {t0}
    v_and_b32 {t1}, 7, {l}
    v_lshrrev_b32 {t2}, 4, {l}
    v_xor_b32 {t1}, {t1}, {t2}
    s_lshl_b32 s35, s{sR}, 2
    v_xor_b32 {t1}, s35, {t1}
    v_lshl_add_u32 v{vXD[0]}, {t1}, 4, {t0}
    """)
    for i in range(1, 5):
        a(f'v_add_u32 v{vXD[i]}, {36864*i}, v{vXD[0]}')
    a(f"""
    s_lshl_b32 s34, s{sWAVE}, 2
    v_add_u32 {t0}, s34, {t2}
    v_lshlrev_b32 {t0}, 13, {t0}
    v_and_b32 {t3}, 15, {l}
    v_lshlrev_b32 {t1}, 2, {t2}
    v_xor_b32 {t1}, {t1}, {t3}
    v_lshl_add_u32 v{vWD[0]}, {t1}, 4, {t0}
    """)
    for i in range(1, 4):
        a(f'v_add_u32 v{vWD[i]}, {131072*i}, v{vWD[0]}')
    a(f"""
    s_lshl_b32 s34, s{sWAVE}, 10
    s_add_u32 s{sM0X}, s34, {XBUF0}
    s_add_u32 s{sM0W}, s34, {WBUF0}
    """)
    a('s_waitcnt lgkmcnt(0)')

def initkv(a):
    l = f'v{vLANE}'
    t0, t1, t2, t3, t4, t5 = [f'v{x}' for x in vT[:6]]
    a(f"""
    s_lshr_b32 s34, s{sHQ}, 1
    s_lshl_b32 s35, s{sB}, 4
    s_add_u32 s34, s34, s35
    s_lshl_b32 s34, s34, 19
    s_lshl_b32 s35, s{sKH}, 18
    s_add_u32 s34, s34, s35
    s_lshl_b32 s35, s{sR}, 12
    s_add_u32 s{sT0}, s34, s35
    s_lshl_b32 s34, s{sKH}, 16
    s_add_u32 s{sM0K}, s34, s35
    s_mov_b32 s{sFB}, 0
    """)
    a(f"""
    v_lshrrev_b32 {t2}, 4, {l}
    v_and_b32 {t3}, 15, {l}
    v_lshlrev_b32 {t0}, 8, {t2}
    v_xor_b32 {t1}, {t3}, {t2}
    """)
    for j in range(4):
        a(f'v_xor_b32 {t4}, {4*j}, {t1}')
        a(f'v_lshl_add_u32 v{vKD[j]}, {t4}, 4, {t0}')
    a(f"""
    v_lshlrev_b32 {t4}, 1, {t2}
    v_xor_b32 {t1}, {t3}, {t4}
    """)
    for p in range(2):
        a(f'v_xor_b32 {t4}, {8*p}, {t1}')
        a(f'v_lshl_add_u32 v{vVD[p]}, {t4}, 4, {t0}')
    if TOUCH:
        a(f"""
    s_lshl_b32 s34, s2, 2
    s_add_u32 s34, s34, s{sWAVE}
    s_mul_i32 s{sTW}, s34, 4608
    v_lshlrev_b32 {t0}, 4, {l}
    v_mov_b32 {t1}, {hex(OOB)}
    v_cmp_gt_u32 vcc, 36, {l}
    s_nop 1
    v_cndmask_b32 v{vTCH}, {t1}, {t0}, vcc
    """)

def dma_x(G, within, i, buf):
    return [f's_add_u32 m0, s{sM0X}, {buf*XBUFS + 4096*i}',
            f'buffer_load_dwordx4 v{vXD[i]}, {sr(sX)}, s{sXo} offen lds']
def dma_w(G, within, i, buf):
    return [f's_add_u32 m0, s{sM0W}, {buf*WBUFS + 4096*i}',
            f'buffer_load_dwordx4 v{vWD[i]}, {sr(sW)}, s{sWo} offen lds']
def chunk_dmas(i9):
    G, w = i9 // 3, i9 % 3
    buf = i9 % 3
    pre = [f's_add_u32 s{sXo}, s{sXG[G]}, {128*w}', f's_add_u32 s{sWo}, s{sWG[G]}, {0x80000*w}']
    grp = []
    for i in range(4):
        grp.append(dma_w(G, w, i, buf))
        grp.append(dma_x(G, w, i, buf))
    grp.append(dma_x(G, w, 4, buf))
    return pre, grp

def tile_dmas(slot):
    g = []
    for j in range(4):
        pre = [f's_add_u32 m0, s{sM0K}, {slot*16384}'] if j == 0 else []
        g.append(pre + [f'buffer_load_dwordx4 v{vKD[j]}, {sr(sK)}, s{sT} offen offset:{1024*j} nt lds'])
    for j in range(4):
        pre = [f's_add_u32 m0, s{sM0K}, {slot*16384 + 8192}'] if j == 0 else []
        g.append(pre + [f'buffer_load_dwordx4 v{vVD[j&1]}, {sr(sV)}, s{sT} offen offset:{1024*j} nt lds'])
    return g

def emit_groups(a, groups):
    for g in groups:
        for k, ins in enumerate(g):
            a(ins)
            if 'm0' in ins.split(',')[0]:
                a('s_nop 0')

def init2(a):
    l = f'v{vLANE}'
    t0, t1, t2, t3, t4, t5, t6 = [f'v{x}' for x in vT[:7]]
    a(f"""
    v_lshrrev_b32 {t2}, 4, {l}
    v_and_b32 {t3}, 15, {l}
    v_lshrrev_b32 {t5}, 2, {l}
    v_and_b32 {t5}, 3, {t5}
    v_and_b32 {t6}, 3, {l}
    s_mul_i32 s34, s{sR}, 10240
    s_add_u32 s34, s34, {XBUF0}
    v_lshlrev_b32 {t0}, 7, {t3}
    v_add_u32 {t0}, s34, {t0}
    v_lshrrev_b32 {t1}, 1, {t3}
    v_xor_b32 {t4}, {t2}, {t1}
    v_lshl_add_u32 v{vXR[0]}, {t4}, 4, {t0}
    v_xor_b32 {t4}, 4, {t4}
    v_lshl_add_u32 v{vXR[1]}, {t4}, 4, {t0}
    v_lshl_add_u32 {t0}, {t2}, 3, {t5}
    v_lshlrev_b32 {t0}, 8, {t0}
    v_add_u32 {t0}, {WBUF0}, {t0}
    s_lshl_b32 s34, s{sKH}, 1
    """)
    for sp in range(2):
        a(f"""
    s_add_u32 s35, s34, {sp}
    v_xor_b32 {t1}, s35, {t5}
    v_lshl_add_u32 {t1}, {t1}, 2, {t6}
    v_lshl_add_u32 v{vWR[sp]}, {t1}, 4, {t0}
    """)
    a(f"""
    s_lshl_b32 s35, s{sKH}, 16
    v_lshlrev_b32 {t0}, 8, {t3}
    v_add_u32 {t0}, s35, {t0}
    """)
    for sp in range(4):
        a(f"""
    s_xor_b32 s36, s34, {sp}
    s_lshl_b32 s36, s36, 2
    v_add_u32 {t1}, s36, {t2}
    v_xor_b32 {t1}, {t1}, {t3}
    v_lshl_add_u32 v{vKA[sp]}, {t1}, 4, {t0}
    """)
    a(f"""
    v_lshl_add_u32 {t0}, {t2}, 2, {t5}
    v_lshlrev_b32 {t0}, 8, {t0}
    s_add_u32 s35, s35, 8192
    v_add_u32 {t0}, s35, {t0}
    v_and_b32 {t1}, 1, {t6}
    v_lshl_add_u32 {t0}, {t1}, 3, {t0}
    v_lshrrev_b32 {t1}, 1, {t6}
    v_lshl_add_u32 {t0}, {t1}, 4, {t0}
    v_and_b32 {t1}, 1, {t2}
    v_lshl_add_u32 {t1}, {t1}, 2, {t5}
    s_lshl_b32 s36, s{sKH}, 2
    """)
    for n in range(8):
        a(f"""
    s_xor_b32 s37, s36, {n}
    v_xor_b32 {t4}, s37, {t1}
    v_lshl_add_u32 v{vVA[n]}, {t4}, 5, {t0}
    """)
    a(f"""
    s_mul_i32 s34, s{sWAVE}, 10240
    s_add_u32 s34, s34, {EXQ}
    v_lshlrev_b32 {t0}, 4, {l}
    v_add_u32 v{vE}, s34, {t0}
    s_xor_b32 s35, s{sWAVE}, 2
    s_mul_i32 s35, s35, 10240
    s_add_u32 s35, s35, {EXQ}
    v_add_u32 v{vEP}, s35, {t0}
    """)
    zero_acc(a, keep=False)
    for i in range(4):
        a(f'v_mov_b32 v{vONES+i}, 0x3f803f80')
    for j in range(5):
        for i in range(4):
            a(f'v_mov_b32 v{CI(j)+i}, 0')

def zero_acc(a, keep=True):
    for i in range(100):
        a(f'v_accvgpr_write_b32 a{i}, 0')
    for i in range(32):
        a(f'v_accvgpr_write_b32 a{VF(1,0)+i}, 0')
    for i in range(4):
        a(f'v_mov_b32 v{P(1)+i}, 0')
    if keep:
        for i in range(80):
            a(f'v_mov_b32 v{96+i}, 0')

def qfrag_reads(u):
    i9, ks = u // 2, u % 2
    buf, fb = i9 % 3, u % 2
    r = []
    for j in range(5):
        r.append(f'ds_read_b128 {ar(QB(fb, j))}, v{vXR[ks]} offset:{XBUFS*buf + 2048*j}')
    for sp in range(2):
        for t in range(2):
            for h in range(2):
                r.append(f'ds_read_b64_tr_b16 {ar(QA(fb, 2*sp+t)+2*h, 2)}, v{vWR[sp]} offset:{WBUFS*buf + 8192*ks + 1024*h + 8*t}')
    A = r[5:]; B = r[:5]
    return [A[0], A[1], B[0], B[1], B[2], B[3], B[4]] + A[2:]

def qproj(a, prof):
    groups = []
    for i9 in range(3):
        pre, grp = chunk_dmas(i9)
        groups += [pre + grp[0]] + grp[1:]
    td = tile_dmas(0)
    groups += [[f's_mov_b32 s{sT}, s{sT0}'] + td[0]] + td[1:]
    tmp = Asm(); initkv(tmp); init2(tmp)
    fill = [i.text for i in tmp.items]
    per = -(-len(fill) // (len(groups) - FILL0))
    for d, g in enumerate(groups):
        for k_, ins in enumerate(g):
            a(ins)
            if 'm0' in ins.split(',')[0]: a('s_nop 0')
        if d >= FILL0 - 1:
            for ins in fill[:per]: a(ins)
            fill = fill[per:]
    assert not fill
    a(f's_add_u32 s{sT}, s{sT}, 8192')
    stamp(a, prof)
    a('s_waitcnt vmcnt(26)')
    a('s_barrier')
    stamp(a, prof)
    for r in qfrag_reads(0): a(r)
    vm_at = {1: 17, 3: 17, 5: 9, 7: 9, 9: 9, 11: 9, 13: 9, 15: 8}
    pend = []
    for u in range(18):
        fb = u % 2
        if u % 2 == 1:
            if u in vm_at: a(f's_waitcnt vmcnt({vm_at[u]}) lgkmcnt(0)')
            else: a('s_waitcnt lgkmcnt(0)')
            a('s_barrier')
            if u in (1, 17): stamp(a, prof)
            c = u // 2
            assert not pend
            if c + 3 <= 8:
                pre, grp = chunk_dmas(c + 3)
                pend = [pre + grp[0]] + grp[1:]
            elif c + 3 == 9:
                pend = tile_dmas(1) + [[f's_add_u32 s{sT}, s{sT}, 8192']]
            elif c + 3 == 10:
                pend = tile_dmas(2) + [[f's_add_u32 s{sT}, s{sT}, 8192']]
        else:
            a('s_waitcnt lgkmcnt(0)')
        mf = []
        for t in range(4):
            for j in range(5):
                c_ = '0' if u == 0 else vr(QACC(j, t))
                mf.append(f'{MF} {vr(QACC(j,t))}, {ar(QA(fb,t))}, {ar(QB(fb,j))}, {c_}')
        fills = {}
        reads = qfrag_reads(u + 1) if u < 17 else []
        g = 0
        while reads:
            fills.setdefault(g, []).extend(reads[:2]); reads = reads[2:]; g += 1
        g = 7
        nmax = 6 if u % 2 == 1 else 99
        cnt = 0
        while pend and g < 19 and cnt < nmax:
            grp = pend.pop(0)
            fills.setdefault(g, []).extend(grp[:-1])
            if grp[-1].startswith('buffer'):
                fills.setdefault(g + 1, []).append(grp[-1])
                g += 2
            else:
                fills[g].append(grp[-1]); g += 1
            cnt += 1
        if u % 2 == 0: assert not pend, (u, pend)
        interleave(a, mf, fills)
    assert not pend

def qfin(a, prof):
    stamp(a, prof)
    a(f's_mov_b32 s34, {hex(QSCALE)}')
    a('s_nop 7')
    for j in range(5):
        for t in range(4):
            for i in range(4):
                a(f'v_mul_f32 v{QACC(j,t)+i}, s34, v{QACC(j,t)+i}')
        for sp in range(2):
            for t in range(2):
                b = QACC(j, 2*sp + t)
                a(f'v_cvt_pk_bf16_f32 v{Q(j,sp)+2*t}, v{b}, v{b+1}')
                a(f'v_cvt_pk_bf16_f32 v{Q(j,sp)+2*t+1}, v{b+2}, v{b+3}')
        for sp in range(2):
            a(f'ds_write_b128 v{vE}, {vr(Q(j,sp))} offset:{(j*2+sp)*1024}')
    for i in range(80):
        a(f'v_mov_b32 v{96+i}, 0')
    a('s_waitcnt lgkmcnt(0)')
    a('s_barrier')
    for j in range(5):
        for sp in range(2):
            a(f'ds_read_b128 {vr(Q(j,2+sp))}, v{vEP} offset:{(j*2+sp)*1024}')

def k_reads(buf, slot):
    return [f'ds_read_b128 {ar(KF(buf,kb,ds))}, v{vKA[ds]} offset:{slot*16384 + kb*4096}' for kb in range(2) for ds in range(4)]
def v_reads(buf, slot):
    return [f'ds_read_b64_tr_b16 {ar(VF(buf,n)+2*h, 2)}, v{vVA[n]} offset:{slot*16384 + h*4096}' for n in range(8) for h in range(2)]
def qk_mf(j, kbuf, sbuf, cinit=True):
    m = []
    for kb in range(2):
        for ds in range(4):
            c = (vr(CI(j)) if cinit else '0') if ds == 0 else vr(S(sbuf, kb))
            m.append(f'{MF} {vr(S(sbuf,kb))}, {ar(KF(kbuf,kb,ds))}, {vr(Q(j,ds))}, {c}')
    return m
def pv_mf(j, vbuf, pbuf):
    m = [f'{MF} {ar(LS(j))}, {vr(vONES)}, {vr(P(pbuf))}, {ar(LS(j))}']
    for n in range(8):
        m.append(f'{MF} {OREG(j,n)}, {ar(VF(vbuf,n))}, {vr(P(pbuf))}, {OREG(j,n)}')
    return m

def pre_loop(a, prof):
    a.label('L_attn0')
    for r in k_reads(0, 0) + v_reads(0, 0): a(r)
    a('s_waitcnt vmcnt(8) lgkmcnt(0)')
    a('s_barrier')
    stamp(a, prof)
    mf = qk_mf(0, 0, 0)
    kr = k_reads(1, 1)
    td = tile_dmas(3)
    fills = {}
    for i in range(8):
        fills[i] = [kr[i]]
    interleave(a, mf, fills)
    emit_groups(a, td)
    a(f's_add_u32 s{sT}, s{sT}, 8192')
    a(f's_mov_b32 s{sL}, 0')

def step(a, t):
    td = tile_dmas(t % 4)
    vreads = v_reads((t + 1) & 1, (t + 1) % 4)
    kreads = k_reads(t & 1, (t + 2) % 4)
    for j in range(5):
        pn = (t + j) & 1
        if j < 4: qk = qk_mf(j + 1, t & 1, (pn + 1) & 1)
        else: qk = qk_mf(0, (t + 1) & 1, (pn + 1) & 1)
        if j == 0: pv = pv_mf(4, (t - 1) & 1, (pn + 1) & 1)
        else: pv = pv_mf(j - 1, t & 1, (pn + 1) & 1)
        mf = qk + pv
        fills = {g: [] for g in range(17)}
        for e in range(8):
            reg = S(pn, e // 4) + (e % 4)
            fills[2 * e].append(f'v_exp_f32 v{reg}, v{reg}')
        cv = []
        for c in range(4):
            b = S(pn, c // 2) + 2 * (c % 2)
            cv.append(f'v_cvt_pk_bf16_f32 v{P(pn)+c}, v{b}, v{b+1}')
        free2 = [1, 5, 9, 13, 16]
        free1 = [3, 7, 11, 15]
        rd = []
        if j in (1, 2): rd = [vreads.pop(0) for _ in range(6)]
        elif j == 3: rd = [vreads.pop(0) for _ in range(4)]
        elif j == 4: rd = list(kreads)
        order = [(1, 2), (3, 1), (5, 2), (7, 1), (9, 2)]
        for g, k in order:
            for _ in range(k):
                if rd: fills[g].append(rd.pop(0))
        assert not rd
        for c, g in enumerate(free1):
            fills[g].append(cv[c])
        if j < 4:
            d0 = td[2 * j]; d1 = td[2 * j + 1]
            if len(d0) == 2:
                fills[11].append(d0[0])
            gA, gB = (13, 16) if j < 3 else (9, 13)
            fills[gA].append(d0[-1]); fills[gB].append(d1[-1])
        if j == 3:
            fills[16] += [f's_waitcnt vmcnt({17 if (TOUCH and t in (1, 2)) else 16}) lgkmcnt(0)', 's_barrier']
        if j == 4:
            fills[13].append(f's_add_u32 s{sT}, s{sT}, 8192')
            if TOUCH and t == 0:
                fills[15].append(f's_mov_b32 m0, {TOUCH_LDS}')
                fills[16].append(f'buffer_load_dwordx4 v{vTCH}, {sr(sWO)}, s{sTW} offen lds')
            if TOUCH and t == 1:
                fills[11].append(f's_add_u32 s{sTW}, s{sTW}, 576')
        interleave(a, mf, fills)

def loop(a):
    a.label('L_loop')
    for t in range(4): step(a, t)
    a(f"""
    s_add_u32 s{sL}, s{sL}, 1
    s_cmp_eq_u32 s{sL}, 7
    s_cselect_b32 s{sT}, {hex(OOB)}, s{sT}
    s_cmp_lt_u32 s{sL}, 8
    s_cbranch_scc1 L_loop
    """)

def final_pv(a):
    for m in pv_mf(4, 1, 1): a(m)

def epilogue(a, prof):
    if FUSED == 2:
        import tail2
        return tail2.gen(a, prof)
    t = [f'v{x}' for x in vT]
    l = f'v{vLANE}'
    stamp(a, prof)
    a('s_nop 7')
    for j in range(5):
        a(f'v_accvgpr_read_b32 {t[j]}, a{LS(j)}')
    a(f"""
    v_mov_b32 {t[5]}, 0x33800000
    v_mov_b32 {t[6]}, 0x4e800000
    s_mov_b64 s[36:37], 0
    """)
    for j in range(5):
        a(f'v_cmp_nge_f32 vcc, {t[j]}, {t[5]}')
        a(f's_or_b64 s[36:37], s[36:37], vcc')
        a(f'v_cmp_nle_f32 vcc, {t[j]}, {t[6]}')
        a(f's_or_b64 s[36:37], s[36:37], vcc')
    a(f"""
    s_cmp_lg_u64 s[36:37], 0
    s_cselect_b32 s38, 1, 0
    v_mov_b32 {t[5]}, s38
    s_lshl_b32 s34, s{sWAVE}, 2
    s_add_u32 s34, s34, {EXF}
    v_mov_b32 {t[6]}, s34
    ds_write_b32 {t[6]}, {t[5]}
    s_mul_i32 s34, s{sWAVE}, 1280
    s_add_u32 s34, s34, {EXF+256}
    v_lshlrev_b32 {t[7]}, 2, {l}
    v_add_u32 {t[6]}, s34, {t[7]}
    """)
    for j in range(5):
        a(f'ds_write_b32 {t[6]}, {t[j]} offset:{256*j}')
    a(f"""
    s_xor_b32 s35, s{sWAVE}, 2
    s_mul_i32 s34, s35, 1280
    s_add_u32 s34, s34, {EXF+256}
    v_add_u32 {t[7]}, s34, {t[7]}
    v_mov_b32 {t[8]}, {EXF}
    s_waitcnt vmcnt(0) lgkmcnt(0)
    s_barrier
    ds_read_b128 v[{S(0,0)}:{S(0,0)+3}], {t[8]}
    """)
    for j in range(5):
        a(f'ds_read_b32 v{S(1,0)+j}, {t[7]} offset:{256*j}')
    a(f"""
    s_mul_i32 s34, s{sWAVE}, 20480
    v_lshlrev_b32 {t[9]}, 4, {l}
    v_add_u32 {t[6]}, s34, {t[9]}
    s_mul_i32 s34, s35, 20480
    v_add_u32 {t[7]}, s34, {t[9]}
    """)
    for j in range(5):
        for n in range(4):
            a(f'ds_write_b128 {t[6]}, {ar(OSEND(j,4+n))} offset:{(j*4+n)*1024}')
        if j == 0:
            a('s_waitcnt lgkmcnt(4)')
            b = S(0, 0)
            a(f"""
    v_or_b32 v{b}, v{b}, v{b+1}
    v_or3_b32 v{b}, v{b}, v{b+2}, v{b+3}
    s_nop 0
    v_readfirstlane_b32 s38, v{b}
    s_xor_b32 s39, s{sFB}, 1
    s_and_b32 s38, s38, s39
    s_cmp_lg_u32 s38, 0
    s_cbranch_scc1 L_fallback
    """)
            for jj in range(5):
                a(f'v_add_f32 {t[jj]}, {t[jj]}, v{S(1,0)+jj}')
            for jj in range(5):
                a(f'v_rcp_f32 {t[jj]}, {t[jj]}')
    a('s_waitcnt lgkmcnt(0)')
    a('s_barrier')
    for j in range(5):
        for n in range(4):
            a(f'ds_read_b128 {vr(Q(j,n))}, {t[7]} offset:{(j*4+n)*1024}')
    a(f"""
    s_mul_i32 s34, s{sB}, 10
    s_mul_i32 s35, s{sR}, 5
    s_add_u32 s34, s34, s35
    s_lshl_b32 s34, s34, 7
    s_lshl_b32 s35, s{sHQ}, 2
    s_add_u32 s34, s34, s35
    s_lshl_b32 s35, s{sKH}, 1
    s_add_u32 s34, s34, s35
    s_lshl_b32 s34, s34, 10
    """)
    for j in range(5):
        a(f's_waitcnt lgkmcnt({min(12, 16-4*j)})')
        for n in range(4):
            for i in range(4):
                a(f'v_add_f32 v{OKEEP(j,n)+i}, v{OKEEP(j,n)+i}, v{Q(j,n)+i}')
        for n in range(4):
            for i in range(4):
                a(f'v_mul_f32 v{OKEEP(j,n)+i}, {t[j]}, v{OKEEP(j,n)+i}')
        for u in range(2):
            for hh in range(2):
                b = OKEEP(j, 2*u + hh)
                a(f'v_cvt_pk_bf16_f32 v{Q(j,u)+2*hh}, v{b}, v{b+1}')
                a(f'v_cvt_pk_bf16_f32 v{Q(j,u)+2*hh+1}, v{b+2}, v{b+3}')
        if j > 0: a(f's_add_u32 s34, s34, {128*1024}')
        for u in range(2):
            a(f'buffer_store_dwordx4 {vr(Q(j,u))}, {t[9]}, {sr(sO)}, s34 offen offset:{1024*u}' + (' sc1' if FUSED else ''))
    if FUSED:
        import tail
        tail.gen_tail(a, prof)
    elif prof:
        a('s_waitcnt vmcnt(0)')
        stamp(a, prof)
        dump_stamps(a, t[0])
    a('s_branch L_k1_end')

def dump_stamps(a, tv):
    if True:
        a('s_memrealtime s[98:99]')
        a('s_waitcnt lgkmcnt(0)')
        a(f"""
    s_lshl_b32 s34, s2, 2
    s_add_u32 s34, s34, s{sWAVE}
    s_lshl_b32 s34, s34, 7
    s_add_u32 s34, s34, 0x1000000
    s_mov_b32 s{sO+2}, 0x2000000
    v_mov_b32 {tv}, s34
    """)
        for k in range(NSTAMP[0]):
            a(f's_sub_u32 s35, s{60+2*k}, s60')
            a(f'v_mov_b32 v{200+k}, s35')
            a(f'buffer_store_dword v{200+k}, {tv}, {sr(sO)}, 0 offen offset:{4*k}')
        a('v_mov_b32 v230, s96')
        a('v_mov_b32 v231, s98')
        a(f'buffer_store_dword v230, {tv}, {sr(sO)}, 0 offen offset:120')
        a(f'buffer_store_dword v231, {tv}, {sr(sO)}, 0 offen offset:124')

def fallback(a):
    t = [f'v{x}' for x in vT]
    l = f'v{vLANE}'
    a.label('L_fallback')
    a('s_waitcnt vmcnt(0) lgkmcnt(0)')
    a('s_barrier')
    for j in range(5):
        a(f'v_mov_b32 {t[j]}, 0xff800000')
    a(f's_mov_b32 s{sT}, s{sT0}')
    a(f's_mov_b32 s{sL}, 0')
    a.label('L_fb_loop')
    a(f's_mov_b32 m0, s{sM0K}')
    a('s_nop 0')
    for j in range(4):
        a(f'buffer_load_dwordx4 v{vKD[j]}, {sr(sK)}, s{sT} offen offset:{1024*j} lds')
    a('s_waitcnt vmcnt(0)')
    a('s_barrier')
    for r in k_reads(0, 0): a(r)
    a('s_waitcnt lgkmcnt(0)')
    a('s_barrier')
    for j in range(5):
        for m in qk_mf(j, 0, 0, cinit=False): a(m)
        a('s_nop 7')
        b0, b1 = S(0, 0), S(0, 1)
        a(f'v_max3_f32 {t[j]}, {t[j]}, v{b0}, v{b0+1}')
        a(f'v_max3_f32 {t[j]}, {t[j]}, v{b0+2}, v{b0+3}')
        a(f'v_max3_f32 {t[j]}, {t[j]}, v{b1}, v{b1+1}')
        a(f'v_max3_f32 {t[j]}, {t[j]}, v{b1+2}, v{b1+3}')
    a(f"""
    s_add_u32 s{sT}, s{sT}, 8192
    s_add_u32 s{sL}, s{sL}, 1
    s_cmp_lt_u32 s{sL}, 32
    s_cbranch_scc1 L_fb_loop
    """)
    a(f"""
    s_mul_i32 s34, s{sWAVE}, 1280
    s_add_u32 s34, s34, {EXF}
    v_lshlrev_b32 {t[7]}, 2, {l}
    v_add_u32 {t[6]}, s34, {t[7]}
    """)
    for j in range(5):
        a(f'ds_write_b32 {t[6]}, {t[j]} offset:{256*j}')
    a(f"""
    s_waitcnt lgkmcnt(0)
    s_barrier
    v_and_b32 {t[7]}, 15, {l}
    v_lshlrev_b32 {t[7]}, 2, {t[7]}
    s_mul_i32 s34, s{sR}, 1280
    s_add_u32 s34, s34, {EXF}
    v_add_u32 {t[7]}, s34, {t[7]}
    """)
    for j in range(5):
        regs = [S(0,0)+i for i in range(8)]
        k = 0
        for kh in range(2):
            for g in range(4):
                a(f'ds_read_b32 v{regs[k]}, {t[7]} offset:{kh*2560 + j*256 + g*64}')
                k += 1
        a('s_waitcnt lgkmcnt(0)')
        a(f'v_max3_f32 {t[8]}, v{regs[0]}, v{regs[1]}, v{regs[2]}')
        a(f'v_max3_f32 {t[8]}, {t[8]}, v{regs[3]}, v{regs[4]}')
        a(f'v_max3_f32 {t[8]}, {t[8]}, v{regs[5]}, v{regs[6]}')
        a(f'v_max_f32 {t[8]}, {t[8]}, v{regs[7]}')
        for i in range(4):
            a(f'v_sub_f32 v{CI(j)+i}, 0, {t[8]}')
    zero_acc(a, keep=True)
    a(f's_mov_b32 s{sFB}, 1')
    a(f's_mov_b32 s{sT}, s{sT0}')
    a('s_barrier')
    for slot in range(3):
        emit_groups(a, tile_dmas(slot))
        a(f's_add_u32 s{sT}, s{sT}, 8192')
    a('s_waitcnt vmcnt(16)')
    a('s_barrier')
    a('s_branch L_attn0')

def gen_k1(prof=False):
    NSTAMP[0] = 0
    segs = {}
    def seg(name, f, *args):
        x = Asm(); f(x, *args); segs[name] = x; return x
    seg('init', init, prof)
    seg('qproj', qproj, prof)
    seg('qfin', qfin, prof)
    seg('pre', pre_loop, prof)
    seg('loop', loop)
    seg('fin', final_pv)
    seg('epi', epilogue, prof)
    seg('fb', fallback)
    order = ['init', 'qproj', 'qfin', 'pre', 'loop', 'fin', 'epi', 'fb']
    return segs, order
```

```python
from asmlib import Asm
import k1
from k1 import vr, ar, sr, MF, sWAVE, sB, sO, sWO, vLANE, stamp
sOUT, sDBG = 56, 92
sMT, sNT, sA, sBo, sM0 = 40, 41, 42, 43, 44
import os
X = 10
DO = int(os.environ.get('DO', 7))
NOW = os.environ.get('NOW') is not None
MAPB = os.environ.get('MAPB') is not None
NWG = 243
SLOT = 4096
def ACC(nb, mb): return 16 + (nb * 3 + mb) * 4
def OR(slot, mb): return (slot * 3 + mb) * 4
def AF(buf, nb): return 148 + (buf * 4 + nb) * 4
vWO = [180, 181, 182, 183]; vO = [184, 185, 186]; vRD = [188, 189, 190, 191]
T = [192, 193, 194, 195, 196, 197]

def tile_init(a):
    t = [f'v{x}' for x in T]
    l = f'v{vLANE}'
    a(f"""
    s_and_b32 s34, s2, 7
    s_lshr_b32 s35, s2, 3
    s_mul_i32 s36, s34, 30
    s_min_u32 s37, s34, 3
    s_add_u32 s36, s36, s37
    s_add_u32 s36, s36, s35
    """)
    if MAPB:
        a(f"""
    s_mul_i32 s37, s36, 7282
    s_lshr_b32 s{sMT}, s37, 16
    s_mul_i32 s38, s{sMT}, 9
    s_sub_u32 s{sNT}, s36, s38
    """)
    else:
        a(f"""
    s_mul_i32 s37, s36, 811
    s_lshr_b32 s37, s37, 16
    s_mul_i32 s38, s37, 81
    s_sub_u32 s38, s36, s38
    s_mul_i32 s39, s38, 171
    s_lshr_b32 s{sMT}, s39, 9
    s_mul_i32 s39, s{sMT}, 3
    s_sub_u32 s39, s38, s39
    s_mul_i32 s37, s37, 3
    s_add_u32 s{sNT}, s37, s39
    """)
    a(f"""
    s_mul_i32 s34, s{sMT}, {3*131072}
    s_lshl_b32 s35, s{sWAVE}, 15
    s_add_u32 s{sA}, s34, s35
    s_mul_i32 s{sBo}, s{sWAVE}, 1179648
    s_mul_i32 s{sM0}, s{sWAVE}, {X*SLOT}
    v_lshlrev_b32 {t[0]}, 4, {l}
    v_mov_b32 v{vO[0]}, {t[0]}
    v_add_u32 v{vO[1]}, 131072, {t[0]}
    v_add_u32 v{vO[2]}, 262144, {t[0]}
    s_lshl_b32 s34, s{sNT}, 7
    v_lshrrev_b32 {t[0]}, 3, {l}
    v_mul_u32_u24 {t[0]}, 1152, {t[0]}
    v_add_u32 {t[0]}, s34, {t[0]}
    v_lshrrev_b32 {t[1]}, 4, {l}
    v_lshlrev_b32 {t[1]}, 1, {t[1]}
    v_and_b32 {t[2]}, 7, {l}
    v_xor_b32 {t[1]}, {t[1]}, {t[2]}
    v_lshl_add_u32 v{vWO[0]}, {t[1]}, 4, {t[0]}
    """)
    for p in range(1, 4):
        a(f'v_add_u32 v{vWO[p]}, {p*(8*1152-1024)}, v{vWO[0]}')
    a(f"""
    v_lshrrev_b32 {t[0]}, 4, {l}
    v_lshrrev_b32 {t[1]}, 2, {l}
    v_and_b32 {t[1]}, 3, {t[1]}
    v_lshl_add_u32 {t[0]}, {t[0]}, 2, {t[1]}
    v_lshrrev_b32 {t[1]}, 1, {t[0]}
    v_and_b32 {t[1]}, 3, {t[1]}
    v_lshlrev_b32 {t[0]}, 7, {t[0]}
    v_add_u32 {t[0]}, s{sM0}, {t[0]}
    v_and_b32 {t[2]}, 1, {l}
    v_lshl_add_u32 {t[0]}, {t[2]}, 3, {t[0]}
    v_lshrrev_b32 {t[2]}, 1, {l}
    v_and_b32 {t[2]}, 1, {t[2]}
    v_lshl_add_u32 {t[0]}, {t[2]}, 4, {t[0]}
    """)
    for nb in range(4):
        a(f'v_xor_b32 {t[2]}, {nb}, {t[1]}')
        a(f'v_lshl_add_u32 v{vRD[nb]}, {t[2]}, 5, {t[0]}')

class VQ:
    def __init__(self): self.q = []
    def add(self, tag): self.q.append(tag)
    def need(self, tags):
        last = -1
        for i, t in enumerate(self.q):
            if t in tags: last = i
        n = len(self.q) - 1 - last
        self.q = self.q[last + 1:]
        return n

def w_ops(k):
    slot = k % X
    return ([f's_add_u32 m0, s{sM0}, {slot*SLOT}'],
            [f'buffer_load_dwordx4 v{vWO[p]}, {sr(sWO)}, s{sBo} offen offset:{1024*p} lds' for p in range(4)],
            [f's_add_u32 s{sBo}, s{sBo}, 36864'])
def o_ops(k):
    slot = k % DO
    return ([f'buffer_load_dwordx4 {ar(OR(slot,mb))}, v{vO[mb]}, {sr(sO)}, s{sA} offen sc1' for mb in range(3)],
            [f's_add_u32 s{sA}, s{sA}, 1024'])
def areads(k):
    slot = k % X
    return [f'ds_read_b64_tr_b16 {vr(AF(k&1,nb)+2*h,2)}, v{vRD[nb]} offset:{slot*SLOT + h*2048}' for nb in range(4) for h in range(2)]

def gen_tail(a, prof):
    t = [f'v{x}' for x in T]
    l = f'v{vLANE}'
    tile_init(a)
    a('s_waitcnt vmcnt(0)')
    a('s_barrier')
    stamp(a, prof)
    a(f"""
    s_cmp_lg_u32 s{sWAVE}, 0
    s_cbranch_scc1 L_t_nosig
    s_lshl_b32 s34, s{sB}, 5
    v_mov_b32 {t[0]}, s34
    v_mov_b32 {t[1]}, 1
    s_mov_b64 exec, 1
    buffer_atomic_add {t[1]}, {t[0]}, {sr(sDBG)}, 0 offen sc1
    s_mov_b64 exec, -1
    """)
    a.label('L_t_nosig')
    a(f"""
    s_cmp_ge_u32 s2, {NWG}
    s_cbranch_scc1 L_k1_end
    """)
    q = VQ()
    for k in range(X):
        pre, d, post = w_ops(k)
        a(pre[0]); a('s_nop 0')
        for x in d: a(x); q.add(('W', k))
        a(post[0])
    for i in range(48): a(f'v_mov_b32 v{16+i}, 0')
    a(f"""
    s_cmp_lg_u32 s{sWAVE}, 0
    s_cbranch_scc1 L_t_nopoll
    s_mul_i32 s34, s{sMT}, 48
    s_mul_i32 s35, s34, 52429
    s_lshr_b32 s35, s35, 23
    s_add_u32 s34, s34, 47
    s_min_u32 s34, s34, 1279
    s_mul_i32 s36, s34, 52429
    s_lshr_b32 s36, s36, 23
    s_lshl_b32 s35, s35, 5
    s_lshl_b32 s36, s36, 5
    v_mov_b32 {t[0]}, s35
    v_mov_b32 {t[1]}, s36
    s_mov_b32 s37, 0
    """)
    a.label('L_t_poll')
    a(f"""
    buffer_load_dword {t[2]}, {t[0]}, {sr(sDBG)}, 0 offen sc1
    buffer_load_dword {t[3]}, {t[1]}, {sr(sDBG)}, 0 offen sc1
    s_add_u32 s37, s37, 1
    s_waitcnt vmcnt(0)
    v_min_u32 {t[2]}, {t[2]}, {t[3]}
    s_cmp_gt_u32 s37, 0x40000
    s_cbranch_scc1 L_t_nopoll
    v_readfirstlane_b32 s38, {t[2]}
    s_cmp_lt_u32 s38, 32
    s_cbranch_scc1 L_t_poll
    """)
    a.label('L_t_nopoll')
    a('s_barrier')
    stamp(a, prof)
    for k in range(DO):
        ld, post = o_ops(k)
        for x in ld: a(x); q.add(('O', k))
        a(post[0])
    n = q.need([('W', 0)])
    a(f's_waitcnt vmcnt({min(n,63)})')
    for x in areads(0): a(x)
    for u in range(32):
        need = [('O', u)] + ([('W', u + 1)] if u + 1 < 32 and not (NOW and u + 1 >= X) else [])
        n = q.need(need)
        a(f's_waitcnt vmcnt({min(n, 63)}) lgkmcnt(0)')
        rd = areads(u + 1) if u + 1 < 32 else []
        mf = [f'{MF} {vr(ACC(nb,mb))}, {vr(AF(u&1,nb))}, {ar(OR(u%DO,mb))}, {vr(ACC(nb,mb))}' for mb in range(3) for nb in range(4)]
        fills = {0: rd[0:2], 1: rd[2:4], 2: rd[4:6], 3: rd[6:8]}
        tags = {}
        if u + X < 32 and not NOW:
            pre, d, post = w_ops(u + X)
            fills[3] = fills[3] + pre
            fills[4] = [d[0]]; fills[5] = [d[1]]; fills[6] = [d[2]]; fills[7] = [d[3]] + post
        if u + DO < 32:
            ld, post2 = o_ops(u + DO)
            fills.setdefault(5, []).append(ld[0]); fills.setdefault(8, []).append(ld[1]); fills.setdefault(11, []).extend([ld[2]] + post2)
        for i, m in enumerate(mf):
            a(m)
            for f in fills.get(i, []):
                a(f)
                if f.startswith('buffer_load'):
                    q.add(('W', u + X) if ' lds' in f else ('O', u + DO))
    stamp(a, prof)
    a(f"""
    s_barrier
    s_mul_i32 s34, s{sWAVE}, 12288
    v_lshlrev_b32 {t[0]}, 4, {l}
    v_add_u32 {t[1]}, s34, {t[0]}
    s_lshl_b32 s34, s{sWAVE}, 10
    v_add_u32 {t[4]}, s34, {t[0]}
    s_nop 3
    """)
    for nb in range(4):
        for mb in range(3):
            a(f'ds_write_b128 {t[1]}, {vr(ACC(nb,mb))} offset:{(mb*4+nb)*1024}')
    a(f"""
    s_waitcnt lgkmcnt(0)
    s_barrier
    """)
    for w in range(4):
        for mb in range(3):
            a(f'ds_read_b128 {vr(64 + (w*3+mb)*4)}, {t[4]} offset:{w*12288 + mb*4096}')
    a(f"""
    s_mul_i32 s34, s{sMT}, {48*1152}
    s_lshl_b32 s35, s{sNT}, 7
    s_add_u32 s34, s34, s35
    s_lshl_b32 s35, s{sWAVE}, 5
    s_add_u32 s34, s34, s35
    v_and_b32 {t[2]}, 15, {l}
    v_mul_u32_u24 {t[2]}, 1152, {t[2]}
    v_lshrrev_b32 {t[3]}, 4, {l}
    v_lshl_add_u32 {t[2]}, {t[3]}, 3, {t[2]}
    s_waitcnt lgkmcnt(0)
    """)
    for mb in range(3):
        for i in range(4):
            r0 = 64 + mb * 4 + i
            a(f'v_add_f32 v{r0}, v{r0}, v{r0+12}')
            a(f'v_add_f32 v{r0+24}, v{r0+24}, v{r0+36}')
            a(f'v_add_f32 v{r0}, v{r0}, v{r0+24}')
        b = 64 + mb * 4
        a(f'v_cvt_pk_bf16_f32 v{16+2*mb}, v{b}, v{b+1}')
        a(f'v_cvt_pk_bf16_f32 v{17+2*mb}, v{b+2}, v{b+3}')
        a(f'buffer_store_dwordx2 {vr(16+2*mb,2)}, {t[2]}, {sr(sOUT)}, s34 offen')
        if mb < 2: a(f's_add_u32 s34, s34, {16*1152}')
    if prof:
        a('s_waitcnt vmcnt(0)')
        stamp(a, prof)
        k1.dump_stamps(a, t[0])
```

```python
import os
from asmlib import Asm
import k1
from k1 import (vr, ar, sr, MF, sWAVE, sB, sO, sWO, sR, sKH, sHQ, sFB, vLANE, stamp, vT, LS, S, Q, OKEEP, OSEND, CI)
sOUT, sDBG = 56, 92
sMT, sNT, sA, sBo, sM0 = 40, 41, 42, 43, 44
sXA, sXB = 45, 46
NWG = 243
MAP = os.environ.get('MAP', 'A')
DO = int(os.environ.get('DO', 7))
NREG = 22
SB = [32768, 49152, 98304, 114688, 0, 16384, 65536, 81920, 131072, 147456]
EXL = 151552
EXA = [0, 65536, 131072, 20480]
EXB = [12288, 77824, 143360, 86016]
vWO = [3, 4, 5, 6]; vO = [7, 8, 9]; T = [10, 11, 12, 13, 14, 15]
vPOLL = 1
def vRD(base, nb): return 16 + base * 4 + nb
def ACC(nb, mb): return 28 + (nb * 3 + mb) * 4
def OR(slot, mb): return 76 + (slot * 3 + mb) * 4
assert 76 + DO * 12 <= 160
def WR(k, nb):
    if k < 16: return ('a', k * 16 + nb * 4)
    if k < NREG: return ('v', 160 + (k - 16) * 16 + nb * 4)
    return ('a', (k & 1) * 16 + nb * 4)
def rtxt(r, n=4, off=0): return f'{r[0]}[{r[1]+off}:{r[1]+off+n-1}]'

def sel4(a, dst, vals):
    a(f's_mov_b32 s{dst}, {vals[0]}')
    for w in range(1, 4):
        a(f's_cmp_eq_u32 s{sWAVE}, {w}')
        a(f's_cselect_b32 s{dst}, {vals[w]}, s{dst}')

def tile_part1(a):
    t = [f'v{x}' for x in T]
    l = f'v{vLANE}'
    a(f"""
    s_and_b32 s34, s2, 7
    s_lshr_b32 s35, s2, 3
    s_mul_i32 s36, s34, 30
    s_min_u32 s37, s34, 3
    s_add_u32 s36, s36, s37
    s_add_u32 s36, s36, s35
    """)
    if MAP == 'B':
        a(f"""
    s_mul_i32 s37, s36, 7282
    s_lshr_b32 s{sMT}, s37, 16
    s_mul_i32 s38, s{sMT}, 9
    s_sub_u32 s{sNT}, s36, s38
    """)
    elif MAP == 'C':
        a(f"""
    s_lshr_b32 s{sMT}, s36, 2
    s_and_b32 s{sNT}, s36, 3
    s_sub_u32 s37, s36, 108
    s_mul_i32 s38, s37, 13108
    s_lshr_b32 s38, s38, 16
    s_mul_i32 s39, s38, 5
    s_sub_u32 s39, s37, s39
    s_add_u32 s39, s39, 4
    s_cmp_ge_u32 s36, 108
    s_cselect_b32 s{sMT}, s38, s{sMT}
    s_cselect_b32 s{sNT}, s39, s{sNT}
    """)
    else:
        a(f"""
    s_mul_i32 s37, s36, 811
    s_lshr_b32 s37, s37, 16
    s_mul_i32 s38, s37, 81
    s_sub_u32 s38, s36, s38
    s_mul_i32 s39, s38, 171
    s_lshr_b32 s{sMT}, s39, 9
    s_mul_i32 s39, s{sMT}, 3
    s_sub_u32 s39, s38, s39
    s_mul_i32 s37, s37, 3
    s_add_u32 s{sNT}, s37, s39
    """)
    a(f"""
    s_mul_i32 s{sBo}, s{sWAVE}, 1179648
    s_lshl_b32 s{sM0}, s{sWAVE}, 12
    s_lshl_b32 s34, s{sNT}, 7
    v_lshrrev_b32 {t[0]}, 3, {l}
    v_mul_u32_u24 {t[0]}, 1152, {t[0]}
    v_add_u32 {t[0]}, s34, {t[0]}
    v_lshrrev_b32 {t[1]}, 4, {l}
    v_lshlrev_b32 {t[1]}, 1, {t[1]}
    v_and_b32 {t[2]}, 7, {l}
    v_xor_b32 {t[1]}, {t[1]}, {t[2]}
    v_lshl_add_u32 v{vWO[0]}, {t[1]}, 4, {t[0]}
    """)
    for p in range(1, 4):
        a(f'v_add_u32 v{vWO[p]}, {p*(8*1152-1024)}, v{vWO[0]}')

def tile_part2(a):
    t = [f'v{x}' for x in T]
    l = f'v{vLANE}'
    a(f"""
    s_mul_i32 s34, s{sMT}, {3*131072}
    s_lshl_b32 s35, s{sWAVE}, 15
    s_add_u32 s{sA}, s34, s35
    v_lshlrev_b32 {t[0]}, 4, {l}
    v_mov_b32 v{vO[0]}, {t[0]}
    v_add_u32 v{vO[1]}, 131072, {t[0]}
    v_add_u32 v{vO[2]}, 262144, {t[0]}
    v_lshrrev_b32 {t[0]}, 4, {l}
    v_lshrrev_b32 {t[1]}, 2, {l}
    v_and_b32 {t[1]}, 3, {t[1]}
    v_lshl_add_u32 {t[0]}, {t[0]}, 2, {t[1]}
    v_lshrrev_b32 {t[1]}, 1, {t[0]}
    v_and_b32 {t[1]}, 3, {t[1]}
    v_lshlrev_b32 {t[0]}, 7, {t[0]}
    v_add_u32 {t[0]}, s{sM0}, {t[0]}
    v_and_b32 {t[2]}, 1, {l}
    v_lshl_add_u32 {t[0]}, {t[2]}, 3, {t[0]}
    v_lshrrev_b32 {t[2]}, 1, {l}
    v_and_b32 {t[2]}, 1, {t[2]}
    v_lshl_add_u32 {t[0]}, {t[2]}, 4, {t[0]}
    """)
    for nb in range(4):
        a(f'v_xor_b32 {t[2]}, {nb}, {t[1]}')
        a(f'v_lshl_add_u32 v{vRD(0,nb)}, {t[2]}, 5, {t[0]}')
        a(f'v_add_u32 v{vRD(1,nb)}, 65536, v{vRD(0,nb)}')
        a(f'v_add_u32 v{vRD(2,nb)}, 131072, v{vRD(0,nb)}')
    a(f"""
    s_mul_i32 s34, s{sMT}, 48
    s_mul_i32 s35, s34, 52429
    s_lshr_b32 s35, s35, 23
    s_add_u32 s34, s34, 47
    s_min_u32 s34, s34, 1279
    s_mul_i32 s36, s34, 52429
    s_lshr_b32 s36, s36, 23
    s_lshl_b32 s35, s35, 5
    s_lshl_b32 s36, s36, 5
    v_mov_b32 {t[0]}, s35
    v_mov_b32 {t[1]}, s36
    v_cmp_eq_u32 vcc, 1, {l}
    s_nop 1
    v_cndmask_b32 v{vPOLL}, {t[0]}, {t[1]}, vcc
    """)

class VQ:
    def __init__(self): self.q = []
    def add(self, tag): self.q.append(tag)
    def need(self, tags):
        last = -1
        for i, t in enumerate(self.q):
            if t in tags: last = i
        n = len(self.q) - 1 - last
        self.q = self.q[last + 1:]
        return min(n, 63)

def w_ops(k):
    return ([f's_add_u32 m0, s{sM0}, {SB[k % 10]}'],
            [f'buffer_load_dwordx4 v{vWO[p]}, {sr(sWO)}, s{sBo} offen offset:{1024*p} lds' for p in range(4)],
            [f's_add_u32 s{sBo}, s{sBo}, 36864'])
def emit_w(a, q, k):
    pre, d, post = w_ops(k)
    a(pre[0]); a('s_nop 0')
    for x in d:
        a(x); q.add(('W', k))
    a(post[0])
def o_ops(k):
    return ([f'buffer_load_dwordx4 {vr(OR(k % DO, mb))}, v{vO[mb]}, {sr(sO)}, s{sA} offen sc1' for mb in range(3)],
            [f's_add_u32 s{sA}, s{sA}, 1024'])
def areads(k):
    sb = SB[k % 10]
    return [f'ds_read_b64_tr_b16 {rtxt(WR(k, nb), 2, 2*h)}, v{vRD(sb >> 16, nb)} offset:{(sb & 65535) + h*2048}'
            for nb in range(4) for h in range(2)]

def gen(a, prof):
    t = [f'v{x}' for x in vT]
    l = f'v{vLANE}'
    q = VQ()
    stamp(a, prof)
    a('s_nop 7')
    for j in range(5):
        a(f'v_accvgpr_read_b32 {t[j]}, a{LS(j)}')
    a(f"""
    v_mov_b32 {t[5]}, 0x33800000
    v_mov_b32 {t[6]}, 0x4e800000
    s_mov_b64 s[36:37], 0
    """)
    for j in range(5):
        a(f'v_cmp_nge_f32 vcc, {t[j]}, {t[5]}')
        a(f's_or_b64 s[36:37], s[36:37], vcc')
        a(f'v_cmp_nle_f32 vcc, {t[j]}, {t[6]}')
        a(f's_or_b64 s[36:37], s[36:37], vcc')
    vPA, vPB = S(1, 1) + 1, S(1, 1) + 2
    a(f'v_lshlrev_b32 {t[9]}, 4, {l}')
    sel4(a, sXA, EXA); sel4(a, sXB, EXB)
    a(f'v_add_u32 {t[10]}, s{sXA}, {t[9]}')
    a(f'v_add_u32 {t[8]}, s{sXB}, {t[9]}')
    sends = []
    for j in range(5):
        for n in range(4):
            if j < 3: sends.append(f'ds_write_b128 {t[10]}, {ar(OSEND(j,4+n))} offset:{(j*4+n)*1024}')
            else: sends.append(f'ds_write_b128 {t[8]}, {ar(OSEND(j,4+n))} offset:{((j-3)*4+n)*1024}')
    f = Asm()
    f(f"""
    s_cmp_lg_u64 s[36:37], 0
    s_cselect_b32 s38, 1, 0
    v_mov_b32 {t[5]}, s38
    s_lshl_b32 s34, s{sWAVE}, 2
    s_add_u32 s34, s34, {EXL}
    v_mov_b32 {t[6]}, s34
    ds_write_b32 {t[6]}, {t[5]}
    s_mul_i32 s34, s{sWAVE}, 1280
    s_add_u32 s34, s34, {EXL+256}
    v_lshlrev_b32 {t[7]}, 2, {l}
    v_add_u32 {t[6]}, s34, {t[7]}
    """)
    for j in range(5):
        f(f'ds_write_b32 {t[6]}, {t[j]} offset:{256*j}')
    f(f"""
    s_xor_b32 s35, s{sWAVE}, 2
    s_mul_i32 s34, s35, 1280
    s_add_u32 s34, s34, {EXL+256}
    v_add_u32 {t[7]}, s34, {t[7]}
    v_mov_b32 {t[5]}, {EXL}
    """)
    PA = [EXA[w ^ 2] for w in range(4)]; PB = [EXB[w ^ 2] for w in range(4)]
    sel4(f, sXA, PA); sel4(f, sXB, PB)
    f(f'v_add_u32 v{vPA}, s{sXA}, {t[9]}')
    f(f'v_add_u32 v{vPB}, s{sXB}, {t[9]}')
    tile_part1(f)
    fill = [i.text for i in f.items if hasattr(i, 'dst')]
    per = -(-len(fill) // len(sends))
    for s_ in sends:
        a(s_)
        for x in fill[:per]: a(x)
        fill = fill[per:]
    a(f"""
    s_mul_i32 s34, s{sB}, 10
    s_mul_i32 s35, s{sR}, 5
    s_add_u32 s34, s34, s35
    s_lshl_b32 s34, s34, 7
    s_lshl_b32 s35, s{sHQ}, 2
    s_add_u32 s34, s34, s35
    s_lshl_b32 s35, s{sKH}, 1
    s_add_u32 s34, s34, s35
    s_lshl_b32 s{sA}, s34, 10
    s_waitcnt vmcnt(0) lgkmcnt(0)
    s_barrier
    """)
    stamp(a, prof)
    def pread(j, n, dst):
        if j < 3: return f'ds_read_b128 {vr(dst)}, v{vPA} offset:{(j*4+n)*1024}'
        return f'ds_read_b128 {vr(dst)}, v{vPB} offset:{((j-3)*4+n)*1024}'
    def PD(j, n): return CI(0) + 4 * n if j == 0 else Q(j, n)
    a(f'ds_read_b128 v[{S(0,0)}:{S(0,0)+3}], {t[5]}')
    for j in range(5):
        a(f'ds_read_b32 v{S(1,0)+j}, {t[7]} offset:{256*j}')
    for n in range(4): a(pread(0, n, PD(0, n)))
    b = S(0, 0)
    a(f"""
    s_waitcnt lgkmcnt(4)
    v_or_b32 v{b}, v{b}, v{b+1}
    v_or3_b32 v{b}, v{b}, v{b+2}, v{b+3}
    s_nop 0
    v_readfirstlane_b32 s38, v{b}
    s_xor_b32 s39, s{sFB}, 1
    s_and_b32 s38, s38, s39
    s_cmp_lg_u32 s38, 0
    s_cbranch_scc1 L_fallback
    """)
    for j in range(1, 5):
        for n in range(4): a(pread(j, n, PD(j, n)))
    for jj in range(5):
        a(f'v_add_f32 {t[jj]}, {t[jj]}, v{S(1,0)+jj}')
    for jj in range(5):
        a(f'v_rcp_f32 {t[jj]}, {t[jj]}')
    emit_w(a, q, 0)
    for j in range(5):
        a(f's_waitcnt lgkmcnt({min(12, 16-4*j)})')
        rp = S(0, 0) + 2 * (j & 1)
        a(f'v_mov_b32 v{rp}, {t[j]}')
        a(f'v_mov_b32 v{rp+1}, {t[j]}')
        for n in range(4):
            for i in (0, 2):
                o = OKEEP(j, n) + i
                a(f'v_pk_add_f32 {vr(o,2)}, {vr(o,2)}, {vr(PD(j,n)+i,2)}')
        for n in range(4):
            for i in (0, 2):
                o = OKEEP(j, n) + i
                a(f'v_pk_mul_f32 {vr(o,2)}, {vr(o,2)}, {vr(rp,2)}')
        for u in range(2):
            for hh in range(2):
                bb = OKEEP(j, 2*u + hh)
                a(f'v_cvt_pk_bf16_f32 v{Q(j,u)+2*hh}, v{bb}, v{bb+1}')
                a(f'v_cvt_pk_bf16_f32 v{Q(j,u)+2*hh+1}, v{bb+2}, v{bb+3}')
        for u in range(2):
            a(f'buffer_store_dwordx4 {vr(Q(j,u))}, {t[9]}, {sr(sO)}, s{sA} offen offset:{1024*u} sc1')
            q.add(('S', j))
        if j < 4: a(f's_add_u32 s{sA}, s{sA}, {128*1024}')
        if j < 3: emit_w(a, q, j + 1)
    a('s_nop 1')
    tile_part2(a)
    a('s_waitcnt vmcnt(0)')
    q.q = []
    a('s_barrier')
    stamp(a, prof)
    a(f"""
    s_cmp_lg_u32 s{sWAVE}, 0
    s_cbranch_scc1 L_t_nosig
    s_lshl_b32 s34, s{sB}, 5
    v_mov_b32 v{T[0]}, s34
    v_mov_b32 v{T[1]}, 1
    s_mov_b64 exec, 1
    buffer_atomic_add v{T[1]}, v{T[0]}, {sr(sDBG)}, 0 offen sc1
    s_mov_b64 exec, -1
    """)
    a.label('L_t_nosig')
    a(f"""
    s_cmp_ge_u32 s2, {NWG}
    s_cbranch_scc1 L_k1_end
    """)
    for x in areads(0): a(x)
    for k in range(4, 10): emit_w(a, q, k)
    POLLS = [int(x) for x in os.environ.get('POLLS', '26,29').split(',')]
    vP = [T[2], T[3], T[4]]
    for k in range(NREG):
        nxt = k + 1
        if nxt < NREG:
            n = q.need([('W', nxt)]) if any(x == ('W', nxt) for x in q.q) else None
            if n is not None: a(f's_waitcnt vmcnt({n})')
            rd = areads(nxt)
            for x in rd: a(x)
            a('s_waitcnt lgkmcnt(8)')
        else:
            a('s_waitcnt lgkmcnt(0)')
        emit_w(a, q, k + 10)
        if k + 10 in POLLS:
            i = POLLS.index(k + 10)
            a(f'buffer_load_dword v{vP[i]}, v{vPOLL}, {sr(sDBG)}, 0 offen sc1')
            q.add(('P', i))
    stamp(a, prof)
    a(f's_cmp_lg_u32 s{sWAVE}, 0')
    a('s_cbranch_scc1 L_t_go')
    qq = VQ(); qq.q = list(q.q)
    for i in range(len(POLLS)):
        n = qq.need([('P', i)])
        a(f's_waitcnt vmcnt({n})')
        a(f'v_cmp_gt_u32 vcc, 32, v{vP[i]}')
        a('s_cbranch_vccz L_t_go')
    a('s_mov_b32 s37, 0')
    a.label('L_t_poll')
    a(f"""
    buffer_load_dword v{vP[2]}, v{vPOLL}, {sr(sDBG)}, 0 offen sc1
    s_add_u32 s37, s37, 1
    s_waitcnt vmcnt(0)
    s_cmp_gt_u32 s37, 0x40000
    s_cbranch_scc1 L_t_go
    v_cmp_gt_u32 vcc, 32, v{vP[2]}
    s_cbranch_vccnz L_t_poll
    """)
    a.label('L_t_go')
    a('s_barrier')
    stamp(a, prof)
    for k in range(DO):
        ld, post = o_ops(k)
        for x in ld:
            a(x); q.add(('O', k))
        a(post[0])
    for u in range(32):
        need = [('O', u)]
        n = q.need(need)
        lg = u >= NREG
        a(f's_waitcnt vmcnt({n})' + (' lgkmcnt(0)' if lg else ''))
        rd = areads(u + 1) if NREG <= u + 1 < 32 else []
        mf = []
        for mb in range(3):
            for nb in range(4):
                c = '0' if u == 0 else vr(ACC(nb, mb))
                mf.append(f'{MF} {vr(ACC(nb,mb))}, {rtxt(WR(u,nb))}, {vr(OR(u % DO, mb))}, {c}')
        fills = {0: rd[0:2], 1: rd[2:4], 2: rd[4:6], 3: rd[6:8]}
        if u + DO < 32:
            ld, post2 = o_ops(u + DO)
            fills.setdefault(5, []).append(ld[0]); fills.setdefault(8, []).append(ld[1]); fills.setdefault(11, []).extend([ld[2]] + post2)
        for i, m in enumerate(mf):
            a(m)
            for x in fills.get(i, []):
                a(x)
                if x.startswith('buffer_load'): q.add(('O', u + DO))
    stamp(a, prof)
    tt = [f'v{x}' for x in T]
    a(f"""
    v_lshlrev_b32 {tt[0]}, 4, {l}
    v_add_u32 {tt[1]}, s{sM0}, {tt[0]}
    s_lshl_b32 s34, s{sWAVE}, 10
    v_add_u32 {tt[4]}, s34, {tt[0]}
    s_mul_i32 s34, s{sMT}, {48*1152}
    s_lshl_b32 s35, s{sNT}, 7
    s_add_u32 s34, s34, s35
    s_lshl_b32 s35, s{sWAVE}, 5
    s_add_u32 s34, s34, s35
    v_and_b32 {tt[2]}, 15, {l}
    v_mul_u32_u24 {tt[2]}, 1152, {tt[2]}
    v_lshrrev_b32 {tt[3]}, 4, {l}
    v_lshl_add_u32 {tt[2]}, {tt[3]}, 3, {tt[2]}
    """)
    for mb in range(3):
        for nb in range(4):
            a(f'ds_write_b128 {tt[1]}, {vr(ACC(nb,mb))} offset:{mb*16384 + nb*1024}')
    a(f"""
    s_waitcnt lgkmcnt(0)
    s_barrier
    """)
    R0 = 80
    for mb in range(3):
        for w in range(4):
            a(f'ds_read_b128 {vr(R0 + (mb*4+w)*4)}, {tt[4]} offset:{mb*16384 + w*4096}')
    for mb in range(3):
        a(f's_waitcnt lgkmcnt({8 - 4*mb})')
        r = R0 + mb * 16
        for i in (0, 2):
            a(f'v_pk_add_f32 {vr(r+i,2)}, {vr(r+i,2)}, {vr(r+4+i,2)}')
            a(f'v_pk_add_f32 {vr(r+8+i,2)}, {vr(r+8+i,2)}, {vr(r+12+i,2)}')
        for i in (0, 2):
            a(f'v_pk_add_f32 {vr(r+i,2)}, {vr(r+i,2)}, {vr(r+8+i,2)}')
        a(f'v_cvt_pk_bf16_f32 v{140+2*mb}, v{r}, v{r+1}')
        a(f'v_cvt_pk_bf16_f32 v{141+2*mb}, v{r+2}, v{r+3}')
        a(f'buffer_store_dwordx2 {vr(140+2*mb,2)}, {tt[2]}, {sr(sOUT)}, s34 offen')
        if mb < 2: a(f's_add_u32 s34, s34, {16*1152}')
    if prof:
        a('s_waitcnt vmcnt(0)')
        stamp(a, prof)
        k1.dump_stamps(a, tt[0])
    a('s_branch L_k1_end')
```

```python
from asmlib import Asm, Ins, Label, Raw

sX, sK, sV, sW, sO = 8, 12, 16, 20, 24
sWO = 52
sWAVE, sR, sKH, sHQ, sB = 3, 4, 5, 6, 7
sT = 30
sM0K = 31
sL = 32
sFB = 33
sXG = [40, 41, 42]
sWG = [43, 44, 45]
sXo, sWo = 46, 47
sT0 = 48
sM0X, sM0W = 49, 50
sTW = 51
vTCH = 255
sTMP = 34
vLANE = 2
def Q(j, s): return 16 + (j * 4 + s) * 4
def OKEEP(j, n): return 96 + (j * 4 + n) * 4
def S(buf, kb): return 176 + (buf * 2 + kb) * 4
def P(buf): return 192 + buf * 4
def CI(j): return 200 + 4 * j
vONES = 220
vKA = [224, 225, 226, 227]
vVA = [228 + i for i in range(8)]
vKD = [236, 237, 238, 239]
vVD = [240, 241]
vXD = [3, 4, 5, 6, 7]
vWD = [8, 9, 10, 11]
vXR = [12, 13]
vWR = [14, 15]
vE, vEP = 242, 243
vT = list(range(244, 256))
def OSEND(j, n): return (j * 4 + (n - 4)) * 4
def LS(j): return 80 + 4 * j
def KF(buf, kb, ds): return 100 + (buf * 8 + kb * 4 + ds) * 4
def VF(buf, n): return 164 + (buf * 8 + n) * 4
def QA(buf, a): return 100 + buf * 16 + a * 4
def QB(buf, j): return 132 + buf * 20 + j * 4
def QACC(j, a): return 96 + (j * 4 + a) * 4

def vr(b, n=4): return f'v[{b}:{b+n-1}]'
def ar(b, n=4): return f'a[{b}:{b+n-1}]'
def sr(b, n=4): return f's[{b}:{b+n-1}]'
def OREG(j, n): return vr(OKEEP(j, n)) if n < 4 else ar(OSEND(j, n))

MF = 'v_mfma_f32_16x16x32_bf16'
XBUF0, XBUFS = 81920, 20480
WBUF0, WBUFS = 16384, 16384
EXQ = 122880
EXF = 131072
OOB = 0x7f000000
TOUCH_LDS = 143360
import os
FILL0 = int(os.environ.get('FILL0', 9))
TOUCH = os.environ.get("NOTOUCH") is None
FUSED = False
QSCALE = 0x3e0293ee

NSTAMP = [0]
def stamp(a, prof, real=False):
    if not prof: return
    k = NSTAMP[0]; NSTAMP[0] += 1
    if k >= 16: return
    real = real or os.environ.get('REAL') is not None
    a(f's_mem{"real" if real else ""}time s[{60+2*k}:{61+2*k}]')
    a('s_waitcnt lgkmcnt(0)')

def interleave(a, mf, fills):
    for i, m in enumerate(mf):
        a(m)
        for f in fills.get(i, []):
            a(f)

def init(a, prof):
    a(f"""
    s_cmp_ge_u32 s2, 256
    s_cbranch_scc1 L_k1_end
    s_load_dwordx2 {sr(sX,2)}, s[0:1], 0
    s_load_dwordx2 {sr(sW,2)}, s[0:1], 24
    s_load_dwordx2 {sr(sK,2)}, s[0:1], 8
    s_load_dwordx2 {sr(sV,2)}, s[0:1], 16
    s_load_dwordx2 {sr(sO,2)}, s[0:1], 56
    s_load_dwordx2 {sr(sWO,2)}, s[0:1], 32
    """)
    if FUSED:
        a('s_load_dwordx2 s[56:57], s[0:1], 40')
        a('s_load_dwordx2 s[92:93], s[0:1], 48')
        a('s_mov_b32 s58, 1474560')
        a('s_mov_b32 s59, 0x00020000')
        a('s_mov_b32 s94, 256')
        a('s_mov_b32 s95, 0x00020000')
    if prof:
        a('s_memrealtime s[96:97]')
    stamp(a, prof)
    a(f"""
    v_lshrrev_b32 v1, 6, v0
    v_and_b32 v{vLANE}, 63, v0
    s_mov_b32 s{sX+2}, 1474560
    s_mov_b32 s{sX+3}, 0x00020000
    v_readfirstlane_b32 s{sWAVE}, v1
    s_mov_b32 s{sW+2}, 4718592
    s_mov_b32 s{sW+3}, 0x00020000
    s_mov_b32 s{sK+2}, 0x4000000
    s_mov_b32 s{sK+3}, 0x00020000
    s_mov_b32 s{sV+2}, 0x4000000
    s_mov_b32 s{sV+3}, 0x00020000
    s_mov_b32 s{sO+2}, 10485760
    s_mov_b32 s{sO+3}, 0x00020000
    s_mov_b32 s{sWO+2}, 4718592
    s_mov_b32 s{sWO+3}, 0x00020000
    s_and_b32 s34, s2, 7
    s_lshr_b32 s35, s2, 3
    s_and_b32 s36, s35, 3
    s_lshl_b32 s{sHQ}, s34, 2
    s_add_u32 s{sHQ}, s{sHQ}, s36
    s_lshr_b32 s{sB}, s35, 2
    s_and_b32 s{sR}, s{sWAVE}, 1
    s_lshr_b32 s{sKH}, s{sWAVE}, 1
    s_add_u32 s37, s{sB}, s36
    s_mul_i32 s38, s37, 43
    s_lshr_b32 s38, s38, 7
    s_mul_i32 s38, s38, 3
    s_sub_u32 s37, s37, s38
    s_mul_i32 s38, s{sB}, 184320
    s_lshl_b32 s39, s{sHQ}, 8
    """)
    for G in range(3):
        a(f"""
    s_mul_i32 s34, s37, 384
    s_add_u32 s{sXG[G]}, s38, s34
    s_mul_i32 s34, s37, 0x180000
    s_add_u32 s{sWG[G]}, s39, s34
    s_add_u32 s37, s37, 1
    s_cmp_eq_u32 s37, 3
    s_cselect_b32 s37, 0, s37
    """)
    l = f'v{vLANE}'
    t0, t1, t2, t3, t4, t5 = [f'v{x}' for x in vT[:6]]
    a(f"""
    s_lshl_b32 s34, s{sWAVE}, 3
    v_lshrrev_b32 {t0}, 3, {l}
    v_add_u32 {t0}, s34, {t0}
    v_mul_u32_u24 {t0}, 1152, {t0}
    v_and_b32 {t1}, 7, {l}
    v_lshrrev_b32 {t2}, 4, {l}
    v_xor_b32 {t1}, {t1}, {t2}
    s_lshl_b32 s35, s{sR}, 2
    v_xor_b32 {t1}, s35, {t1}
    v_lshl_add_u32 v{vXD[0]}, {t1}, 4, {t0}
    """)
    for i in range(1, 5):
        a(f'v_add_u32 v{vXD[i]}, {36864*i}, v{vXD[0]}')
    a(f"""
    s_lshl_b32 s34, s{sWAVE}, 2
    v_add_u32 {t0}, s34, {t2}
    v_lshlrev_b32 {t0}, 13, {t0}
    v_and_b32 {t3}, 15, {l}
    v_lshlrev_b32 {t1}, 2, {t2}
    v_xor_b32 {t1}, {t1}, {t3}
    v_lshl_add_u32 v{vWD[0]}, {t1}, 4, {t0}
    """)
    for i in range(1, 4):
        a(f'v_add_u32 v{vWD[i]}, {131072*i}, v{vWD[0]}')
    a(f"""
    s_lshl_b32 s34, s{sWAVE}, 10
    s_add_u32 s{sM0X}, s34, {XBUF0}
    s_add_u32 s{sM0W}, s34, {WBUF0}
    """)
    a('s_waitcnt lgkmcnt(0)')
    if os.environ.get('PSTAMP'): stamp(a, prof)

def initkv(a):
    l = f'v{vLANE}'
    t0, t1, t2, t3, t4, t5 = [f'v{x}' for x in vT[:6]]
    a(f"""
    s_lshr_b32 s34, s{sHQ}, 1
    s_lshl_b32 s35, s{sB}, 4
    s_add_u32 s34, s34, s35
    s_lshl_b32 s34, s34, 19
    s_lshl_b32 s35, s{sKH}, 18
    s_add_u32 s34, s34, s35
    s_lshl_b32 s35, s{sR}, 12
    s_add_u32 s{sT0}, s34, s35
    s_lshl_b32 s34, s{sKH}, 16
    s_add_u32 s{sM0K}, s34, s35
    s_mov_b32 s{sFB}, 0
    """)
    a(f"""
    v_lshrrev_b32 {t2}, 4, {l}
    v_and_b32 {t3}, 15, {l}
    v_lshlrev_b32 {t0}, 8, {t2}
    v_xor_b32 {t1}, {t3}, {t2}
    """)
    for j in range(4):
        a(f'v_xor_b32 {t4}, {4*j}, {t1}')
        a(f'v_lshl_add_u32 v{vKD[j]}, {t4}, 4, {t0}')
    a(f"""
    v_lshlrev_b32 {t4}, 1, {t2}
    v_xor_b32 {t1}, {t3}, {t4}
    """)
    for p in range(2):
        a(f'v_xor_b32 {t4}, {8*p}, {t1}')
        a(f'v_lshl_add_u32 v{vVD[p]}, {t4}, 4, {t0}')
    if TOUCH:
        a(f"""
    s_lshl_b32 s34, s2, 2
    s_add_u32 s34, s34, s{sWAVE}
    s_mul_i32 s{sTW}, s34, 4608
    v_lshlrev_b32 {t0}, 4, {l}
    v_mov_b32 {t1}, {hex(OOB)}
    v_cmp_gt_u32 vcc, 36, {l}
    s_nop 1
    v_cndmask_b32 v{vTCH}, {t1}, {t0}, vcc
    """)

def dma_x(G, within, i, buf):
    return [f's_add_u32 m0, s{sM0X}, {buf*XBUFS + 4096*i}',
            f'buffer_load_dwordx4 v{vXD[i]}, {sr(sX)}, s{sXo} offen lds']
def dma_w(G, within, i, buf):
    return [f's_add_u32 m0, s{sM0W}, {buf*WBUFS + 4096*i}',
            f'buffer_load_dwordx4 v{vWD[i]}, {sr(sW)}, s{sWo} offen lds']
def chunk_dmas(i9):
    G, w = i9 // 3, i9 % 3
    buf = i9 % 3
    pre = [f's_add_u32 s{sXo}, s{sXG[G]}, {128*w}', f's_add_u32 s{sWo}, s{sWG[G]}, {0x80000*w}']
    grp = []
    for i in range(4):
        grp.append(dma_w(G, w, i, buf))
        grp.append(dma_x(G, w, i, buf))
    grp.append(dma_x(G, w, 4, buf))
    return pre, grp

def tile_dmas(slot):
    g = []
    for j in range(4):
        pre = [f's_add_u32 m0, s{sM0K}, {slot*16384}'] if j == 0 else []
        g.append(pre + [f'buffer_load_dwordx4 v{vKD[j]}, {sr(sK)}, s{sT} offen offset:{1024*j} nt lds'])
    for j in range(4):
        pre = [f's_add_u32 m0, s{sM0K}, {slot*16384 + 8192}'] if j == 0 else []
        g.append(pre + [f'buffer_load_dwordx4 v{vVD[j&1]}, {sr(sV)}, s{sT} offen offset:{1024*j} nt lds'])
    return g

def emit_groups(a, groups):
    for g in groups:
        for k, ins in enumerate(g):
            a(ins)
            if 'm0' in ins.split(',')[0]:
                a('s_nop 0')

def init2(a):
    l = f'v{vLANE}'
    t0, t1, t2, t3, t4, t5, t6 = [f'v{x}' for x in vT[:7]]
    a(f"""
    v_lshrrev_b32 {t2}, 4, {l}
    v_and_b32 {t3}, 15, {l}
    v_lshrrev_b32 {t5}, 2, {l}
    v_and_b32 {t5}, 3, {t5}
    v_and_b32 {t6}, 3, {l}
    s_mul_i32 s34, s{sR}, 10240
    s_add_u32 s34, s34, {XBUF0}
    v_lshlrev_b32 {t0}, 7, {t3}
    v_add_u32 {t0}, s34, {t0}
    v_lshrrev_b32 {t1}, 1, {t3}
    v_xor_b32 {t4}, {t2}, {t1}
    v_lshl_add_u32 v{vXR[0]}, {t4}, 4, {t0}
    v_xor_b32 {t4}, 4, {t4}
    v_lshl_add_u32 v{vXR[1]}, {t4}, 4, {t0}
    v_lshl_add_u32 {t0}, {t2}, 3, {t5}
    v_lshlrev_b32 {t0}, 8, {t0}
    v_add_u32 {t0}, {WBUF0}, {t0}
    s_lshl_b32 s34, s{sKH}, 1
    """)
    for sp in range(2):
        a(f"""
    s_add_u32 s35, s34, {sp}
    v_xor_b32 {t1}, s35, {t5}
    v_lshl_add_u32 {t1}, {t1}, 2, {t6}
    v_lshl_add_u32 v{vWR[sp]}, {t1}, 4, {t0}
    """)
    a(f"""
    s_lshl_b32 s35, s{sKH}, 16
    v_lshlrev_b32 {t0}, 8, {t3}
    v_add_u32 {t0}, s35, {t0}
    """)
    for sp in range(4):
        a(f"""
    s_xor_b32 s36, s34, {sp}
    s_lshl_b32 s36, s36, 2
    v_add_u32 {t1}, s36, {t2}
    v_xor_b32 {t1}, {t1}, {t3}
    v_lshl_add_u32 v{vKA[sp]}, {t1}, 4, {t0}
    """)
    a(f"""
    v_lshl_add_u32 {t0}, {t2}, 2, {t5}
    v_lshlrev_b32 {t0}, 8, {t0}
    s_add_u32 s35, s35, 8192
    v_add_u32 {t0}, s35, {t0}
    v_and_b32 {t1}, 1, {t6}
    v_lshl_add_u32 {t0}, {t1}, 3, {t0}
    v_lshrrev_b32 {t1}, 1, {t6}
    v_lshl_add_u32 {t0}, {t1}, 4, {t0}
    v_and_b32 {t1}, 1, {t2}
    v_lshl_add_u32 {t1}, {t1}, 2, {t5}
    s_lshl_b32 s36, s{sKH}, 2
    """)
    for n in range(8):
        a(f"""
    s_xor_b32 s37, s36, {n}
    v_xor_b32 {t4}, s37, {t1}
    v_lshl_add_u32 v{vVA[n]}, {t4}, 5, {t0}
    """)
    a(f"""
    s_mul_i32 s34, s{sWAVE}, 10240
    s_add_u32 s34, s34, {EXQ}
    v_lshlrev_b32 {t0}, 4, {l}
    v_add_u32 v{vE}, s34, {t0}
    s_xor_b32 s35, s{sWAVE}, 2
    s_mul_i32 s35, s35, 10240
    s_add_u32 s35, s35, {EXQ}
    v_add_u32 v{vEP}, s35, {t0}
    """)
    zero_acc(a, keep=False)
    for i in range(4):
        a(f'v_mov_b32 v{vONES+i}, 0x3f803f80')
    for j in range(5):
        for i in range(4):
            a(f'v_mov_b32 v{CI(j)+i}, 0')

def zero_acc(a, keep=True):
    for i in range(100):
        a(f'v_accvgpr_write_b32 a{i}, 0')
    for i in range(32):
        a(f'v_accvgpr_write_b32 a{VF(1,0)+i}, 0')
    for i in range(4):
        a(f'v_mov_b32 v{P(1)+i}, 0')
    if keep:
        for i in range(80):
            a(f'v_mov_b32 v{96+i}, 0')

def qfrag_reads(u):
    i9, ks = u // 2, u % 2
    buf, fb = i9 % 3, u % 2
    r = []
    for j in range(5):
        r.append(f'ds_read_b128 {ar(QB(fb, j))}, v{vXR[ks]} offset:{XBUFS*buf + 2048*j}')
    for sp in range(2):
        for t in range(2):
            for h in range(2):
                r.append(f'ds_read_b64_tr_b16 {ar(QA(fb, 2*sp+t)+2*h, 2)}, v{vWR[sp]} offset:{WBUFS*buf + 8192*ks + 1024*h + 8*t}')
    A = r[5:]; B = r[:5]
    return [A[0], A[1], B[0], B[1], B[2], B[3], B[4]] + A[2:]

def qproj(a, prof):
    groups = []
    for i9 in range(3):
        pre, grp = chunk_dmas(i9)
        groups += [pre + grp[0]] + grp[1:]
    td = tile_dmas(0)
    groups += [[f's_mov_b32 s{sT}, s{sT0}'] + td[0]] + td[1:]
    tmp = Asm(); initkv(tmp); init2(tmp)
    fill = [i.text for i in tmp.items]
    per = -(-len(fill) // (len(groups) - FILL0))
    for d, g in enumerate(groups):
        for k_, ins in enumerate(g):
            a(ins)
            if 'm0' in ins.split(',')[0]: a('s_nop 0')
        if d >= FILL0 - 1:
            for ins in fill[:per]: a(ins)
            fill = fill[per:]
        if os.environ.get('PSTAMP') and d in (0, 8, 17, 26): stamp(a, prof)
    assert not fill
    a(f's_add_u32 s{sT}, s{sT}, 8192')
    stamp(a, prof)
    a('s_waitcnt vmcnt(26)')
    a('s_barrier')
    stamp(a, prof)
    for r in qfrag_reads(0): a(r)
    vm_at = {1: 17, 3: 17, 5: 9, 7: 9, 9: 9, 11: 9, 13: 9, 15: 8}
    pend = []
    for u in range(18):
        fb = u % 2
        if u % 2 == 1:
            if u in vm_at: a(f's_waitcnt vmcnt({vm_at[u]}) lgkmcnt(0)')
            else: a('s_waitcnt lgkmcnt(0)')
            a('s_barrier')
            if u in (1, 17): stamp(a, prof)
            c = u // 2
            assert not pend
            if c + 3 <= 8:
                pre, grp = chunk_dmas(c + 3)
                pend = [pre + grp[0]] + grp[1:]
            elif c + 3 == 9:
                pend = tile_dmas(1) + [[f's_add_u32 s{sT}, s{sT}, 8192']]
            elif c + 3 == 10:
                pend = tile_dmas(2) + [[f's_add_u32 s{sT}, s{sT}, 8192']]
        else:
            a('s_waitcnt lgkmcnt(0)')
        mf = []
        for t in range(4):
            for j in range(5):
                c_ = '0' if u == 0 else vr(QACC(j, t))
                mf.append(f'{MF} {vr(QACC(j,t))}, {ar(QA(fb,t))}, {ar(QB(fb,j))}, {c_}')
        fills = {}
        reads = qfrag_reads(u + 1) if u < 17 else []
        g = 0
        while reads:
            fills.setdefault(g, []).extend(reads[:2]); reads = reads[2:]; g += 1
        g = 7
        nmax = 6 if u % 2 == 1 else 99
        cnt = 0
        while pend and g < 19 and cnt < nmax:
            grp = pend.pop(0)
            fills.setdefault(g, []).extend(grp[:-1])
            if grp[-1].startswith('buffer'):
                fills.setdefault(g + 1, []).append(grp[-1])
                g += 2
            else:
                fills[g].append(grp[-1]); g += 1
            cnt += 1
        if u % 2 == 0: assert not pend, (u, pend)
        interleave(a, mf, fills)
    assert not pend

def qfin(a, prof):
    stamp(a, prof)
    a(f's_mov_b32 s34, {hex(QSCALE)}')
    a('s_nop 7')
    for j in range(5):
        for t in range(4):
            for i in range(4):
                a(f'v_mul_f32 v{QACC(j,t)+i}, s34, v{QACC(j,t)+i}')
        for sp in range(2):
            for t in range(2):
                b = QACC(j, 2*sp + t)
                a(f'v_cvt_pk_bf16_f32 v{Q(j,sp)+2*t}, v{b}, v{b+1}')
                a(f'v_cvt_pk_bf16_f32 v{Q(j,sp)+2*t+1}, v{b+2}, v{b+3}')
        for sp in range(2):
            a(f'ds_write_b128 v{vE}, {vr(Q(j,sp))} offset:{(j*2+sp)*1024}')
    for i in range(80):
        a(f'v_mov_b32 v{96+i}, 0')
    a('s_waitcnt lgkmcnt(0)')
    a('s_barrier')
    for j in range(5):
        for sp in range(2):
            a(f'ds_read_b128 {vr(Q(j,2+sp))}, v{vEP} offset:{(j*2+sp)*1024}')

def k_reads(buf, slot):
    return [f'ds_read_b128 {ar(KF(buf,kb,ds))}, v{vKA[ds]} offset:{slot*16384 + kb*4096}' for kb in range(2) for ds in range(4)]
def v_reads(buf, slot):
    return [f'ds_read_b64_tr_b16 {ar(VF(buf,n)+2*h, 2)}, v{vVA[n]} offset:{slot*16384 + h*4096}' for n in range(8) for h in range(2)]
def qk_mf(j, kbuf, sbuf, cinit=True):
    m = []
    for kb in range(2):
        for ds in range(4):
            c = (vr(CI(j)) if cinit else '0') if ds == 0 else vr(S(sbuf, kb))
            m.append(f'{MF} {vr(S(sbuf,kb))}, {ar(KF(kbuf,kb,ds))}, {vr(Q(j,ds))}, {c}')
    return m
def pv_mf(j, vbuf, pbuf):
    m = [f'{MF} {ar(LS(j))}, {vr(vONES)}, {vr(P(pbuf))}, {ar(LS(j))}']
    for n in range(8):
        m.append(f'{MF} {OREG(j,n)}, {ar(VF(vbuf,n))}, {vr(P(pbuf))}, {OREG(j,n)}')
    return m

def pre_loop(a, prof):
    a.label('L_attn0')
    for r in k_reads(0, 0) + v_reads(0, 0): a(r)
    a('s_waitcnt vmcnt(8) lgkmcnt(0)')
    a('s_barrier')
    stamp(a, prof)
    mf = qk_mf(0, 0, 0)
    kr = k_reads(1, 1)
    td = tile_dmas(3)
    fills = {}
    for i in range(8):
        fills[i] = [kr[i]]
    interleave(a, mf, fills)
    emit_groups(a, td)
    a(f's_add_u32 s{sT}, s{sT}, 8192')
    a(f's_mov_b32 s{sL}, 0')

def step(a, t):
    td = tile_dmas(t % 4)
    vreads = v_reads((t + 1) & 1, (t + 1) % 4)
    kreads = k_reads(t & 1, (t + 2) % 4)
    for j in range(5):
        pn = (t + j) & 1
        if j < 4: qk = qk_mf(j + 1, t & 1, (pn + 1) & 1)
        else: qk = qk_mf(0, (t + 1) & 1, (pn + 1) & 1)
        if j == 0: pv = pv_mf(4, (t - 1) & 1, (pn + 1) & 1)
        else: pv = pv_mf(j - 1, t & 1, (pn + 1) & 1)
        mf = qk + pv
        fills = {g: [] for g in range(17)}
        for e in range(8):
            reg = S(pn, e // 4) + (e % 4)
            fills[2 * e].append(f'v_exp_f32 v{reg}, v{reg}')
        cv = []
        for c in range(4):
            b = S(pn, c // 2) + 2 * (c % 2)
            cv.append(f'v_cvt_pk_bf16_f32 v{P(pn)+c}, v{b}, v{b+1}')
        free2 = [1, 5, 9, 13, 16]
        free1 = [3, 7, 11, 15]
        rd = []
        if j in (1, 2): rd = [vreads.pop(0) for _ in range(6)]
        elif j == 3: rd = [vreads.pop(0) for _ in range(4)]
        elif j == 4: rd = list(kreads)
        order = [(1, 2), (3, 1), (5, 2), (7, 1), (9, 2)]
        for g, k in order:
            for _ in range(k):
                if rd: fills[g].append(rd.pop(0))
        assert not rd
        for c, g in enumerate(free1):
            fills[g].append(cv[c])
        if j < 4:
            d0 = td[2 * j]; d1 = td[2 * j + 1]
            if len(d0) == 2:
                fills[11].append(d0[0])
            gA, gB = (13, 16) if j < 3 else (9, 13)
            fills[gA].append(d0[-1]); fills[gB].append(d1[-1])
        if j == 3:
            fills[16] += [f's_waitcnt vmcnt({17 if (TOUCH and t in (1, 2)) else 16}) lgkmcnt(0)', 's_barrier']
        if j == 4:
            fills[13].append(f's_add_u32 s{sT}, s{sT}, 8192')
            if TOUCH and t == 0:
                fills[15].append(f's_mov_b32 m0, {TOUCH_LDS}')
                fills[16].append(f'buffer_load_dwordx4 v{vTCH}, {sr(sWO)}, s{sTW} offen lds')
            if TOUCH and t == 1:
                fills[11].append(f's_add_u32 s{sTW}, s{sTW}, 576')
        interleave(a, mf, fills)

def loop(a):
    a.label('L_loop')
    for t in range(4): step(a, t)
    a(f"""
    s_add_u32 s{sL}, s{sL}, 1
    s_cmp_eq_u32 s{sL}, 7
    s_cselect_b32 s{sT}, {hex(OOB)}, s{sT}
    s_cmp_lt_u32 s{sL}, 8
    s_cbranch_scc1 L_loop
    """)

def final_pv(a):
    for m in pv_mf(4, 1, 1): a(m)

def epilogue(a, prof):
    if FUSED == 2:
        import tail2
        return tail2.gen(a, prof)
    t = [f'v{x}' for x in vT]
    l = f'v{vLANE}'
    stamp(a, prof)
    a('s_nop 7')
    for j in range(5):
        a(f'v_accvgpr_read_b32 {t[j]}, a{LS(j)}')
    a(f"""
    v_mov_b32 {t[5]}, 0x33800000
    v_mov_b32 {t[6]}, 0x4e800000
    s_mov_b64 s[36:37], 0
    """)
    for j in range(5):
        a(f'v_cmp_nge_f32 vcc, {t[j]}, {t[5]}')
        a(f's_or_b64 s[36:37], s[36:37], vcc')
        a(f'v_cmp_nle_f32 vcc, {t[j]}, {t[6]}')
        a(f's_or_b64 s[36:37], s[36:37], vcc')
    a(f"""
    s_cmp_lg_u64 s[36:37], 0
    s_cselect_b32 s38, 1, 0
    v_mov_b32 {t[5]}, s38
    s_lshl_b32 s34, s{sWAVE}, 2
    s_add_u32 s34, s34, {EXF}
    v_mov_b32 {t[6]}, s34
    ds_write_b32 {t[6]}, {t[5]}
    s_mul_i32 s34, s{sWAVE}, 1280
    s_add_u32 s34, s34, {EXF+256}
    v_lshlrev_b32 {t[7]}, 2, {l}
    v_add_u32 {t[6]}, s34, {t[7]}
    """)
    for j in range(5):
        a(f'ds_write_b32 {t[6]}, {t[j]} offset:{256*j}')
    a(f"""
    s_xor_b32 s35, s{sWAVE}, 2
    s_mul_i32 s34, s35, 1280
    s_add_u32 s34, s34, {EXF+256}
    v_add_u32 {t[7]}, s34, {t[7]}
    v_mov_b32 {t[8]}, {EXF}
    s_waitcnt vmcnt(0) lgkmcnt(0)
    s_barrier
    ds_read_b128 v[{S(0,0)}:{S(0,0)+3}], {t[8]}
    """)
    for j in range(5):
        a(f'ds_read_b32 v{S(1,0)+j}, {t[7]} offset:{256*j}')
    a(f"""
    s_mul_i32 s34, s{sWAVE}, 20480
    v_lshlrev_b32 {t[9]}, 4, {l}
    v_add_u32 {t[6]}, s34, {t[9]}
    s_mul_i32 s34, s35, 20480
    v_add_u32 {t[7]}, s34, {t[9]}
    """)
    for j in range(5):
        for n in range(4):
            a(f'ds_write_b128 {t[6]}, {ar(OSEND(j,4+n))} offset:{(j*4+n)*1024}')
        if j == 0:
            a('s_waitcnt lgkmcnt(4)')
            b = S(0, 0)
            a(f"""
    v_or_b32 v{b}, v{b}, v{b+1}
    v_or3_b32 v{b}, v{b}, v{b+2}, v{b+3}
    s_nop 0
    v_readfirstlane_b32 s38, v{b}
    s_xor_b32 s39, s{sFB}, 1
    s_and_b32 s38, s38, s39
    s_cmp_lg_u32 s38, 0
    s_cbranch_scc1 L_fallback
    """)
            for jj in range(5):
                a(f'v_add_f32 {t[jj]}, {t[jj]}, v{S(1,0)+jj}')
            for jj in range(5):
                a(f'v_rcp_f32 {t[jj]}, {t[jj]}')
    a('s_waitcnt lgkmcnt(0)')
    a('s_barrier')
    for j in range(5):
        for n in range(4):
            a(f'ds_read_b128 {vr(Q(j,n))}, {t[7]} offset:{(j*4+n)*1024}')
    a(f"""
    s_mul_i32 s34, s{sB}, 10
    s_mul_i32 s35, s{sR}, 5
    s_add_u32 s34, s34, s35
    s_lshl_b32 s34, s34, 7
    s_lshl_b32 s35, s{sHQ}, 2
    s_add_u32 s34, s34, s35
    s_lshl_b32 s35, s{sKH}, 1
    s_add_u32 s34, s34, s35
    s_lshl_b32 s34, s34, 10
    """)
    for j in range(5):
        a(f's_waitcnt lgkmcnt({min(12, 16-4*j)})')
        for n in range(4):
            for i in range(4):
                a(f'v_add_f32 v{OKEEP(j,n)+i}, v{OKEEP(j,n)+i}, v{Q(j,n)+i}')
        for n in range(4):
            for i in range(4):
                a(f'v_mul_f32 v{OKEEP(j,n)+i}, {t[j]}, v{OKEEP(j,n)+i}')
        for u in range(2):
            for hh in range(2):
                b = OKEEP(j, 2*u + hh)
                a(f'v_cvt_pk_bf16_f32 v{Q(j,u)+2*hh}, v{b}, v{b+1}')
                a(f'v_cvt_pk_bf16_f32 v{Q(j,u)+2*hh+1}, v{b+2}, v{b+3}')
        if j > 0: a(f's_add_u32 s34, s34, {128*1024}')
        for u in range(2):
            a(f'buffer_store_dwordx4 {vr(Q(j,u))}, {t[9]}, {sr(sO)}, s34 offen offset:{1024*u}' + (' sc1' if FUSED else ''))
    if FUSED:
        import tail
        tail.gen_tail(a, prof)
    elif prof:
        a('s_waitcnt vmcnt(0)')
        stamp(a, prof)
        dump_stamps(a, t[0])
    a('s_branch L_k1_end')

def dump_dbg(a, tv):
    sel = [int(x) for x in os.environ['DBGP'].split(',')]
    slots = [1, 2, 3, 4, 5, 6, 7, 9, 10, 11, 12, 13, 14, 15]
    a(f's_cmp_lg_u32 s{sWAVE}, 0')
    a('s_cbranch_scc1 L_k1_end')
    a('s_mov_b64 exec, 1')
    a(f's_not_b32 s34, s60')
    a(f'v_mov_b32 v200, s34')
    a(f'v_mov_b32 {tv}, 0')
    a(f'buffer_atomic_umax v200, {tv}, s[92:95], 0 offen offset:{4*slots[0]} sc1')
    for n, k in enumerate(sel):
        a(f'v_mov_b32 v{201+n}, s{60+2*k}')
        a(f'buffer_atomic_umax v{201+n}, {tv}, s[92:95], 0 offen offset:{4*slots[n+1]} sc1')

def dump_stamps(a, tv):
    if os.environ.get('DBGP'): return dump_dbg(a, tv)
    if True:
        a('s_memrealtime s[98:99]')
        a('s_waitcnt lgkmcnt(0)')
        a(f"""
    s_lshl_b32 s34, s2, 2
    s_add_u32 s34, s34, s{sWAVE}
    s_lshl_b32 s34, s34, 7
    s_add_u32 s34, s34, 0x1000000
    s_mov_b32 s{sO+2}, 0x2000000
    v_mov_b32 {tv}, s34
    """)
        for k in range(NSTAMP[0]):
            a(f's_sub_u32 s35, s{60+2*k}, s60')
            a(f'v_mov_b32 v{200+k}, s35')
            a(f'buffer_store_dword v{200+k}, {tv}, {sr(sO)}, 0 offen offset:{4*k}')
        a('v_mov_b32 v230, s96')
        a('v_mov_b32 v231, s98')
        a(f'buffer_store_dword v230, {tv}, {sr(sO)}, 0 offen offset:120')
        a(f'buffer_store_dword v231, {tv}, {sr(sO)}, 0 offen offset:124')

def fallback(a):
    t = [f'v{x}' for x in vT]
    l = f'v{vLANE}'
    a.label('L_fallback')
    a('s_waitcnt vmcnt(0) lgkmcnt(0)')
    a('s_barrier')
    for j in range(5):
        a(f'v_mov_b32 {t[j]}, 0xff800000')
    a(f's_mov_b32 s{sT}, s{sT0}')
    a(f's_mov_b32 s{sL}, 0')
    a.label('L_fb_loop')
    a(f's_mov_b32 m0, s{sM0K}')
    a('s_nop 0')
    for j in range(4):
        a(f'buffer_load_dwordx4 v{vKD[j]}, {sr(sK)}, s{sT} offen offset:{1024*j} lds')
    a('s_waitcnt vmcnt(0)')
    a('s_barrier')
    for r in k_reads(0, 0): a(r)
    a('s_waitcnt lgkmcnt(0)')
    a('s_barrier')
    for j in range(5):
        for m in qk_mf(j, 0, 0, cinit=False): a(m)
        a('s_nop 7')
        b0, b1 = S(0, 0), S(0, 1)
        a(f'v_max3_f32 {t[j]}, {t[j]}, v{b0}, v{b0+1}')
        a(f'v_max3_f32 {t[j]}, {t[j]}, v{b0+2}, v{b0+3}')
        a(f'v_max3_f32 {t[j]}, {t[j]}, v{b1}, v{b1+1}')
        a(f'v_max3_f32 {t[j]}, {t[j]}, v{b1+2}, v{b1+3}')
    a(f"""
    s_add_u32 s{sT}, s{sT}, 8192
    s_add_u32 s{sL}, s{sL}, 1
    s_cmp_lt_u32 s{sL}, 32
    s_cbranch_scc1 L_fb_loop
    """)
    a(f"""
    s_mul_i32 s34, s{sWAVE}, 1280
    s_add_u32 s34, s34, {EXF}
    v_lshlrev_b32 {t[7]}, 2, {l}
    v_add_u32 {t[6]}, s34, {t[7]}
    """)
    for j in range(5):
        a(f'ds_write_b32 {t[6]}, {t[j]} offset:{256*j}')
    a(f"""
    s_waitcnt lgkmcnt(0)
    s_barrier
    v_and_b32 {t[7]}, 15, {l}
    v_lshlrev_b32 {t[7]}, 2, {t[7]}
    s_mul_i32 s34, s{sR}, 1280
    s_add_u32 s34, s34, {EXF}
    v_add_u32 {t[7]}, s34, {t[7]}
    """)
    for j in range(5):
        regs = [S(0,0)+i for i in range(8)]
        k = 0
        for kh in range(2):
            for g in range(4):
                a(f'ds_read_b32 v{regs[k]}, {t[7]} offset:{kh*2560 + j*256 + g*64}')
                k += 1
        a('s_waitcnt lgkmcnt(0)')
        a(f'v_max3_f32 {t[8]}, v{regs[0]}, v{regs[1]}, v{regs[2]}')
        a(f'v_max3_f32 {t[8]}, {t[8]}, v{regs[3]}, v{regs[4]}')
        a(f'v_max3_f32 {t[8]}, {t[8]}, v{regs[5]}, v{regs[6]}')
        a(f'v_max_f32 {t[8]}, {t[8]}, v{regs[7]}')
        for i in range(4):
            a(f'v_sub_f32 v{CI(j)+i}, 0, {t[8]}')
    zero_acc(a, keep=True)
    a(f's_mov_b32 s{sFB}, 1')
    a(f's_mov_b32 s{sT}, s{sT0}')
    a('s_barrier')
    for slot in range(3):
        emit_groups(a, tile_dmas(slot))
        a(f's_add_u32 s{sT}, s{sT}, 8192')
    a('s_waitcnt vmcnt(16)')
    a('s_barrier')
    a('s_branch L_attn0')

def gen_k1(prof=False):
    NSTAMP[0] = 0
    segs = {}
    def seg(name, f, *args):
        x = Asm(); f(x, *args); segs[name] = x; return x
    seg('init', init, prof)
    seg('qproj', qproj, prof)
    seg('qfin', qfin, prof)
    seg('pre', pre_loop, prof)
    seg('loop', loop)
    seg('fin', final_pv)
    seg('epi', epilogue, prof)
    seg('fb', fallback)
    order = ['init', 'qproj', 'qfin', 'pre', 'loop', 'fin', 'epi', 'fb']
    return segs, order
```

```python
import os
from asmlib import Asm, Ins, Label, Raw

sX, sK, sV, sW, sO = 8, 12, 16, 20, 24
sWO = 52
sWAVE, sR, sKH, sHQ, sB = 3, 4, 5, 6, 7
sT = 30
sM0K = 31
sL = 32
sFB = 33
sXB0, sWB0, sXE = 40, 41, 42
sXo, sWo = 46, 47
sT0 = 48
sTB, sTE = 100, 101
KROT = int(os.environ.get('KROT', 0))
def t_adv():
    r = [f's_add_u32 s{sT}, s{sT}, 8192']
    if KROT: r += [f's_cmp_eq_u32 s{sT}, s{sTE}', f's_cselect_b32 s{sT}, s{sTB}, s{sT}']
    return r
sM0X, sM0W = 49, 50
sTW = 51
vTCH = 255
sTMP = 34
vLANE = 2
def Q(j, s): return 16 + (j * 4 + s) * 4
def OKEEP(j, n): return 96 + (j * 4 + n) * 4
def S(buf, kb): return 176 + (buf * 2 + kb) * 4
def P(buf): return 192 + buf * 4
def CI(j): return 200 + 4 * j
vONES = 220
vKA = [224, 225, 226, 227]
vVA = [228 + i for i in range(8)]
vKD = [236, 237, 238, 239]
vVD = [240, 241]
vXD = [3, 4, 5, 6, 7]
vWD = [8, 9, 10, 11]
vXR = [12, 13]
vWR = [14, 15]
vE, vEP = 242, 243
vT = list(range(244, 256))
def OSEND(j, n): return (j * 4 + (n - 4)) * 4
def LS(j): return 80 + 4 * j
def KF(buf, kb, ds): return 100 + (buf * 8 + kb * 4 + ds) * 4
def VF(buf, n): return 164 + (buf * 8 + n) * 4
def QA(buf, a): return 100 + buf * 16 + a * 4
def QB(buf, j): return 132 + buf * 20 + j * 4
def QACC(j, a): return 96 + (j * 4 + a) * 4

def vr(b, n=4): return f'v[{b}:{b+n-1}]'
def ar(b, n=4): return f'a[{b}:{b+n-1}]'
def sr(b, n=4): return f's[{b}:{b+n-1}]'
def OREG(j, n): return vr(OKEEP(j, n)) if n < 4 else ar(OSEND(j, n))

MF = 'v_mfma_f32_16x16x32_bf16'
XBUF0, XBUFS = 81920, 20480
WBUF0, WBUFS = 16384, 16384
EXQ = 122880
EXF = 131072
OOB = 0x7f000000
TOUCH_LDS = 143360
FILL0 = int(os.environ.get('FILL0', 9))
TOUCH = os.environ.get("NOTOUCH") is None
FUSED = False
QSCALE = 0x3e0293ee

NSTAMP = [0]
def stamp(a, prof, real=False):
    if not prof: return
    k = NSTAMP[0]; NSTAMP[0] += 1
    if k >= 16: return
    real = real or os.environ.get('REAL') is not None
    a(f's_mem{"real" if real else ""}time s[{60+2*k}:{61+2*k}]')
    a('s_waitcnt lgkmcnt(0)')

def interleave(a, mf, fills):
    for i, m in enumerate(mf):
        a(m)
        for f in fills.get(i, []):
            a(f)

def init(a, prof):
    a(f"""
    s_cmp_ge_u32 s2, 256
    s_cbranch_scc1 L_k1_end
    s_load_dwordx2 {sr(sX,2)}, s[0:1], 0
    s_load_dwordx2 {sr(sW,2)}, s[0:1], 24
    s_load_dwordx2 {sr(sK,2)}, s[0:1], 8
    s_load_dwordx2 {sr(sV,2)}, s[0:1], 16
    s_load_dwordx2 {sr(sO,2)}, s[0:1], 56
    s_load_dwordx2 {sr(sWO,2)}, s[0:1], 32
    """)
    if FUSED:
        a('s_load_dwordx2 s[56:57], s[0:1], 40')
        a('s_load_dwordx2 s[92:93], s[0:1], 48')
        a('s_mov_b32 s58, 1474560')
        a('s_mov_b32 s59, 0x00020000')
        a('s_mov_b32 s94, 256')
        a('s_mov_b32 s95, 0x00020000')
    if prof:
        a('s_memrealtime s[96:97]')
    stamp(a, prof)
    a(f"""
    v_lshrrev_b32 v1, 6, v0
    v_and_b32 v{vLANE}, 63, v0
    s_mov_b32 s{sX+2}, 1474560
    s_mov_b32 s{sX+3}, 0x00020000
    v_readfirstlane_b32 s{sWAVE}, v1
    s_mov_b32 s{sW+2}, 4718592
    s_mov_b32 s{sW+3}, 0x00020000
    s_mov_b32 s{sK+2}, 0x4000000
    s_mov_b32 s{sK+3}, 0x00020000
    s_mov_b32 s{sV+2}, 0x4000000
    s_mov_b32 s{sV+3}, 0x00020000
    s_mov_b32 s{sO+2}, 10485760
    s_mov_b32 s{sO+3}, 0x00020000
    s_mov_b32 s{sWO+2}, 4718592
    s_mov_b32 s{sWO+3}, 0x00020000
    s_and_b32 s34, s2, 7
    s_lshr_b32 s35, s2, 3
    s_and_b32 s36, s35, 3
    s_lshl_b32 s{sHQ}, s34, 2
    s_add_u32 s{sHQ}, s{sHQ}, s36
    s_lshr_b32 s{sB}, s35, 2
    s_and_b32 s{sR}, s{sWAVE}, 1
    s_lshr_b32 s{sKH}, s{sWAVE}, 1
    """)
    ROT = os.environ.get('ROT', '3')
    if ROT == '9':
        a(f"""
    s_lshl_b32 s37, s36, 1
    s_add_u32 s37, s37, s{sB}
    s_sub_u32 s38, s37, 9
    s_cmp_ge_u32 s37, 9
    s_cselect_b32 s37, s38, s37
    """)
    elif ROT == '3':
        a(f"""
    s_add_u32 s37, s{sB}, s36
    s_mul_i32 s38, s37, 43
    s_lshr_b32 s38, s38, 7
    s_mul_i32 s38, s38, 3
    s_sub_u32 s37, s37, s38
    s_mul_i32 s37, s37, 3
    """)
    else:
        a('s_mov_b32 s37, 0')
    a(f"""
    s_mul_i32 s{sXB0}, s{sB}, 184320
    s_lshl_b32 s{sWB0}, s{sHQ}, 8
    s_add_u32 s{sXE}, s{sXB0}, {9*128}
    s_lshl_b32 s38, s37, 7
    s_add_u32 s{sXo}, s{sXB0}, s38
    s_lshl_b32 s38, s37, 19
    s_add_u32 s{sWo}, s{sWB0}, s38
    """)
    l = f'v{vLANE}'
    t0, t1, t2, t3, t4, t5 = [f'v{x}' for x in vT[:6]]
    a(f"""
    s_lshl_b32 s34, s{sWAVE}, 3
    v_lshrrev_b32 {t0}, 3, {l}
    v_add_u32 {t0}, s34, {t0}
    v_mul_u32_u24 {t0}, 1152, {t0}
    v_and_b32 {t1}, 7, {l}
    v_lshrrev_b32 {t2}, 4, {l}
    v_xor_b32 {t1}, {t1}, {t2}
    s_lshl_b32 s35, s{sR}, 2
    v_xor_b32 {t1}, s35, {t1}
    v_lshl_add_u32 v{vXD[0]}, {t1}, 4, {t0}
    """)
    for i in range(1, 5):
        a(f'v_add_u32 v{vXD[i]}, {36864*i}, v{vXD[0]}')
    a(f"""
    s_lshl_b32 s34, s{sWAVE}, 2
    v_add_u32 {t0}, s34, {t2}
    v_lshlrev_b32 {t0}, 13, {t0}
    v_and_b32 {t3}, 15, {l}
    v_lshlrev_b32 {t1}, 2, {t2}
    v_xor_b32 {t1}, {t1}, {t3}
    v_lshl_add_u32 v{vWD[0]}, {t1}, 4, {t0}
    """)
    for i in range(1, 4):
        a(f'v_add_u32 v{vWD[i]}, {131072*i}, v{vWD[0]}')
    a(f"""
    s_lshl_b32 s34, s{sWAVE}, 10
    s_add_u32 s{sM0X}, s34, {XBUF0}
    s_add_u32 s{sM0W}, s34, {WBUF0}
    """)
    a('s_waitcnt lgkmcnt(0)')
    if os.environ.get('PSTAMP'): stamp(a, prof)

def initkv(a):
    l = f'v{vLANE}'
    t0, t1, t2, t3, t4, t5 = [f'v{x}' for x in vT[:6]]
    a(f"""
    s_lshr_b32 s34, s{sHQ}, 1
    s_lshl_b32 s35, s{sB}, 4
    s_add_u32 s34, s34, s35
    s_lshl_b32 s34, s34, 19
    s_lshl_b32 s35, s{sKH}, 18
    s_add_u32 s34, s34, s35
    s_lshl_b32 s35, s{sR}, 12
    s_add_u32 s{sTB}, s34, s35
    s_add_u32 s{sTE}, s{sTB}, 262144
    s_lshr_b32 s36, s{sHQ}, 1
    s_lshl_b32 s37, s{sB}, 4
    s_add_u32 s36, s36, s37
    s_mul_i32 s36, s36, {KROT}
    s_lshl_b32 s37, s{sKH}, 4
    s_add_u32 s36, s36, s37
    s_and_b32 s36, s36, {31 if KROT else 0}
    s_lshl_b32 s36, s36, 13
    s_add_u32 s{sT0}, s{sTB}, s36
    s_lshl_b32 s34, s{sKH}, 16
    s_add_u32 s{sM0K}, s34, s35
    s_mov_b32 s{sFB}, 0
    """)
    a(f"""
    v_lshrrev_b32 {t2}, 4, {l}
    v_and_b32 {t3}, 15, {l}
    v_lshlrev_b32 {t0}, 8, {t2}
    v_xor_b32 {t1}, {t3}, {t2}
    """)
    for j in range(4):
        a(f'v_xor_b32 {t4}, {4*j}, {t1}')
        a(f'v_lshl_add_u32 v{vKD[j]}, {t4}, 4, {t0}')
    a(f"""
    v_lshlrev_b32 {t4}, 1, {t2}
    v_xor_b32 {t1}, {t3}, {t4}
    """)
    for p in range(2):
        a(f'v_xor_b32 {t4}, {8*p}, {t1}')
        a(f'v_lshl_add_u32 v{vVD[p]}, {t4}, 4, {t0}')
    if TOUCH:
        a(f"""
    s_lshl_b32 s34, s2, 2
    s_add_u32 s34, s34, s{sWAVE}
    s_mul_i32 s{sTW}, s34, 4608
    v_lshlrev_b32 {t0}, 4, {l}
    v_mov_b32 {t1}, {hex(OOB)}
    v_cmp_gt_u32 vcc, 36, {l}
    s_nop 1
    v_cndmask_b32 v{vTCH}, {t1}, {t0}, vcc
    """)

def dma_x(G, within, i, buf):
    return [f's_add_u32 m0, s{sM0X}, {buf*XBUFS + 4096*i}',
            f'buffer_load_dwordx4 v{vXD[i]}, {sr(sX)}, s{sXo} offen lds']
def dma_w(G, within, i, buf):
    return [f's_add_u32 m0, s{sM0W}, {buf*WBUFS + 4096*i}',
            f'buffer_load_dwordx4 v{vWD[i]}, {sr(sW)}, s{sWo} offen lds']
def chunk_dmas(i9):
    G, w = i9 // 3, i9 % 3
    buf = i9 % 3
    pre = [] if i9 == 0 else [f's_add_u32 s{sXo}, s{sXo}, 128', f's_add_u32 s{sWo}, s{sWo}, 0x80000', f's_cmp_eq_u32 s{sXo}, s{sXE}',
                              f's_cselect_b32 s{sXo}, s{sXB0}, s{sXo}', f's_cselect_b32 s{sWo}, s{sWB0}, s{sWo}']
    grp = []
    for i in range(4):
        grp.append(dma_w(G, w, i, buf))
        grp.append(dma_x(G, w, i, buf))
    grp.append(dma_x(G, w, 4, buf))
    return pre, grp

def tile_dmas(slot):
    g = []
    for j in range(4):
        pre = [f's_add_u32 m0, s{sM0K}, {slot*16384}'] if j == 0 else []
        g.append(pre + [f'buffer_load_dwordx4 v{vKD[j]}, {sr(sK)}, s{sT} offen offset:{1024*j} nt lds'])
    for j in range(4):
        pre = [f's_add_u32 m0, s{sM0K}, {slot*16384 + 8192}'] if j == 0 else []
        g.append(pre + [f'buffer_load_dwordx4 v{vVD[j&1]}, {sr(sV)}, s{sT} offen offset:{1024*j} nt lds'])
    return g

def emit_groups(a, groups):
    for g in groups:
        for k, ins in enumerate(g):
            a(ins)
            if 'm0' in ins.split(',')[0]:
                a('s_nop 0')

def init2(a):
    l = f'v{vLANE}'
    t0, t1, t2, t3, t4, t5, t6 = [f'v{x}' for x in vT[:7]]
    a(f"""
    v_lshrrev_b32 {t2}, 4, {l}
    v_and_b32 {t3}, 15, {l}
    v_lshrrev_b32 {t5}, 2, {l}
    v_and_b32 {t5}, 3, {t5}
    v_and_b32 {t6}, 3, {l}
    s_mul_i32 s34, s{sR}, 10240
    s_add_u32 s34, s34, {XBUF0}
    v_lshlrev_b32 {t0}, 7, {t3}
    v_add_u32 {t0}, s34, {t0}
    v_lshrrev_b32 {t1}, 1, {t3}
    v_xor_b32 {t4}, {t2}, {t1}
    v_lshl_add_u32 v{vXR[0]}, {t4}, 4, {t0}
    v_xor_b32 {t4}, 4, {t4}
    v_lshl_add_u32 v{vXR[1]}, {t4}, 4, {t0}
    v_lshl_add_u32 {t0}, {t2}, 3, {t5}
    v_lshlrev_b32 {t0}, 8, {t0}
    v_add_u32 {t0}, {WBUF0}, {t0}
    s_lshl_b32 s34, s{sKH}, 1
    """)
    for sp in range(2):
        a(f"""
    s_add_u32 s35, s34, {sp}
    v_xor_b32 {t1}, s35, {t5}
    v_lshl_add_u32 {t1}, {t1}, 2, {t6}
    v_lshl_add_u32 v{vWR[sp]}, {t1}, 4, {t0}
    """)
    a(f"""
    s_lshl_b32 s35, s{sKH}, 16
    v_lshlrev_b32 {t0}, 8, {t3}
    v_add_u32 {t0}, s35, {t0}
    """)
    for sp in range(4):
        a(f"""
    s_xor_b32 s36, s34, {sp}
    s_lshl_b32 s36, s36, 2
    v_add_u32 {t1}, s36, {t2}
    v_xor_b32 {t1}, {t1}, {t3}
    v_lshl_add_u32 v{vKA[sp]}, {t1}, 4, {t0}
    """)
    a(f"""
    v_lshl_add_u32 {t0}, {t2}, 2, {t5}
    v_lshlrev_b32 {t0}, 8, {t0}
    s_add_u32 s35, s35, 8192
    v_add_u32 {t0}, s35, {t0}
    v_and_b32 {t1}, 1, {t6}
    v_lshl_add_u32 {t0}, {t1}, 3, {t0}
    v_lshrrev_b32 {t1}, 1, {t6}
    v_lshl_add_u32 {t0}, {t1}, 4, {t0}
    v_and_b32 {t1}, 1, {t2}
    v_lshl_add_u32 {t1}, {t1}, 2, {t5}
    s_lshl_b32 s36, s{sKH}, 2
    """)
    for n in range(8):
        a(f"""
    s_xor_b32 s37, s36, {n}
    v_xor_b32 {t4}, s37, {t1}
    v_lshl_add_u32 v{vVA[n]}, {t4}, 5, {t0}
    """)
    a(f"""
    s_mul_i32 s34, s{sWAVE}, 10240
    s_add_u32 s34, s34, {EXQ}
    v_lshlrev_b32 {t0}, 4, {l}
    v_add_u32 v{vE}, s34, {t0}
    s_xor_b32 s35, s{sWAVE}, 2
    s_mul_i32 s35, s35, 10240
    s_add_u32 s35, s35, {EXQ}
    v_add_u32 v{vEP}, s35, {t0}
    """)
    zero_acc(a, keep=False)
    for i in range(4):
        a(f'v_mov_b32 v{vONES+i}, 0x3f803f80')
    for j in range(5):
        for i in range(4):
            a(f'v_mov_b32 v{CI(j)+i}, 0')

def zero_acc(a, keep=True):
    for i in range(100):
        a(f'v_accvgpr_write_b32 a{i}, 0')
    for i in range(32):
        a(f'v_accvgpr_write_b32 a{VF(1,0)+i}, 0')
    for i in range(4):
        a(f'v_mov_b32 v{P(1)+i}, 0')
    if keep:
        for i in range(0, 80, 2):
            a(f'v_pk_mov_b32 {vr(96+i,2)}, 0, 0')

def qfrag_reads(u):
    i9, ks = u // 2, u % 2
    buf, fb = i9 % 3, u % 2
    r = []
    for j in range(5):
        r.append(f'ds_read_b128 {ar(QB(fb, j))}, v{vXR[ks]} offset:{XBUFS*buf + 2048*j}')
    for sp in range(2):
        for t in range(2):
            for h in range(2):
                r.append(f'ds_read_b64_tr_b16 {ar(QA(fb, 2*sp+t)+2*h, 2)}, v{vWR[sp]} offset:{WBUFS*buf + 8192*ks + 1024*h + 8*t}')
    A = r[5:]; B = r[:5]
    return [A[0], A[1], B[0], B[1], B[2], B[3], B[4]] + A[2:]

class VQ:
    def __init__(self): self.q = []
    def add(self, tag): self.q.append(tag)
    def need(self, tags):
        last = -1
        for i, t in enumerate(self.q):
            if t in tags: last = i
        n = len(self.q) - 1 - last
        self.q = self.q[last + 1:]
        return min(n, 63)

T0LATE = os.environ.get('T0LATE', '0') == '1'
def qproj(a, prof):
    q = VQ()
    def tagged(groups, tag): return [(g, tag) for g in groups]
    groups = []
    for i9 in range(3):
        pre, grp = chunk_dmas(i9)
        groups += tagged([pre + grp[0]] + grp[1:], ('C', i9))
    td = tile_dmas(0)
    t0 = tagged([[f's_mov_b32 s{sT}, s{sT0}'] + td[0]] + td[1:-1] + [td[-1] + t_adv()], ('T', 0))
    if not T0LATE: groups += t0; t0 = []
    tmp = Asm(); initkv(tmp); init2(tmp)
    fill = [i.text for i in tmp.items]
    per = -(-len(fill) // (len(groups) - FILL0))
    for d, (g, tag) in enumerate(groups):
        for k_, ins in enumerate(g):
            a(ins)
            if 'm0' in ins.split(',')[0]: a('s_nop 0')
            if ins.startswith('buffer'): q.add(tag)
        if d >= FILL0 - 1:
            for ins in fill[:per]: a(ins)
            fill = fill[per:]
        if os.environ.get('PSTAMP') and d in (0, 8, 17, 26): stamp(a, prof)
    assert not fill
    stamp(a, prof)
    a(f's_waitcnt vmcnt({q.need([("C", 0)])})')
    a('s_barrier')
    stamp(a, prof)
    for r in qfrag_reads(0): a(r)
    pend = []
    for u in range(18):
        fb = u % 2
        if u % 2 == 1:
            c = u // 2
            if c + 1 <= 8: a(f's_waitcnt vmcnt({q.need([("C", c + 1)])}) lgkmcnt(0)')
            else: a('s_waitcnt lgkmcnt(0)')
            a('s_barrier')
            if u in (1, 17): stamp(a, prof)
            assert not pend
            if c + 3 <= 8:
                pre, grp = chunk_dmas(c + 3)
                pend = tagged([pre + grp[0]] + grp[1:], ('C', c + 3))
                if c >= 2 and t0:
                    sl = t0[:3]; t0 = t0[3:]
                    n0 = 8 - len(t0) - len(sl)
                    g0, tg = sl[0]
                    if not any('m0' in x.split(',')[0] for x in g0):
                        g0 = [f's_add_u32 m0, s{sM0K}, {0 if n0 < 4 else 8192}'] + g0
                    pend += [(g0, tg)] + sl[1:]
            elif c + 3 == 9:
                pend = tagged(tile_dmas(1) + [t_adv()], ('T', 1))
            elif c + 3 == 10:
                pend = tagged(tile_dmas(2) + [t_adv()], ('T', 2))
        else:
            a('s_waitcnt lgkmcnt(0)')
        mf = []
        for t in range(4):
            for j in range(5):
                c_ = '0' if u == 0 else vr(QACC(j, t))
                mf.append(f'{MF} {vr(QACC(j,t))}, {ar(QA(fb,t))}, {ar(QB(fb,j))}, {c_}')
        fills = {}
        reads = qfrag_reads(u + 1) if u < 17 else []
        g = 0
        while reads:
            fills.setdefault(g, []).extend(reads[:2]); reads = reads[2:]; g += 1
        g = 7
        nmax = 6 if u % 2 == 1 else 99
        cnt = 0
        while pend and g < 19 and cnt < nmax:
            grp, tag = pend.pop(0)
            bi = [n for n, x in enumerate(grp) if x.startswith('buffer')]
            if bi:
                fills.setdefault(g, []).extend(grp[:bi[0]])
                fills.setdefault(g + 1, []).extend(grp[bi[0]:])
                q.add(tag)
                g += 2
            else:
                fills.setdefault(g, []).extend(grp); g += 1
            cnt += 1
        if u % 2 == 0: assert not pend, (u, pend)
        interleave(a, mf, fills)
    assert not pend and not t0
    assert q.need([('T', 1)]) == 8

def qfin(a, prof):
    stamp(a, prof)
    a(f's_mov_b32 s34, {hex(QSCALE)}')
    a(f's_mov_b32 s35, {hex(QSCALE)}')
    for r in k_reads(0, 0) + v_reads(0, 0): a(r)
    for j in range(5):
        for t in range(4):
            for i in (0, 2):
                a(f'v_pk_mul_f32 {vr(QACC(j,t)+i,2)}, {vr(QACC(j,t)+i,2)}, s[34:35]')
        for sp in range(2):
            for t in range(2):
                b = QACC(j, 2*sp + t)
                a(f'v_cvt_pk_bf16_f32 v{Q(j,sp)+2*t}, v{b}, v{b+1}')
                a(f'v_cvt_pk_bf16_f32 v{Q(j,sp)+2*t+1}, v{b+2}, v{b+3}')
        for sp in range(2):
            a(f'ds_write_b128 v{vE}, {vr(Q(j,sp))} offset:{(j*2+sp)*1024}')
    for i in range(0, 48, 2):
        a(f'v_pk_mov_b32 {vr(96+i,2)}, 0, 0')
    a('s_waitcnt vmcnt(8) lgkmcnt(0)')
    a('s_barrier')
    for j in range(5):
        for sp in range(2):
            a(f'ds_read_b128 {vr(Q(j,2+sp))}, v{vEP} offset:{(j*2+sp)*1024}')
    for i in range(48, 80, 2):
        a(f'v_pk_mov_b32 {vr(96+i,2)}, 0, 0')
    a('s_waitcnt lgkmcnt(8)')

def k_reads(buf, slot):
    return [f'ds_read_b128 {ar(KF(buf,kb,ds))}, v{vKA[ds]} offset:{slot*16384 + kb*4096}' for kb in range(2) for ds in range(4)]
def v_reads(buf, slot):
    return [f'ds_read_b64_tr_b16 {ar(VF(buf,n)+2*h, 2)}, v{vVA[n]} offset:{slot*16384 + h*4096}' for n in range(8) for h in range(2)]
def qk_mf(j, kbuf, sbuf, cinit=True):
    m = []
    for kb in range(2):
        for ds in range(4):
            c = (vr(CI(j)) if cinit else '0') if ds == 0 else vr(S(sbuf, kb))
            m.append(f'{MF} {vr(S(sbuf,kb))}, {ar(KF(kbuf,kb,ds))}, {vr(Q(j,ds))}, {c}')
    return m
def pv_mf(j, vbuf, pbuf):
    m = [f'{MF} {ar(LS(j))}, {vr(vONES)}, {vr(P(pbuf))}, {ar(LS(j))}']
    for n in range(8):
        m.append(f'{MF} {OREG(j,n)}, {ar(VF(vbuf,n))}, {vr(P(pbuf))}, {OREG(j,n)}')
    return m

def pre_loop(a, prof):
    a.label('L_attn0')
    stamp(a, prof)
    mf = qk_mf(0, 0, 0)
    kr = k_reads(1, 1)
    td = tile_dmas(3)
    fills = {}
    for i in range(8):
        fills[i] = [kr[i]]
    interleave(a, mf, fills)
    a('s_waitcnt lgkmcnt(8)')
    a('s_barrier')
    emit_groups(a, td)
    for x in t_adv(): a(x)
    a(f's_mov_b32 s{sL}, 0')

def step(a, t):
    td = tile_dmas(t % 4)
    vreads = v_reads((t + 1) & 1, (t + 1) % 4)
    kreads = k_reads(t & 1, (t + 2) % 4)
    for j in range(5):
        pn = (t + j) & 1
        if j < 4: qk = qk_mf(j + 1, t & 1, (pn + 1) & 1)
        else: qk = qk_mf(0, (t + 1) & 1, (pn + 1) & 1)
        if j == 0: pv = pv_mf(4, (t - 1) & 1, (pn + 1) & 1)
        else: pv = pv_mf(j - 1, t & 1, (pn + 1) & 1)
        mf = qk + pv
        fills = {g: [] for g in range(17)}
        for e in range(8):
            reg = S(pn, e // 4) + (e % 4)
            fills[2 * e].append(f'v_exp_f32 v{reg}, v{reg}')
        cv = []
        for c in range(4):
            b = S(pn, c // 2) + 2 * (c % 2)
            cv.append(f'v_cvt_pk_bf16_f32 v{P(pn)+c}, v{b}, v{b+1}')
        free2 = [1, 5, 9, 13, 16]
        free1 = [3, 7, 11, 15]
        rd = []
        if j in (1, 2): rd = [vreads.pop(0) for _ in range(6)]
        elif j == 3: rd = [vreads.pop(0) for _ in range(4)]
        elif j == 4: rd = list(kreads)
        order = [(1, 2), (3, 1), (5, 2), (7, 1), (9, 2)]
        for g, k in order:
            for _ in range(k):
                if rd: fills[g].append(rd.pop(0))
        assert not rd
        for c, g in enumerate(free1):
            fills[g].append(cv[c])
        if j < 4:
            d0 = td[2 * j]; d1 = td[2 * j + 1]
            if len(d0) == 2:
                fills[11].append(d0[0])
            gA, gB = (13, 16) if j < 3 else (9, 13)
            fills[gA].append(d0[-1]); fills[gB].append(d1[-1])
        if j == 3:
            fills[16] += [f's_waitcnt vmcnt({17 if (TOUCH and t in (1, 2)) else 16}) lgkmcnt(0)', 's_barrier']
        if j == 4:
            ta = t_adv()
            fills[11 if KROT else 13].append(ta[0])
            fills[13] += ta[1:]
            if TOUCH and t == 0:
                fills[15].append(f's_mov_b32 m0, {TOUCH_LDS}')
                fills[16].append(f'buffer_load_dwordx4 v{vTCH}, {sr(sWO)}, s{sTW} offen lds')
            if TOUCH and t == 1:
                fills[15].append(f's_add_u32 s{sTW}, s{sTW}, 576')
        interleave(a, mf, fills)

def loop(a):
    a.label('L_loop')
    for t in range(4): step(a, t)
    a(f"""
    s_add_u32 s{sL}, s{sL}, 1
    s_cmp_eq_u32 s{sL}, 7
    s_cselect_b32 s{sT}, {hex(OOB)}, s{sT}
    s_cmp_lt_u32 s{sL}, 8
    s_cbranch_scc1 L_loop
    """)

def final_pv(a):
    for m in pv_mf(4, 1, 1): a(m)

def epilogue(a, prof):
    if FUSED == 2:
        import tail2
        return tail2.gen(a, prof)
    t = [f'v{x}' for x in vT]
    l = f'v{vLANE}'
    stamp(a, prof)
    a('s_nop 7')
    for j in range(5):
        a(f'v_accvgpr_read_b32 {t[j]}, a{LS(j)}')
    a(f"""
    v_mov_b32 {t[5]}, 0x33800000
    v_mov_b32 {t[6]}, 0x4e800000
    s_mov_b64 s[36:37], 0
    """)
    for j in range(5):
        a(f'v_cmp_nge_f32 vcc, {t[j]}, {t[5]}')
        a(f's_or_b64 s[36:37], s[36:37], vcc')
        a(f'v_cmp_nle_f32 vcc, {t[j]}, {t[6]}')
        a(f's_or_b64 s[36:37], s[36:37], vcc')
    a(f"""
    s_cmp_lg_u64 s[36:37], 0
    s_cselect_b32 s38, 1, 0
    v_mov_b32 {t[5]}, s38
    s_lshl_b32 s34, s{sWAVE}, 2
    s_add_u32 s34, s34, {EXF}
    v_mov_b32 {t[6]}, s34
    ds_write_b32 {t[6]}, {t[5]}
    s_mul_i32 s34, s{sWAVE}, 1280
    s_add_u32 s34, s34, {EXF+256}
    v_lshlrev_b32 {t[7]}, 2, {l}
    v_add_u32 {t[6]}, s34, {t[7]}
    """)
    for j in range(5):
        a(f'ds_write_b32 {t[6]}, {t[j]} offset:{256*j}')
    a(f"""
    s_xor_b32 s35, s{sWAVE}, 2
    s_mul_i32 s34, s35, 1280
    s_add_u32 s34, s34, {EXF+256}
    v_add_u32 {t[7]}, s34, {t[7]}
    v_mov_b32 {t[8]}, {EXF}
    s_waitcnt vmcnt(0) lgkmcnt(0)
    s_barrier
    ds_read_b128 v[{S(0,0)}:{S(0,0)+3}], {t[8]}
    """)
    for j in range(5):
        a(f'ds_read_b32 v{S(1,0)+j}, {t[7]} offset:{256*j}')
    a(f"""
    s_mul_i32 s34, s{sWAVE}, 20480
    v_lshlrev_b32 {t[9]}, 4, {l}
    v_add_u32 {t[6]}, s34, {t[9]}
    s_mul_i32 s34, s35, 20480
    v_add_u32 {t[7]}, s34, {t[9]}
    """)
    for j in range(5):
        for n in range(4):
            a(f'ds_write_b128 {t[6]}, {ar(OSEND(j,4+n))} offset:{(j*4+n)*1024}')
        if j == 0:
            a('s_waitcnt lgkmcnt(4)')
            b = S(0, 0)
            a(f"""
    v_or_b32 v{b}, v{b}, v{b+1}
    v_or3_b32 v{b}, v{b}, v{b+2}, v{b+3}
    s_nop 0
    v_readfirstlane_b32 s38, v{b}
    s_xor_b32 s39, s{sFB}, 1
    s_and_b32 s38, s38, s39
    s_cmp_lg_u32 s38, 0
    s_cbranch_scc1 L_fallback
    """)
            for jj in range(5):
                a(f'v_add_f32 {t[jj]}, {t[jj]}, v{S(1,0)+jj}')
            for jj in range(5):
                a(f'v_rcp_f32 {t[jj]}, {t[jj]}')
    a('s_waitcnt lgkmcnt(0)')
    a('s_barrier')
    for j in range(5):
        for n in range(4):
            a(f'ds_read_b128 {vr(Q(j,n))}, {t[7]} offset:{(j*4+n)*1024}')
    a(f"""
    s_mul_i32 s34, s{sB}, 10
    s_mul_i32 s35, s{sR}, 5
    s_add_u32 s34, s34, s35
    s_lshl_b32 s34, s34, 7
    s_lshl_b32 s35, s{sHQ}, 2
    s_add_u32 s34, s34, s35
    s_lshl_b32 s35, s{sKH}, 1
    s_add_u32 s34, s34, s35
    s_lshl_b32 s34, s34, 10
    """)
    for j in range(5):
        a(f's_waitcnt lgkmcnt({min(12, 16-4*j)})')
        for n in range(4):
            for i in range(4):
                a(f'v_add_f32 v{OKEEP(j,n)+i}, v{OKEEP(j,n)+i}, v{Q(j,n)+i}')
        for n in range(4):
            for i in range(4):
                a(f'v_mul_f32 v{OKEEP(j,n)+i}, {t[j]}, v{OKEEP(j,n)+i}')
        for u in range(2):
            for hh in range(2):
                b = OKEEP(j, 2*u + hh)
                a(f'v_cvt_pk_bf16_f32 v{Q(j,u)+2*hh}, v{b}, v{b+1}')
                a(f'v_cvt_pk_bf16_f32 v{Q(j,u)+2*hh+1}, v{b+2}, v{b+3}')
        if j > 0: a(f's_add_u32 s34, s34, {128*1024}')
        for u in range(2):
            a(f'buffer_store_dwordx4 {vr(Q(j,u))}, {t[9]}, {sr(sO)}, s34 offen offset:{1024*u}' + (' sc1' if FUSED else ''))
    if FUSED:
        import tail
        tail.gen_tail(a, prof)
    elif prof:
        a('s_waitcnt vmcnt(0)')
        stamp(a, prof)
        dump_stamps(a, t[0])
    a('s_branch L_k1_end')

def dump_dbg(a, tv):
    sel = [int(x) for x in os.environ['DBGP'].split(',')]
    slots = [1, 2, 3, 4, 5, 6, 7, 9, 10, 11, 12, 13, 14, 15]
    a(f's_cmp_lg_u32 s{sWAVE}, 0')
    a('s_cbranch_scc1 L_k1_end')
    a('s_mov_b64 exec, 1')
    a(f's_not_b32 s34, s60')
    a(f'v_mov_b32 v200, s34')
    a(f'v_mov_b32 {tv}, 0')
    a(f'buffer_atomic_umax v200, {tv}, s[92:95], 0 offen offset:{4*slots[0]} sc1')
    for n, k in enumerate(sel):
        a(f'v_mov_b32 v{201+n}, s{60+2*k}')
        a(f'buffer_atomic_umax v{201+n}, {tv}, s[92:95], 0 offen offset:{4*slots[n+1]} sc1')

def dump_stamps(a, tv):
    if os.environ.get('DBGP'): return dump_dbg(a, tv)
    if True:
        a('s_memrealtime s[98:99]')
        a('s_waitcnt lgkmcnt(0)')
        a(f"""
    s_lshl_b32 s34, s2, 2
    s_add_u32 s34, s34, s{sWAVE}
    s_lshl_b32 s34, s34, 7
    s_add_u32 s34, s34, 0x1000000
    s_mov_b32 s{sO+2}, 0x2000000
    v_mov_b32 {tv}, s34
    """)
        for k in range(NSTAMP[0]):
            a(f's_sub_u32 s35, s{60+2*k}, s60')
            a(f'v_mov_b32 v{200+k}, s35')
            a(f'buffer_store_dword v{200+k}, {tv}, {sr(sO)}, 0 offen offset:{4*k}')
        a('v_mov_b32 v230, s96')
        a('v_mov_b32 v231, s98')
        a(f'buffer_store_dword v230, {tv}, {sr(sO)}, 0 offen offset:120')
        a(f'buffer_store_dword v231, {tv}, {sr(sO)}, 0 offen offset:124')

def fallback(a):
    t = [f'v{x}' for x in vT]
    l = f'v{vLANE}'
    a.label('L_fallback')
    a('s_waitcnt vmcnt(0) lgkmcnt(0)')
    a('s_barrier')
    for j in range(5):
        a(f'v_mov_b32 {t[j]}, 0xff800000')
    a(f's_sub_u32 s{sT}, s{sTE}, 262144')
    a(f's_mov_b32 s{sL}, 0')
    a.label('L_fb_loop')
    a(f's_mov_b32 m0, s{sM0K}')
    a('s_nop 0')
    for j in range(4):
        a(f'buffer_load_dwordx4 v{vKD[j]}, {sr(sK)}, s{sT} offen offset:{1024*j} lds')
    a('s_waitcnt vmcnt(0)')
    a('s_barrier')
    for r in k_reads(0, 0): a(r)
    a('s_waitcnt lgkmcnt(0)')
    a('s_barrier')
    for j in range(5):
        for m in qk_mf(j, 0, 0, cinit=False): a(m)
        a('s_nop 7')
        b0, b1 = S(0, 0), S(0, 1)
        a(f'v_max3_f32 {t[j]}, {t[j]}, v{b0}, v{b0+1}')
        a(f'v_max3_f32 {t[j]}, {t[j]}, v{b0+2}, v{b0+3}')
        a(f'v_max3_f32 {t[j]}, {t[j]}, v{b1}, v{b1+1}')
        a(f'v_max3_f32 {t[j]}, {t[j]}, v{b1+2}, v{b1+3}')
    a(f"""
    s_add_u32 s{sT}, s{sT}, 8192
    s_add_u32 s{sL}, s{sL}, 1
    s_cmp_lt_u32 s{sL}, 32
    s_cbranch_scc1 L_fb_loop
    """)
    a(f"""
    s_mul_i32 s34, s{sWAVE}, 1280
    s_add_u32 s34, s34, {EXF}
    v_lshlrev_b32 {t[7]}, 2, {l}
    v_add_u32 {t[6]}, s34, {t[7]}
    """)
    for j in range(5):
        a(f'ds_write_b32 {t[6]}, {t[j]} offset:{256*j}')
    a(f"""
    s_waitcnt lgkmcnt(0)
    s_barrier
    v_and_b32 {t[7]}, 15, {l}
    v_lshlrev_b32 {t[7]}, 2, {t[7]}
    s_mul_i32 s34, s{sR}, 1280
    s_add_u32 s34, s34, {EXF}
    v_add_u32 {t[7]}, s34, {t[7]}
    """)
    for j in range(5):
        regs = [S(0,0)+i for i in range(8)]
        k = 0
        for kh in range(2):
            for g in range(4):
                a(f'ds_read_b32 v{regs[k]}, {t[7]} offset:{kh*2560 + j*256 + g*64}')
                k += 1
        a('s_waitcnt lgkmcnt(0)')
        a(f'v_max3_f32 {t[8]}, v{regs[0]}, v{regs[1]}, v{regs[2]}')
        a(f'v_max3_f32 {t[8]}, {t[8]}, v{regs[3]}, v{regs[4]}')
        a(f'v_max3_f32 {t[8]}, {t[8]}, v{regs[5]}, v{regs[6]}')
        a(f'v_max_f32 {t[8]}, {t[8]}, v{regs[7]}')
        for i in range(4):
            a(f'v_sub_f32 v{CI(j)+i}, 0, {t[8]}')
    zero_acc(a, keep=True)
    a(f's_mov_b32 s{sFB}, 1')
    a(f's_mov_b32 s{sT}, s{sT0}')
    a('s_barrier')
    for slot in range(3):
        emit_groups(a, tile_dmas(slot))
        for x in t_adv(): a(x)
    a('s_waitcnt vmcnt(8)')
    a('s_barrier')
    for r in k_reads(0, 0) + v_reads(0, 0): a(r)
    a('s_waitcnt lgkmcnt(0)')
    a('s_branch L_attn0')

def gen_k1(prof=False):
    NSTAMP[0] = 0
    segs = {}
    def seg(name, f, *args):
        x = Asm(); f(x, *args); segs[name] = x; return x
    seg('init', init, prof)
    seg('qproj', qproj, prof)
    seg('qfin', qfin, prof)
    seg('pre', pre_loop, prof)
    seg('loop', loop)
    seg('fin', final_pv)
    seg('epi', epilogue, prof)
    seg('fb', fallback)
    order = ['init', 'qproj', 'qfin', 'pre', 'loop', 'fin', 'epi', 'fb']
    return segs, order
```

```python
import os
from asmlib import Asm
import k1
from k1 import (vr, ar, sr, MF, sWAVE, sB, sO, sWO, sR, sKH, sHQ, sFB, vLANE, stamp, vT, LS, S, Q, OKEEP, OSEND, CI)
sOUT, sDBG = 56, 92
sMT, sNT, sA, sBo, sM0 = 40, 41, 42, 43, 44
sXA, sXB = 45, 46
NWG = 243
MAP = os.environ.get('MAP', 'A')
DO = int(os.environ.get('DO', 7))
NREG = 22
SB = [32768, 49152, 98304, 114688, 0, 16384, 65536, 81920, 131072, 147456]
EXL = 151552
EXA = [0, 65536, 131072, 20480]
EXB = [12288, 77824, 143360, 86016]
vWO = [3, 4, 5, 6]; vO = [7, 8, 9]; T = [10, 11, 12, 13, 14, 15]
vPOLL = 1
def vRD(base, nb): return 16 + base * 4 + nb
def ACC(nb, mb): return 28 + (nb * 3 + mb) * 4
def OR(slot, mb): return 76 + (slot * 3 + mb) * 4
assert 76 + DO * 12 <= 160
def WR(k, nb):
    if k < 16: return ('a', k * 16 + nb * 4)
    if k < NREG: return ('v', 160 + (k - 16) * 16 + nb * 4)
    return ('a', (k & 1) * 16 + nb * 4)
def rtxt(r, n=4, off=0): return f'{r[0]}[{r[1]+off}:{r[1]+off+n-1}]'

def sel4(a, dst, vals):
    a(f's_mov_b32 s{dst}, {vals[0]}')
    for w in range(1, 4):
        a(f's_cmp_eq_u32 s{sWAVE}, {w}')
        a(f's_cselect_b32 s{dst}, {vals[w]}, s{dst}')

def tile_part1(a):
    t = [f'v{x}' for x in T]
    l = f'v{vLANE}'
    a(f"""
    s_and_b32 s34, s2, 7
    s_lshr_b32 s35, s2, 3
    s_mul_i32 s36, s34, 30
    s_min_u32 s37, s34, 3
    s_add_u32 s36, s36, s37
    s_add_u32 s36, s36, s35
    """)
    if MAP == 'B':
        a(f"""
    s_mul_i32 s37, s36, 7282
    s_lshr_b32 s{sMT}, s37, 16
    s_mul_i32 s38, s{sMT}, 9
    s_sub_u32 s{sNT}, s36, s38
    """)
    elif MAP == 'C':
        a(f"""
    s_lshr_b32 s{sMT}, s36, 2
    s_and_b32 s{sNT}, s36, 3
    s_sub_u32 s37, s36, 108
    s_mul_i32 s38, s37, 13108
    s_lshr_b32 s38, s38, 16
    s_mul_i32 s39, s38, 5
    s_sub_u32 s39, s37, s39
    s_add_u32 s39, s39, 4
    s_cmp_ge_u32 s36, 108
    s_cselect_b32 s{sMT}, s38, s{sMT}
    s_cselect_b32 s{sNT}, s39, s{sNT}
    """)
    else:
        a(f"""
    s_mul_i32 s37, s36, 811
    s_lshr_b32 s37, s37, 16
    s_mul_i32 s38, s37, 81
    s_sub_u32 s38, s36, s38
    s_mul_i32 s39, s38, 171
    s_lshr_b32 s{sMT}, s39, 9
    s_mul_i32 s39, s{sMT}, 3
    s_sub_u32 s39, s38, s39
    s_mul_i32 s37, s37, 3
    s_add_u32 s{sNT}, s37, s39
    """)
    a(f"""
    s_mul_i32 s{sBo}, s{sWAVE}, 1179648
    s_lshl_b32 s{sM0}, s{sWAVE}, 12
    s_lshl_b32 s34, s{sNT}, 7
    v_lshrrev_b32 {t[0]}, 3, {l}
    v_mul_u32_u24 {t[0]}, 1152, {t[0]}
    v_add_u32 {t[0]}, s34, {t[0]}
    v_lshrrev_b32 {t[1]}, 4, {l}
    v_lshlrev_b32 {t[1]}, 1, {t[1]}
    v_and_b32 {t[2]}, 7, {l}
    v_xor_b32 {t[1]}, {t[1]}, {t[2]}
    v_lshl_add_u32 v{vWO[0]}, {t[1]}, 4, {t[0]}
    """)
    for p in range(1, 4):
        a(f'v_add_u32 v{vWO[p]}, {p*(8*1152-1024)}, v{vWO[0]}')

def tile_part2(a):
    t = [f'v{x}' for x in T]
    l = f'v{vLANE}'
    a(f"""
    s_mul_i32 s34, s{sMT}, {3*131072}
    s_lshl_b32 s35, s{sWAVE}, 15
    s_add_u32 s{sA}, s34, s35
    v_lshlrev_b32 {t[0]}, 4, {l}
    v_mov_b32 v{vO[0]}, {t[0]}
    v_add_u32 v{vO[1]}, 131072, {t[0]}
    v_add_u32 v{vO[2]}, 262144, {t[0]}
    v_lshrrev_b32 {t[0]}, 4, {l}
    v_lshrrev_b32 {t[1]}, 2, {l}
    v_and_b32 {t[1]}, 3, {t[1]}
    v_lshl_add_u32 {t[0]}, {t[0]}, 2, {t[1]}
    v_lshrrev_b32 {t[1]}, 1, {t[0]}
    v_and_b32 {t[1]}, 3, {t[1]}
    v_lshlrev_b32 {t[0]}, 7, {t[0]}
    v_add_u32 {t[0]}, s{sM0}, {t[0]}
    v_and_b32 {t[2]}, 1, {l}
    v_lshl_add_u32 {t[0]}, {t[2]}, 3, {t[0]}
    v_lshrrev_b32 {t[2]}, 1, {l}
    v_and_b32 {t[2]}, 1, {t[2]}
    v_lshl_add_u32 {t[0]}, {t[2]}, 4, {t[0]}
    """)
    for nb in range(4):
        a(f'v_xor_b32 {t[2]}, {nb}, {t[1]}')
        a(f'v_lshl_add_u32 v{vRD(0,nb)}, {t[2]}, 5, {t[0]}')
        a(f'v_add_u32 v{vRD(1,nb)}, 65536, v{vRD(0,nb)}')
        a(f'v_add_u32 v{vRD(2,nb)}, 131072, v{vRD(0,nb)}')
    a(f"""
    s_mul_i32 s34, s{sMT}, 48
    s_mul_i32 s35, s34, 52429
    s_lshr_b32 s35, s35, 23
    s_add_u32 s34, s34, 47
    s_min_u32 s34, s34, 1279
    s_mul_i32 s36, s34, 52429
    s_lshr_b32 s36, s36, 23
    s_lshl_b32 s35, s35, 5
    s_lshl_b32 s36, s36, 5
    v_mov_b32 {t[0]}, s35
    v_mov_b32 {t[1]}, s36
    v_cmp_eq_u32 vcc, 1, {l}
    s_nop 1
    v_cndmask_b32 v{vPOLL}, {t[0]}, {t[1]}, vcc
    """)

class VQ:
    def __init__(self): self.q = []
    def add(self, tag): self.q.append(tag)
    def need(self, tags):
        last = -1
        for i, t in enumerate(self.q):
            if t in tags: last = i
        n = len(self.q) - 1 - last
        self.q = self.q[last + 1:]
        return min(n, 63)

def w_ops(k):
    return ([f's_add_u32 m0, s{sM0}, {SB[k % 10]}'],
            [f'buffer_load_dwordx4 v{vWO[p]}, {sr(sWO)}, s{sBo} offen offset:{1024*p} lds' for p in range(4)],
            [f's_add_u32 s{sBo}, s{sBo}, 36864'])
def emit_w(a, q, k):
    pre, d, post = w_ops(k)
    a(pre[0]); a('s_nop 0')
    for x in d:
        a(x); q.add(('W', k))
    a(post[0])
def o_ops(k):
    return ([f'buffer_load_dwordx4 {vr(OR(k % DO, mb))}, v{vO[mb]}, {sr(sO)}, s{sA} offen sc1' for mb in range(3)],
            [f's_add_u32 s{sA}, s{sA}, 1024'])
def areads(k):
    sb = SB[k % 10]
    return [f'ds_read_b64_tr_b16 {rtxt(WR(k, nb), 2, 2*h)}, v{vRD(sb >> 16, nb)} offset:{(sb & 65535) + h*2048}'
            for nb in range(4) for h in range(2)]

def gen(a, prof):
    t = [f'v{x}' for x in vT]
    l = f'v{vLANE}'
    q = VQ()
    stamp(a, prof)
    a('s_nop 7')
    for j in range(5):
        a(f'v_accvgpr_read_b32 {t[j]}, a{LS(j)}')
    a(f"""
    v_mov_b32 {t[5]}, 0x33800000
    v_mov_b32 {t[6]}, 0x4e800000
    s_mov_b64 s[36:37], 0
    """)
    for j in range(5):
        a(f'v_cmp_nge_f32 vcc, {t[j]}, {t[5]}')
        a(f's_or_b64 s[36:37], s[36:37], vcc')
        a(f'v_cmp_nle_f32 vcc, {t[j]}, {t[6]}')
        a(f's_or_b64 s[36:37], s[36:37], vcc')
    vPA, vPB = S(1, 1) + 1, S(1, 1) + 2
    a(f'v_lshlrev_b32 {t[9]}, 4, {l}')
    sel4(a, sXA, EXA); sel4(a, sXB, EXB)
    a(f'v_add_u32 {t[10]}, s{sXA}, {t[9]}')
    a(f'v_add_u32 {t[8]}, s{sXB}, {t[9]}')
    sends = []
    for j in range(5):
        for n in range(4):
            if j < 3: sends.append(f'ds_write_b128 {t[10]}, {ar(OSEND(j,4+n))} offset:{(j*4+n)*1024}')
            else: sends.append(f'ds_write_b128 {t[8]}, {ar(OSEND(j,4+n))} offset:{((j-3)*4+n)*1024}')
    f = Asm()
    f(f"""
    s_cmp_lg_u64 s[36:37], 0
    s_cselect_b32 s38, 1, 0
    v_mov_b32 {t[5]}, s38
    s_lshl_b32 s34, s{sWAVE}, 2
    s_add_u32 s34, s34, {EXL}
    v_mov_b32 {t[6]}, s34
    ds_write_b32 {t[6]}, {t[5]}
    s_mul_i32 s34, s{sWAVE}, 1280
    s_add_u32 s34, s34, {EXL+256}
    v_lshlrev_b32 {t[7]}, 2, {l}
    v_add_u32 {t[6]}, s34, {t[7]}
    """)
    for j in range(5):
        f(f'ds_write_b32 {t[6]}, {t[j]} offset:{256*j}')
    f(f"""
    s_xor_b32 s35, s{sWAVE}, 2
    s_mul_i32 s34, s35, 1280
    s_add_u32 s34, s34, {EXL+256}
    v_add_u32 {t[7]}, s34, {t[7]}
    v_mov_b32 {t[5]}, {EXL}
    """)
    PA = [EXA[w ^ 2] for w in range(4)]; PB = [EXB[w ^ 2] for w in range(4)]
    sel4(f, sXA, PA); sel4(f, sXB, PB)
    f(f'v_add_u32 v{vPA}, s{sXA}, {t[9]}')
    f(f'v_add_u32 v{vPB}, s{sXB}, {t[9]}')
    tile_part1(f)
    fill = [i.text for i in f.items if hasattr(i, 'dst')]
    per = -(-len(fill) // len(sends))
    for s_ in sends:
        a(s_)
        for x in fill[:per]: a(x)
        fill = fill[per:]
    a(f"""
    s_mul_i32 s34, s{sB}, 10
    s_mul_i32 s35, s{sR}, 5
    s_add_u32 s34, s34, s35
    s_lshl_b32 s34, s34, 7
    s_lshl_b32 s35, s{sHQ}, 2
    s_add_u32 s34, s34, s35
    s_lshl_b32 s35, s{sKH}, 1
    s_add_u32 s34, s34, s35
    s_lshl_b32 s{sA}, s34, 10
    s_waitcnt vmcnt(0) lgkmcnt(0)
    s_barrier
    """)
    stamp(a, prof)
    def pread(j, n, dst):
        if j < 3: return f'ds_read_b128 {vr(dst)}, v{vPA} offset:{(j*4+n)*1024}'
        return f'ds_read_b128 {vr(dst)}, v{vPB} offset:{((j-3)*4+n)*1024}'
    def PD(j, n): return CI(0) + 4 * n if j == 0 else Q(j, n)
    a(f'ds_read_b128 v[{S(0,0)}:{S(0,0)+3}], {t[5]}')
    for j in range(5):
        a(f'ds_read_b32 v{S(1,0)+j}, {t[7]} offset:{256*j}')
    for n in range(4): a(pread(0, n, PD(0, n)))
    b = S(0, 0)
    a(f"""
    s_waitcnt lgkmcnt(4)
    v_or_b32 v{b}, v{b}, v{b+1}
    v_or3_b32 v{b}, v{b}, v{b+2}, v{b+3}
    s_nop 0
    v_readfirstlane_b32 s38, v{b}
    s_xor_b32 s39, s{sFB}, 1
    s_and_b32 s38, s38, s39
    s_cmp_lg_u32 s38, {'s38' if any(x.startswith('no') for x in k1.XP) else 0}
    s_cbranch_scc1 L_fallback
    """)
    for j in range(1, 5):
        for n in range(4): a(pread(j, n, PD(j, n)))
    for jj in range(5):
        a(f'v_add_f32 {t[jj]}, {t[jj]}, v{S(1,0)+jj}')
    for jj in range(5):
        a(f'v_rcp_f32 {t[jj]}, {t[jj]}')
    emit_w(a, q, 0)
    for j in range(5):
        a(f's_waitcnt lgkmcnt({min(12, 16-4*j)})')
        rp = vT[j] & ~1
        sel = 'op_sel_hi:[1,0]' if vT[j] % 2 == 0 else 'op_sel:[0,1] op_sel_hi:[1,1]'
        for n in range(4):
            for i in (0, 2):
                o = OKEEP(j, n) + i
                a(f'v_pk_add_f32 {vr(o,2)}, {vr(o,2)}, {vr(PD(j,n)+i,2)}')
        for n in range(4):
            for i in (0, 2):
                o = OKEEP(j, n) + i
                a(f'v_pk_mul_f32 {vr(o,2)}, {vr(o,2)}, {vr(rp,2)} {sel}')
        for u in range(2):
            for hh in range(2):
                bb = OKEEP(j, 2*u + hh)
                a(f'v_cvt_pk_bf16_f32 v{Q(j,u)+2*hh}, v{bb}, v{bb+1}')
                a(f'v_cvt_pk_bf16_f32 v{Q(j,u)+2*hh+1}, v{bb+2}, v{bb+3}')
        for u in range(2):
            a(f'buffer_store_dwordx4 {vr(Q(j,u))}, {t[9]}, {sr(sO)}, s{sA} offen offset:{1024*u} sc1')
            q.add(('S', j))
        if j < 4: a(f's_add_u32 s{sA}, s{sA}, {128*1024}')
        if j < 3: emit_w(a, q, j + 1)
    a('s_nop 1')
    tile_part2(a)
    a('s_waitcnt vmcnt(0)')
    q.q = []
    a('s_barrier')
    stamp(a, prof)
    a(f"""
    s_cmp_lg_u32 s{sWAVE}, 0
    s_cbranch_scc1 L_t_nosig
    s_lshl_b32 s34, s{sB}, 5
    v_mov_b32 v{T[0]}, s34
    v_mov_b32 v{T[1]}, 1
    s_mov_b64 exec, 1
    buffer_atomic_add v{T[1]}, v{T[0]}, {sr(sDBG)}, 0 offen sc1
    s_mov_b64 exec, -1
    """)
    a.label('L_t_nosig')
    a(f"""
    s_cmp_ge_u32 s2, {NWG}
    s_cbranch_scc1 L_k1_end
    """)
    for x in areads(0): a(x)
    for k in range(4, 10): emit_w(a, q, k)
    POLLS = [int(x) for x in os.environ.get('POLLS', '26,29').split(',')]
    vP = [T[2], T[3], T[4]]
    for k in range(NREG):
        nxt = k + 1
        if nxt < NREG:
            n = q.need([('W', nxt)]) if any(x == ('W', nxt) for x in q.q) else None
            if n is not None: a(f's_waitcnt vmcnt({n})')
            rd = areads(nxt)
            for x in rd: a(x)
            a('s_waitcnt lgkmcnt(8)')
        else:
            a('s_waitcnt lgkmcnt(0)')
        emit_w(a, q, k + 10)
        if k + 10 in POLLS:
            i = POLLS.index(k + 10)
            a(f'buffer_load_dword v{vP[i]}, v{vPOLL}, {sr(sDBG)}, 0 offen sc1')
            q.add(('P', i))
    stamp(a, prof)
    a(f's_cmp_lg_u32 s{sWAVE}, 0')
    a('s_cbranch_scc1 L_t_go')
    qq = VQ(); qq.q = list(q.q)
    for i in range(len(POLLS)):
        n = qq.need([('P', i)])
        a(f's_waitcnt vmcnt({n})')
        a(f'v_cmp_gt_u32 vcc, 32, v{vP[i]}')
        a('s_cbranch_vccz L_t_go')
    a('s_mov_b32 s37, 0')
    a.label('L_t_poll')
    a(f"""
    buffer_load_dword v{vP[2]}, v{vPOLL}, {sr(sDBG)}, 0 offen sc1
    s_add_u32 s37, s37, 1
    s_waitcnt vmcnt(0)
    s_cmp_gt_u32 s37, 0x40000
    s_cbranch_scc1 L_t_go
    v_cmp_gt_u32 vcc, 32, v{vP[2]}
    s_cbranch_vccnz L_t_poll
    """)
    a.label('L_t_go')
    a('s_barrier')
    stamp(a, prof)
    for k in range(DO):
        ld, post = o_ops(k)
        for x in ld:
            a(x); q.add(('O', k))
        a(post[0])
    for u in range(32):
        need = [('O', u)]
        n = q.need(need)
        lg = u >= NREG
        a(f's_waitcnt vmcnt({n})' + (' lgkmcnt(0)' if lg else ''))
        rd = areads(u + 1) if NREG <= u + 1 < 32 else []
        mf = []
        for mb in range(3):
            for nb in range(4):
                c = '0' if u == 0 else vr(ACC(nb, mb))
                mf.append(f'{MF} {vr(ACC(nb,mb))}, {rtxt(WR(u,nb))}, {vr(OR(u % DO, mb))}, {c}')
        fills = {0: rd[0:2], 1: rd[2:4], 2: rd[4:6], 3: rd[6:8]}
        if u + DO < 32:
            ld, post2 = o_ops(u + DO)
            fills.setdefault(5, []).append(ld[0]); fills.setdefault(8, []).append(ld[1]); fills.setdefault(11, []).extend([ld[2]] + post2)
        for i, m in enumerate(mf):
            a(m)
            for x in fills.get(i, []):
                a(x)
                if x.startswith('buffer_load'): q.add(('O', u + DO))
    stamp(a, prof)
    tt = [f'v{x}' for x in T]
    a(f"""
    v_lshlrev_b32 {tt[0]}, 4, {l}
    v_add_u32 {tt[1]}, s{sM0}, {tt[0]}
    s_lshl_b32 s34, s{sWAVE}, 10
    v_add_u32 {tt[4]}, s34, {tt[0]}
    s_mul_i32 s34, s{sMT}, {48*1152}
    s_lshl_b32 s35, s{sNT}, 7
    s_add_u32 s34, s34, s35
    s_lshl_b32 s35, s{sWAVE}, 5
    s_add_u32 s34, s34, s35
    v_and_b32 {tt[2]}, 15, {l}
    v_mul_u32_u24 {tt[2]}, 1152, {tt[2]}
    v_lshrrev_b32 {tt[3]}, 4, {l}
    v_lshl_add_u32 {tt[2]}, {tt[3]}, 3, {tt[2]}
    """)
    for mb in range(3):
        for nb in range(4):
            a(f'ds_write_b128 {tt[1]}, {vr(ACC(nb,mb))} offset:{mb*16384 + nb*1024}')
    a(f"""
    s_waitcnt lgkmcnt(0)
    s_barrier
    """)
    R0 = 80
    for mb in range(3):
        for w in range(4):
            a(f'ds_read_b128 {vr(R0 + (mb*4+w)*4)}, {tt[4]} offset:{mb*16384 + w*4096}')
    for mb in range(3):
        a(f's_waitcnt lgkmcnt({8 - 4*mb})')
        r = R0 + mb * 16
        for i in (0, 2):
            a(f'v_pk_add_f32 {vr(r+i,2)}, {vr(r+i,2)}, {vr(r+4+i,2)}')
            a(f'v_pk_add_f32 {vr(r+8+i,2)}, {vr(r+8+i,2)}, {vr(r+12+i,2)}')
        for i in (0, 2):
            a(f'v_pk_add_f32 {vr(r+i,2)}, {vr(r+i,2)}, {vr(r+8+i,2)}')
        a(f'v_cvt_pk_bf16_f32 v{140+2*mb}, v{r}, v{r+1}')
        a(f'v_cvt_pk_bf16_f32 v{141+2*mb}, v{r+2}, v{r+3}')
        a(f'buffer_store_dwordx2 {vr(140+2*mb,2)}, {tt[2]}, {sr(sOUT)}, s34 offen' + os.environ.get('OUTF', ''))
        if mb < 2: a(f's_add_u32 s34, s34, {16*1152}')
    if prof:
        a('s_waitcnt vmcnt(0)')
        stamp(a, prof)
        k1.dump_stamps(a, tt[0])
    a('s_branch L_k1_end')
```

```python
import os
from asmlib import Asm, Ins, Label, Raw

sX, sK, sV, sW, sO = 8, 12, 16, 20, 24
sWO = 52
sWAVE, sR, sKH, sHQ, sB = 3, 4, 5, 6, 7
sT = 30
sM0K = 31
sL = 32
sFB = 33
sXB0, sWB0, sXE = 40, 41, 42
sXo, sWo = 46, 47
sT0 = 48
sTB, sTE = 100, 101
KROT = int(os.environ.get('KROT', 0))
def t_adv():
    r = [f's_add_u32 s{sT}, s{sT}, 8192']
    if KROT: r += [f's_cmp_eq_u32 s{sT}, s{sTE}', f's_cselect_b32 s{sT}, s{sTB}, s{sT}']
    return r
sM0X, sM0W = 49, 50
sTW = 51
vTCH = 255
sTMP = 34
vLANE = 2
def Q(j, s): return 16 + (j * 4 + s) * 4
def OKEEP(j, n): return 96 + (j * 4 + n) * 4
def S(buf, kb): return 176 + (buf * 2 + kb) * 4
def P(buf): return 192 + buf * 4
def CI(j): return 200 + 4 * j
vONES = 220
vKA = [224, 225, 226, 227]
vVA = [228 + i for i in range(8)]
vKD = [236, 237, 238, 239]
vVD = [240, 241]
vXD = [3, 4, 5, 6, 7]
vWD = [8, 9, 10, 11]
vXR = [12, 13]
vWR = [14, 15]
vE, vEP = 242, 243
vT = list(range(244, 256))
def OSEND(j, n): return (j * 4 + (n - 4)) * 4
def LS(j): return 80 + 4 * j
def KF(buf, kb, ds): return 100 + (buf * 8 + kb * 4 + ds) * 4
def VF(buf, n): return 164 + (buf * 8 + n) * 4
def QA(buf, a): return 100 + buf * 16 + a * 4
def QB(buf, j): return 132 + buf * 20 + j * 4
def QACC(j, a): return 96 + (j * 4 + a) * 4

def vr(b, n=4): return f'v[{b}:{b+n-1}]'
def ar(b, n=4): return f'a[{b}:{b+n-1}]'
def sr(b, n=4): return f's[{b}:{b+n-1}]'
def OREG(j, n): return vr(OKEEP(j, n)) if n < 4 else ar(OSEND(j, n))

MF = 'v_mfma_f32_16x16x32_bf16'
XBUF0, XBUFS = 81920, 20480
WBUF0, WBUFS = 16384, 16384
EXQ = 122880
EXF = 131072
OOB = 0x7f000000
TOUCH_LDS = 143360
FILL0 = int(os.environ.get('FILL0', 9))
TOUCH = os.environ.get("NOTOUCH") is None
FUSED = False
QSCALE = 0x3e0293ee

NSTAMP = [0]
def stamp(a, prof, real=False):
    if not prof: return
    k = NSTAMP[0]; NSTAMP[0] += 1
    if k >= 16: return
    real = real or os.environ.get('REAL') is not None
    a(f's_mem{"real" if real else ""}time s[{60+2*k}:{61+2*k}]')
    a('s_waitcnt lgkmcnt(0)')

def interleave(a, mf, fills):
    for i, m in enumerate(mf):
        a(m)
        for f in fills.get(i, []):
            a(f)

def init(a, prof):
    a(f"""
    s_cmp_ge_u32 s2, 256
    s_cbranch_scc1 L_k1_end
    s_load_dwordx2 {sr(sX,2)}, s[0:1], 0
    s_load_dwordx2 {sr(sW,2)}, s[0:1], 24
    s_load_dwordx2 {sr(sK,2)}, s[0:1], 8
    s_load_dwordx2 {sr(sV,2)}, s[0:1], 16
    s_load_dwordx2 {sr(sO,2)}, s[0:1], 56
    s_load_dwordx2 {sr(sWO,2)}, s[0:1], 32
    """)
    if FUSED:
        a('s_load_dwordx2 s[56:57], s[0:1], 40')
        a('s_load_dwordx2 s[92:93], s[0:1], 48')
        a('s_mov_b32 s58, 1474560')
        a('s_mov_b32 s59, 0x00020000')
        a('s_mov_b32 s94, 256')
        a('s_mov_b32 s95, 0x00020000')
    if prof:
        a('s_memrealtime s[96:97]')
    stamp(a, prof)
    a(f"""
    v_lshrrev_b32 v1, 6, v0
    v_and_b32 v{vLANE}, 63, v0
    s_mov_b32 s{sX+2}, 1474560
    s_mov_b32 s{sX+3}, 0x00020000
    v_readfirstlane_b32 s{sWAVE}, v1
    s_mov_b32 s{sW+2}, 4718592
    s_mov_b32 s{sW+3}, 0x00020000
    s_mov_b32 s{sK+2}, 0x4000000
    s_mov_b32 s{sK+3}, 0x00020000
    s_mov_b32 s{sV+2}, 0x4000000
    s_mov_b32 s{sV+3}, 0x00020000
    s_mov_b32 s{sO+2}, 10485760
    s_mov_b32 s{sO+3}, 0x00020000
    s_mov_b32 s{sWO+2}, 4718592
    s_mov_b32 s{sWO+3}, 0x00020000
    s_and_b32 s34, s2, 7
    s_lshr_b32 s35, s2, 3
    s_and_b32 s36, s35, 3
    s_lshl_b32 s{sHQ}, s34, 2
    s_add_u32 s{sHQ}, s{sHQ}, s36
    s_lshr_b32 s{sB}, s35, 2
    s_and_b32 s{sR}, s{sWAVE}, 1
    s_lshr_b32 s{sKH}, s{sWAVE}, 1
    """)
    ROT = os.environ.get('ROT', '3')
    if ROT == '9':
        a(f"""
    s_lshl_b32 s37, s36, 1
    s_add_u32 s37, s37, s{sB}
    s_sub_u32 s38, s37, 9
    s_cmp_ge_u32 s37, 9
    s_cselect_b32 s37, s38, s37
    """)
    elif ROT == '3':
        a(f"""
    s_add_u32 s37, s{sB}, s36
    s_mul_i32 s38, s37, 43
    s_lshr_b32 s38, s38, 7
    s_mul_i32 s38, s38, 3
    s_sub_u32 s37, s37, s38
    s_mul_i32 s37, s37, 3
    """)
    else:
        a('s_mov_b32 s37, 0')
    a(f"""
    s_mul_i32 s{sXB0}, s{sB}, 184320
    s_lshl_b32 s{sWB0}, s{sHQ}, 8
    s_add_u32 s{sXE}, s{sXB0}, {9*128}
    s_lshl_b32 s38, s37, 7
    s_add_u32 s{sXo}, s{sXB0}, s38
    s_lshl_b32 s38, s37, 19
    s_add_u32 s{sWo}, s{sWB0}, s38
    """)
    l = f'v{vLANE}'
    t0, t1, t2, t3, t4, t5 = [f'v{x}' for x in vT[:6]]
    a(f"""
    s_lshl_b32 s34, s{sWAVE}, 3
    v_lshrrev_b32 {t0}, 3, {l}
    v_add_u32 {t0}, s34, {t0}
    v_mul_u32_u24 {t0}, 1152, {t0}
    v_and_b32 {t1}, 7, {l}
    v_lshrrev_b32 {t2}, 4, {l}
    v_xor_b32 {t1}, {t1}, {t2}
    s_lshl_b32 s35, s{sR}, 2
    v_xor_b32 {t1}, s35, {t1}
    v_lshl_add_u32 v{vXD[0]}, {t1}, 4, {t0}
    """)
    for i in range(1, 5):
        a(f'v_add_u32 v{vXD[i]}, {36864*i}, v{vXD[0]}')
    a(f"""
    s_lshl_b32 s34, s{sWAVE}, 2
    v_add_u32 {t0}, s34, {t2}
    v_lshlrev_b32 {t0}, 13, {t0}
    v_and_b32 {t3}, 15, {l}
    v_lshlrev_b32 {t1}, 2, {t2}
    v_xor_b32 {t1}, {t1}, {t3}
    v_lshl_add_u32 v{vWD[0]}, {t1}, 4, {t0}
    """)
    for i in range(1, 4):
        a(f'v_add_u32 v{vWD[i]}, {131072*i}, v{vWD[0]}')
    a(f"""
    s_lshl_b32 s34, s{sWAVE}, 10
    s_add_u32 s{sM0X}, s34, {XBUF0}
    s_add_u32 s{sM0W}, s34, {WBUF0}
    """)
    a('s_waitcnt lgkmcnt(0)')
    if os.environ.get('PSTAMP'): stamp(a, prof)

def initkv(a):
    l = f'v{vLANE}'
    t0, t1, t2, t3, t4, t5 = [f'v{x}' for x in vT[:6]]
    a(f"""
    s_lshr_b32 s34, s{sHQ}, 1
    s_lshl_b32 s35, s{sB}, 4
    s_add_u32 s34, s34, s35
    s_lshl_b32 s34, s34, 19
    s_lshl_b32 s35, s{sKH}, 18
    s_add_u32 s34, s34, s35
    s_lshl_b32 s35, s{sR}, 12
    s_add_u32 s{sTB}, s34, s35
    s_add_u32 s{sTE}, s{sTB}, 262144
    s_lshr_b32 s36, s{sHQ}, 1
    s_lshl_b32 s37, s{sB}, 4
    s_add_u32 s36, s36, s37
    s_mul_i32 s36, s36, {KROT}
    s_lshl_b32 s37, s{sKH}, 4
    s_add_u32 s36, s36, s37
    s_and_b32 s36, s36, {31 if KROT else 0}
    s_lshl_b32 s36, s36, 13
    s_add_u32 s{sT0}, s{sTB}, s36
    s_lshl_b32 s34, s{sKH}, 16
    s_add_u32 s{sM0K}, s34, s35
    s_mov_b32 s{sFB}, 0
    """)
    a(f"""
    v_lshrrev_b32 {t2}, 4, {l}
    v_and_b32 {t3}, 15, {l}
    v_lshlrev_b32 {t0}, 8, {t2}
    v_xor_b32 {t1}, {t3}, {t2}
    """)
    for j in range(4):
        a(f'v_xor_b32 {t4}, {4*j}, {t1}')
        a(f'v_lshl_add_u32 v{vKD[j]}, {t4}, 4, {t0}')
    a(f"""
    v_lshlrev_b32 {t4}, 1, {t2}
    v_xor_b32 {t1}, {t3}, {t4}
    """)
    for p in range(2):
        a(f'v_xor_b32 {t4}, {8*p}, {t1}')
        a(f'v_lshl_add_u32 v{vVD[p]}, {t4}, 4, {t0}')
    if TOUCH:
        a(f"""
    s_lshl_b32 s34, s2, 2
    s_add_u32 s34, s34, s{sWAVE}
    s_mul_i32 s{sTW}, s34, 4608
    v_lshlrev_b32 {t0}, 4, {l}
    v_mov_b32 {t1}, {hex(OOB)}
    v_cmp_gt_u32 vcc, 36, {l}
    s_nop 1
    v_cndmask_b32 v{vTCH}, {t1}, {t0}, vcc
    """)

def dma_x(G, within, i, buf):
    return [f's_add_u32 m0, s{sM0X}, {buf*XBUFS + 4096*i}',
            f'buffer_load_dwordx4 v{vXD[i]}, {sr(sX)}, s{sXo} offen lds']
def dma_w(G, within, i, buf):
    return [f's_add_u32 m0, s{sM0W}, {buf*WBUFS + 4096*i}',
            f'buffer_load_dwordx4 v{vWD[i]}, {sr(sW)}, s{sWo} offen lds']
def chunk_dmas(i9):
    G, w = i9 // 3, i9 % 3
    buf = i9 % 3
    pre = [] if i9 == 0 else [f's_add_u32 s{sXo}, s{sXo}, 128', f's_add_u32 s{sWo}, s{sWo}, 0x80000', f's_cmp_eq_u32 s{sXo}, s{sXE}',
                              f's_cselect_b32 s{sXo}, s{sXB0}, s{sXo}', f's_cselect_b32 s{sWo}, s{sWB0}, s{sWo}']
    grp = []
    for i in range(4):
        grp.append(dma_w(G, w, i, buf))
        grp.append(dma_x(G, w, i, buf))
    grp.append(dma_x(G, w, 4, buf))
    return pre, grp

def tile_dmas(slot):
    g = []
    for j in range(4):
        pre = [f's_add_u32 m0, s{sM0K}, {slot*16384}'] if j == 0 else []
        g.append(pre + [f'buffer_load_dwordx4 v{vKD[j]}, {sr(sK)}, s{sT} offen offset:{1024*j} nt lds'])
    for j in range(4):
        pre = [f's_add_u32 m0, s{sM0K}, {slot*16384 + 8192}'] if j == 0 else []
        g.append(pre + [f'buffer_load_dwordx4 v{vVD[j&1]}, {sr(sV)}, s{sT} offen offset:{1024*j} nt lds'])
    return g

def emit_groups(a, groups):
    for g in groups:
        for k, ins in enumerate(g):
            a(ins)
            if 'm0' in ins.split(',')[0]:
                a('s_nop 0')

def init2(a):
    l = f'v{vLANE}'
    t0, t1, t2, t3, t4, t5, t6 = [f'v{x}' for x in vT[:7]]
    a(f"""
    v_lshrrev_b32 {t2}, 4, {l}
    v_and_b32 {t3}, 15, {l}
    v_lshrrev_b32 {t5}, 2, {l}
    v_and_b32 {t5}, 3, {t5}
    v_and_b32 {t6}, 3, {l}
    s_mul_i32 s34, s{sR}, 10240
    s_add_u32 s34, s34, {XBUF0}
    v_lshlrev_b32 {t0}, 7, {t3}
    v_add_u32 {t0}, s34, {t0}
    v_lshrrev_b32 {t1}, 1, {t3}
    v_xor_b32 {t4}, {t2}, {t1}
    v_lshl_add_u32 v{vXR[0]}, {t4}, 4, {t0}
    v_xor_b32 {t4}, 4, {t4}
    v_lshl_add_u32 v{vXR[1]}, {t4}, 4, {t0}
    v_lshl_add_u32 {t0}, {t2}, 3, {t5}
    v_lshlrev_b32 {t0}, 8, {t0}
    v_add_u32 {t0}, {WBUF0}, {t0}
    s_lshl_b32 s34, s{sKH}, 1
    """)
    for sp in range(2):
        a(f"""
    s_add_u32 s35, s34, {sp}
    v_xor_b32 {t1}, s35, {t5}
    v_lshl_add_u32 {t1}, {t1}, 2, {t6}
    v_lshl_add_u32 v{vWR[sp]}, {t1}, 4, {t0}
    """)
    a(f"""
    s_lshl_b32 s35, s{sKH}, 16
    v_lshlrev_b32 {t0}, 8, {t3}
    v_add_u32 {t0}, s35, {t0}
    """)
    for sp in range(4):
        a(f"""
    s_xor_b32 s36, s34, {sp}
    s_lshl_b32 s36, s36, 2
    v_add_u32 {t1}, s36, {t2}
    v_xor_b32 {t1}, {t1}, {t3}
    v_lshl_add_u32 v{vKA[sp]}, {t1}, 4, {t0}
    """)
    a(f"""
    v_lshl_add_u32 {t0}, {t2}, 2, {t5}
    v_lshlrev_b32 {t0}, 8, {t0}
    s_add_u32 s35, s35, 8192
    v_add_u32 {t0}, s35, {t0}
    v_and_b32 {t1}, 1, {t6}
    v_lshl_add_u32 {t0}, {t1}, 3, {t0}
    v_lshrrev_b32 {t1}, 1, {t6}
    v_lshl_add_u32 {t0}, {t1}, 4, {t0}
    v_and_b32 {t1}, 1, {t2}
    v_lshl_add_u32 {t1}, {t1}, 2, {t5}
    s_lshl_b32 s36, s{sKH}, 2
    """)
    for n in range(8):
        a(f"""
    s_xor_b32 s37, s36, {n}
    v_xor_b32 {t4}, s37, {t1}
    v_lshl_add_u32 v{vVA[n]}, {t4}, 5, {t0}
    """)
    a(f"""
    s_mul_i32 s34, s{sWAVE}, 10240
    s_add_u32 s34, s34, {EXQ}
    v_lshlrev_b32 {t0}, 4, {l}
    v_add_u32 v{vE}, s34, {t0}
    s_xor_b32 s35, s{sWAVE}, 2
    s_mul_i32 s35, s35, 10240
    s_add_u32 s35, s35, {EXQ}
    v_add_u32 v{vEP}, s35, {t0}
    """)
    zero_acc(a, keep=False)
    for i in range(4):
        a(f'v_mov_b32 v{vONES+i}, 0x3f803f80')
    for j in range(5):
        for i in range(4):
            a(f'v_mov_b32 v{CI(j)+i}, 0')

def zero_acc(a, keep=True):
    for i in range(100):
        a(f'v_accvgpr_write_b32 a{i}, 0')
    for i in range(32):
        a(f'v_accvgpr_write_b32 a{VF(1,0)+i}, 0')
    for i in range(4):
        a(f'v_mov_b32 v{P(1)+i}, 0')
    if keep:
        for i in range(0, 80, 2):
            a(f'v_pk_mov_b32 {vr(96+i,2)}, 0, 0')

def qfrag_reads(u):
    i9, ks = u // 2, u % 2
    buf, fb = i9 % 3, u % 2
    r = []
    for j in range(5):
        r.append(f'ds_read_b128 {ar(QB(fb, j))}, v{vXR[ks]} offset:{XBUFS*buf + 2048*j}')
    for sp in range(2):
        for t in range(2):
            for h in range(2):
                r.append(f'ds_read_b64_tr_b16 {ar(QA(fb, 2*sp+t)+2*h, 2)}, v{vWR[sp]} offset:{WBUFS*buf + 8192*ks + 1024*h + 8*t}')
    A = r[5:]; B = r[:5]
    return [A[0], A[1], B[0], B[1], B[2], B[3], B[4]] + A[2:]

class VQ:
    def __init__(self): self.q = []
    def add(self, tag): self.q.append(tag)
    def need(self, tags):
        last = -1
        for i, t in enumerate(self.q):
            if t in tags: last = i
        n = len(self.q) - 1 - last
        self.q = self.q[last + 1:]
        return min(n, 63)

T0LATE = os.environ.get('T0LATE', '0') == '1'
def qproj(a, prof):
    q = VQ()
    def tagged(groups, tag): return [(g, tag) for g in groups]
    groups = []
    for i9 in range(3):
        pre, grp = chunk_dmas(i9)
        groups += tagged([pre + grp[0]] + grp[1:], ('C', i9))
    td = tile_dmas(0)
    t0 = tagged([[f's_mov_b32 s{sT}, s{sT0}'] + td[0]] + td[1:-1] + [td[-1] + t_adv()], ('T', 0))
    if not T0LATE: groups += t0; t0 = []
    tmp = Asm(); initkv(tmp); init2(tmp)
    fill = [i.text for i in tmp.items]
    per = -(-len(fill) // (len(groups) - FILL0))
    for d, (g, tag) in enumerate(groups):
        for k_, ins in enumerate(g):
            a(ins)
            if 'm0' in ins.split(',')[0]: a('s_nop 0')
            if ins.startswith('buffer'): q.add(tag)
        if d >= FILL0 - 1:
            for ins in fill[:per]: a(ins)
            fill = fill[per:]
        if os.environ.get('PSTAMP') and d in (0, 8, 17, 26): stamp(a, prof)
    assert not fill
    stamp(a, prof)
    a(f's_waitcnt vmcnt({q.need([("C", 0)])})')
    a('s_barrier')
    stamp(a, prof)
    for r in qfrag_reads(0): a(r)
    pend = []
    for u in range(18):
        fb = u % 2
        if u % 2 == 1:
            c = u // 2
            if c + 1 <= 8: a(f's_waitcnt vmcnt({q.need([("C", c + 1)])}) lgkmcnt(0)')
            else: a('s_waitcnt lgkmcnt(0)')
            a('s_barrier')
            if u in (1, 17): stamp(a, prof)
            assert not pend
            if c + 3 <= 8:
                pre, grp = chunk_dmas(c + 3)
                pend = tagged([pre + grp[0]] + grp[1:], ('C', c + 3))
                if c >= 2 and t0:
                    sl = t0[:3]; t0 = t0[3:]
                    n0 = 8 - len(t0) - len(sl)
                    g0, tg = sl[0]
                    if not any('m0' in x.split(',')[0] for x in g0):
                        g0 = [f's_add_u32 m0, s{sM0K}, {0 if n0 < 4 else 8192}'] + g0
                    pend += [(g0, tg)] + sl[1:]
            elif c + 3 == 9:
                pend = tagged(tile_dmas(1) + [t_adv()], ('T', 1))
            elif c + 3 == 10:
                pend = tagged(tile_dmas(2) + [t_adv()], ('T', 2))
        else:
            a('s_waitcnt lgkmcnt(0)')
        mf = []
        for t in range(4):
            for j in range(5):
                c_ = '0' if u == 0 else vr(QACC(j, t))
                mf.append(f'{MF} {vr(QACC(j,t))}, {ar(QA(fb,t))}, {ar(QB(fb,j))}, {c_}')
        fills = {}
        reads = qfrag_reads(u + 1) if u < 17 else []
        g = 0
        while reads:
            fills.setdefault(g, []).extend(reads[:2]); reads = reads[2:]; g += 1
        g = 7
        nmax = 6 if u % 2 == 1 else 99
        cnt = 0
        while pend and g < 19 and cnt < nmax:
            grp, tag = pend.pop(0)
            bi = [n for n, x in enumerate(grp) if x.startswith('buffer')]
            if bi:
                fills.setdefault(g, []).extend(grp[:bi[0]])
                fills.setdefault(g + 1, []).extend(grp[bi[0]:])
                q.add(tag)
                g += 2
            else:
                fills.setdefault(g, []).extend(grp); g += 1
            cnt += 1
        if u % 2 == 0: assert not pend, (u, pend)
        interleave(a, mf, fills)
    assert not pend and not t0
    assert q.need([('T', 1)]) == 8

def qfin(a, prof):
    stamp(a, prof)
    a(f's_mov_b32 s34, {hex(QSCALE)}')
    a(f's_mov_b32 s35, {hex(QSCALE)}')
    for r in k_reads(0, 0) + v_reads(0, 0): a(r)
    for j in range(5):
        for t in range(4):
            for i in (0, 2):
                a(f'v_pk_mul_f32 {vr(QACC(j,t)+i,2)}, {vr(QACC(j,t)+i,2)}, s[34:35]')
        for sp in range(2):
            for t in range(2):
                b = QACC(j, 2*sp + t)
                a(f'v_cvt_pk_bf16_f32 v{Q(j,sp)+2*t}, v{b}, v{b+1}')
                a(f'v_cvt_pk_bf16_f32 v{Q(j,sp)+2*t+1}, v{b+2}, v{b+3}')
        for sp in range(2):
            a(f'ds_write_b128 v{vE}, {vr(Q(j,sp))} offset:{(j*2+sp)*1024}')
    for i in range(0, 48, 2):
        a(f'v_pk_mov_b32 {vr(96+i,2)}, 0, 0')
    a('s_waitcnt vmcnt(8) lgkmcnt(0)')
    a('s_barrier')
    for j in range(5):
        for sp in range(2):
            a(f'ds_read_b128 {vr(Q(j,2+sp))}, v{vEP} offset:{(j*2+sp)*1024}')
    for i in range(48, 80, 2):
        a(f'v_pk_mov_b32 {vr(96+i,2)}, 0, 0')
    a('s_waitcnt lgkmcnt(8)')

def k_reads(buf, slot):
    return [f'ds_read_b128 {ar(KF(buf,kb,ds))}, v{vKA[ds]} offset:{slot*16384 + kb*4096}' for kb in range(2) for ds in range(4)]
def v_reads(buf, slot):
    return [f'ds_read_b64_tr_b16 {ar(VF(buf,n)+2*h, 2)}, v{vVA[n]} offset:{slot*16384 + h*4096}' for n in range(8) for h in range(2)]
def qk_mf(j, kbuf, sbuf, cinit=True):
    m = []
    for kb in range(2):
        for ds in range(4):
            c = (vr(CI(j)) if cinit else '0') if ds == 0 else vr(S(sbuf, kb))
            m.append(f'{MF} {vr(S(sbuf,kb))}, {ar(KF(kbuf,kb,ds))}, {vr(Q(j,ds))}, {c}')
    return m
def pv_mf(j, vbuf, pbuf):
    m = [f'{MF} {ar(LS(j))}, {vr(vONES)}, {vr(P(pbuf))}, {ar(LS(j))}']
    for n in range(8):
        m.append(f'{MF} {OREG(j,n)}, {ar(VF(vbuf,n))}, {vr(P(pbuf))}, {OREG(j,n)}')
    return m

def pre_loop(a, prof):
    a.label('L_attn0')
    stamp(a, prof)
    mf = qk_mf(0, 0, 0)
    kr = k_reads(1, 1)
    td = tile_dmas(3)
    fills = {}
    for i in range(8):
        fills[i] = [kr[i]]
    interleave(a, mf, fills)
    a('s_waitcnt lgkmcnt(8)')
    a('s_barrier')
    emit_groups(a, td)
    for x in t_adv(): a(x)
    a(f's_mov_b32 s{sL}, 0')

def step(a, t):
    td = tile_dmas(t % 4)
    vreads = v_reads((t + 1) & 1, (t + 1) % 4)
    kreads = k_reads(t & 1, (t + 2) % 4)
    for j in range(5):
        pn = (t + j) & 1
        if j < 4: qk = qk_mf(j + 1, t & 1, (pn + 1) & 1)
        else: qk = qk_mf(0, (t + 1) & 1, (pn + 1) & 1)
        if j == 0: pv = pv_mf(4, (t - 1) & 1, (pn + 1) & 1)
        else: pv = pv_mf(j - 1, t & 1, (pn + 1) & 1)
        mf = qk + pv
        fills = {g: [] for g in range(17)}
        for e in range(8):
            reg = S(pn, e // 4) + (e % 4)
            fills[2 * e].append(f'v_exp_f32 v{reg}, v{reg}')
        cv = []
        for c in range(4):
            b = S(pn, c // 2) + 2 * (c % 2)
            cv.append(f'v_cvt_pk_bf16_f32 v{P(pn)+c}, v{b}, v{b+1}')
        free2 = [1, 5, 9, 13, 16]
        free1 = [3, 7, 11, 15]
        rd = []
        if j in (1, 2): rd = [vreads.pop(0) for _ in range(6)]
        elif j == 3: rd = [vreads.pop(0) for _ in range(4)]
        elif j == 4: rd = list(kreads)
        order = [(1, 2), (3, 1), (5, 2), (7, 1), (9, 2)]
        for g, k in order:
            for _ in range(k):
                if rd: fills[g].append(rd.pop(0))
        assert not rd
        for c, g in enumerate(free1):
            fills[g].append(cv[c])
        if j < 4:
            d0 = td[2 * j]; d1 = td[2 * j + 1]
            if len(d0) == 2:
                fills[11].append(d0[0])
            gA, gB = (13, 16) if j < 3 else (9, 13)
            fills[gA].append(d0[-1]); fills[gB].append(d1[-1])
        if j == 3:
            fills[16] += [f's_waitcnt vmcnt({17 if (TOUCH and t in (1, 2)) else 16}) lgkmcnt(0)', 's_barrier']
        if j == 4:
            ta = t_adv()
            fills[11 if KROT else 13].append(ta[0])
            fills[13] += ta[1:]
            if TOUCH and t == 0:
                fills[15].append(f's_mov_b32 m0, {TOUCH_LDS}')
                fills[16].append(f'buffer_load_dwordx4 v{vTCH}, {sr(sWO)}, s{sTW} offen lds')
            if TOUCH and t == 1:
                fills[15].append(f's_add_u32 s{sTW}, s{sTW}, 576')
        interleave(a, mf, fills)

def loop(a):
    a.label('L_loop')
    for t in range(4): step(a, t)
    a(f"""
    s_add_u32 s{sL}, s{sL}, 1
    s_cmp_eq_u32 s{sL}, 7
    s_cselect_b32 s{sT}, {hex(OOB)}, s{sT}
    s_cmp_lt_u32 s{sL}, 8
    s_cbranch_scc1 L_loop
    """)

def final_pv(a):
    for m in pv_mf(4, 1, 1): a(m)

def epilogue(a, prof):
    if FUSED == 2:
        import tail2
        return tail2.gen(a, prof)
    t = [f'v{x}' for x in vT]
    l = f'v{vLANE}'
    stamp(a, prof)
    a('s_nop 7')
    for j in range(5):
        a(f'v_accvgpr_read_b32 {t[j]}, a{LS(j)}')
    a(f"""
    v_mov_b32 {t[5]}, 0x33800000
    v_mov_b32 {t[6]}, 0x4e800000
    s_mov_b64 s[36:37], 0
    """)
    for j in range(5):
        a(f'v_cmp_nge_f32 vcc, {t[j]}, {t[5]}')
        a(f's_or_b64 s[36:37], s[36:37], vcc')
        a(f'v_cmp_nle_f32 vcc, {t[j]}, {t[6]}')
        a(f's_or_b64 s[36:37], s[36:37], vcc')
    a(f"""
    s_cmp_lg_u64 s[36:37], 0
    s_cselect_b32 s38, 1, 0
    v_mov_b32 {t[5]}, s38
    s_lshl_b32 s34, s{sWAVE}, 2
    s_add_u32 s34, s34, {EXF}
    v_mov_b32 {t[6]}, s34
    ds_write_b32 {t[6]}, {t[5]}
    s_mul_i32 s34, s{sWAVE}, 1280
    s_add_u32 s34, s34, {EXF+256}
    v_lshlrev_b32 {t[7]}, 2, {l}
    v_add_u32 {t[6]}, s34, {t[7]}
    """)
    for j in range(5):
        a(f'ds_write_b32 {t[6]}, {t[j]} offset:{256*j}')
    a(f"""
    s_xor_b32 s35, s{sWAVE}, 2
    s_mul_i32 s34, s35, 1280
    s_add_u32 s34, s34, {EXF+256}
    v_add_u32 {t[7]}, s34, {t[7]}
    v_mov_b32 {t[8]}, {EXF}
    s_waitcnt vmcnt(0) lgkmcnt(0)
    s_barrier
    ds_read_b128 v[{S(0,0)}:{S(0,0)+3}], {t[8]}
    """)
    for j in range(5):
        a(f'ds_read_b32 v{S(1,0)+j}, {t[7]} offset:{256*j}')
    a(f"""
    s_mul_i32 s34, s{sWAVE}, 20480
    v_lshlrev_b32 {t[9]}, 4, {l}
    v_add_u32 {t[6]}, s34, {t[9]}
    s_mul_i32 s34, s35, 20480
    v_add_u32 {t[7]}, s34, {t[9]}
    """)
    for j in range(5):
        for n in range(4):
            a(f'ds_write_b128 {t[6]}, {ar(OSEND(j,4+n))} offset:{(j*4+n)*1024}')
        if j == 0:
            a('s_waitcnt lgkmcnt(4)')
            b = S(0, 0)
            a(f"""
    v_or_b32 v{b}, v{b}, v{b+1}
    v_or3_b32 v{b}, v{b}, v{b+2}, v{b+3}
    s_nop 0
    v_readfirstlane_b32 s38, v{b}
    s_xor_b32 s39, s{sFB}, 1
    s_and_b32 s38, s38, s39
    s_cmp_lg_u32 s38, 0
    s_cbranch_scc1 L_fallback
    """)
            for jj in range(5):
                a(f'v_add_f32 {t[jj]}, {t[jj]}, v{S(1,0)+jj}')
            for jj in range(5):
                a(f'v_rcp_f32 {t[jj]}, {t[jj]}')
    a('s_waitcnt lgkmcnt(0)')
    a('s_barrier')
    for j in range(5):
        for n in range(4):
            a(f'ds_read_b128 {vr(Q(j,n))}, {t[7]} offset:{(j*4+n)*1024}')
    a(f"""
    s_mul_i32 s34, s{sB}, 10
    s_mul_i32 s35, s{sR}, 5
    s_add_u32 s34, s34, s35
    s_lshl_b32 s34, s34, 7
    s_lshl_b32 s35, s{sHQ}, 2
    s_add_u32 s34, s34, s35
    s_lshl_b32 s35, s{sKH}, 1
    s_add_u32 s34, s34, s35
    s_lshl_b32 s34, s34, 10
    """)
    for j in range(5):
        a(f's_waitcnt lgkmcnt({min(12, 16-4*j)})')
        for n in range(4):
            for i in range(4):
                a(f'v_add_f32 v{OKEEP(j,n)+i}, v{OKEEP(j,n)+i}, v{Q(j,n)+i}')
        for n in range(4):
            for i in range(4):
                a(f'v_mul_f32 v{OKEEP(j,n)+i}, {t[j]}, v{OKEEP(j,n)+i}')
        for u in range(2):
            for hh in range(2):
                b = OKEEP(j, 2*u + hh)
                a(f'v_cvt_pk_bf16_f32 v{Q(j,u)+2*hh}, v{b}, v{b+1}')
                a(f'v_cvt_pk_bf16_f32 v{Q(j,u)+2*hh+1}, v{b+2}, v{b+3}')
        if j > 0: a(f's_add_u32 s34, s34, {128*1024}')
        for u in range(2):
            a(f'buffer_store_dwordx4 {vr(Q(j,u))}, {t[9]}, {sr(sO)}, s34 offen offset:{1024*u}' + (' sc1' if FUSED else ''))
    if FUSED:
        import tail
        tail.gen_tail(a, prof)
    elif prof:
        a('s_waitcnt vmcnt(0)')
        stamp(a, prof)
        dump_stamps(a, t[0])
    a('s_branch L_k1_end')

def dump_dbg(a, tv):
    sel = [int(x) for x in os.environ['DBGP'].split(',')]
    slots = [1, 2, 3, 4, 5, 6, 7, 9, 10, 11, 12, 13, 14, 15]
    a(f's_cmp_lg_u32 s{sWAVE}, 0')
    a('s_cbranch_scc1 L_k1_end')
    a(f's_cmp_lg_u32 s2, {os.environ.get("DBGW", "100")}')
    a('s_cbranch_scc1 L_k1_end')
    a('s_mov_b64 exec, 1')
    a(f'v_mov_b32 {tv}, 0')
    for n, k in enumerate(sel):
        a(f's_sub_u32 s34, s{60+2*k}, s60')
        a(f'v_mov_b32 v{201+n}, s34')
        a(f'buffer_store_dword v{201+n}, {tv}, s[92:95], 0 offen offset:{4*slots[n]}')

def dump_stamps(a, tv):
    if os.environ.get('DBGP'): return dump_dbg(a, tv)
    if True:
        a('s_memrealtime s[98:99]')
        a('s_waitcnt lgkmcnt(0)')
        a(f"""
    s_lshl_b32 s34, s2, 2
    s_add_u32 s34, s34, s{sWAVE}
    s_lshl_b32 s34, s34, 7
    s_add_u32 s34, s34, 0x1000000
    s_mov_b32 s{sO+2}, 0x2000000
    v_mov_b32 {tv}, s34
    """)
        for k in range(NSTAMP[0]):
            a(f's_sub_u32 s35, s{60+2*k}, s60')
            a(f'v_mov_b32 v{200+k}, s35')
            a(f'buffer_store_dword v{200+k}, {tv}, {sr(sO)}, 0 offen offset:{4*k}')
        a('v_mov_b32 v230, s96')
        a('v_mov_b32 v231, s98')
        a(f'buffer_store_dword v230, {tv}, {sr(sO)}, 0 offen offset:120')
        a(f'buffer_store_dword v231, {tv}, {sr(sO)}, 0 offen offset:124')

def fallback(a):
    t = [f'v{x}' for x in vT]
    l = f'v{vLANE}'
    a.label('L_fallback')
    a('s_waitcnt vmcnt(0) lgkmcnt(0)')
    a('s_barrier')
    for j in range(5):
        a(f'v_mov_b32 {t[j]}, 0xff800000')
    a(f's_sub_u32 s{sT}, s{sTE}, 262144')
    a(f's_mov_b32 s{sL}, 0')
    a.label('L_fb_loop')
    a(f's_mov_b32 m0, s{sM0K}')
    a('s_nop 0')
    for j in range(4):
        a(f'buffer_load_dwordx4 v{vKD[j]}, {sr(sK)}, s{sT} offen offset:{1024*j} lds')
    a('s_waitcnt vmcnt(0)')
    a('s_barrier')
    for r in k_reads(0, 0): a(r)
    a('s_waitcnt lgkmcnt(0)')
    a('s_barrier')
    for j in range(5):
        for m in qk_mf(j, 0, 0, cinit=False): a(m)
        a('s_nop 7')
        b0, b1 = S(0, 0), S(0, 1)
        a(f'v_max3_f32 {t[j]}, {t[j]}, v{b0}, v{b0+1}')
        a(f'v_max3_f32 {t[j]}, {t[j]}, v{b0+2}, v{b0+3}')
        a(f'v_max3_f32 {t[j]}, {t[j]}, v{b1}, v{b1+1}')
        a(f'v_max3_f32 {t[j]}, {t[j]}, v{b1+2}, v{b1+3}')
    a(f"""
    s_add_u32 s{sT}, s{sT}, 8192
    s_add_u32 s{sL}, s{sL}, 1
    s_cmp_lt_u32 s{sL}, 32
    s_cbranch_scc1 L_fb_loop
    """)
    a(f"""
    s_mul_i32 s34, s{sWAVE}, 1280
    s_add_u32 s34, s34, {EXF}
    v_lshlrev_b32 {t[7]}, 2, {l}
    v_add_u32 {t[6]}, s34, {t[7]}
    """)
    for j in range(5):
        a(f'ds_write_b32 {t[6]}, {t[j]} offset:{256*j}')
    a(f"""
    s_waitcnt lgkmcnt(0)
    s_barrier
    v_and_b32 {t[7]}, 15, {l}
    v_lshlrev_b32 {t[7]}, 2, {t[7]}
    s_mul_i32 s34, s{sR}, 1280
    s_add_u32 s34, s34, {EXF}
    v_add_u32 {t[7]}, s34, {t[7]}
    """)
    for j in range(5):
        regs = [S(0,0)+i for i in range(8)]
        k = 0
        for kh in range(2):
            for g in range(4):
                a(f'ds_read_b32 v{regs[k]}, {t[7]} offset:{kh*2560 + j*256 + g*64}')
                k += 1
        a('s_waitcnt lgkmcnt(0)')
        a(f'v_max3_f32 {t[8]}, v{regs[0]}, v{regs[1]}, v{regs[2]}')
        a(f'v_max3_f32 {t[8]}, {t[8]}, v{regs[3]}, v{regs[4]}')
        a(f'v_max3_f32 {t[8]}, {t[8]}, v{regs[5]}, v{regs[6]}')
        a(f'v_max_f32 {t[8]}, {t[8]}, v{regs[7]}')
        for i in range(4):
            a(f'v_sub_f32 v{CI(j)+i}, 0, {t[8]}')
    zero_acc(a, keep=True)
    a(f's_mov_b32 s{sFB}, 1')
    a(f's_mov_b32 s{sT}, s{sT0}')
    a('s_barrier')
    for slot in range(3):
        emit_groups(a, tile_dmas(slot))
        for x in t_adv(): a(x)
    a('s_waitcnt vmcnt(8)')
    a('s_barrier')
    for r in k_reads(0, 0) + v_reads(0, 0): a(r)
    a('s_waitcnt lgkmcnt(0)')
    a('s_branch L_attn0')

def gen_k1(prof=False):
    NSTAMP[0] = 0
    segs = {}
    def seg(name, f, *args):
        x = Asm(); f(x, *args); segs[name] = x; return x
    seg('init', init, prof)
    seg('qproj', qproj, prof)
    seg('qfin', qfin, prof)
    seg('pre', pre_loop, prof)
    seg('loop', loop)
    seg('fin', final_pv)
    seg('epi', epilogue, prof)
    seg('fb', fallback)
    order = ['init', 'qproj', 'qfin', 'pre', 'loop', 'fin', 'epi', 'fb']
    return segs, order
```

```python
import os
from asmlib import Asm, Ins, Label, Raw

sX, sK, sV, sW, sO = 8, 12, 16, 20, 24
sWO = 52
sWAVE, sR, sKH, sHQ, sB = 3, 4, 5, 6, 7
sT = 30
sM0K = 31
sL = 32
sFB = 33
sXB0, sWB0, sXE = 40, 41, 42
sXo, sWo = 46, 47
sT0 = 48
sTB, sTE = 100, 101
KROT = int(os.environ.get('KROT', 0))
def t_adv():
    r = [f's_add_u32 s{sT}, s{sT}, 8192']
    if KROT: r += [f's_cmp_eq_u32 s{sT}, s{sTE}', f's_cselect_b32 s{sT}, s{sTB}, s{sT}']
    return r
sM0X, sM0W = 49, 50
sTW = 51
vTCH = 255
sTMP = 34
vLANE = 2
def Q(j, s): return 16 + (j * 4 + s) * 4
def OKEEP(j, n): return 96 + (j * 4 + n) * 4
def S(buf, kb): return 176 + (buf * 2 + kb) * 4
def P(buf): return 192 + buf * 4
def CI(j): return 200 + 4 * j
vONES = 220
vKA = [224, 225, 226, 227]
vVA = [228 + i for i in range(8)]
vKD = [236, 237, 238, 239]
vVD = [240, 241]
vXD = [3, 4, 5, 6, 7]
vWD = [8, 9, 10, 11]
vXR = [12, 13]
vWR = [14, 15]
vE, vEP = 242, 243
vT = list(range(244, 256))
def OSEND(j, n): return (j * 4 + (n - 4)) * 4
def LS(j): return 80 + 4 * j
def KF(buf, kb, ds): return 100 + (buf * 8 + kb * 4 + ds) * 4
def VF(buf, n): return 164 + (buf * 8 + n) * 4
def QA(buf, a): return 100 + buf * 16 + a * 4
def QB(buf, j): return 132 + buf * 20 + j * 4
def QACC(j, a): return 96 + (j * 4 + a) * 4

def vr(b, n=4): return f'v[{b}:{b+n-1}]'
def ar(b, n=4): return f'a[{b}:{b+n-1}]'
def sr(b, n=4): return f's[{b}:{b+n-1}]'
def OREG(j, n): return vr(OKEEP(j, n)) if n < 4 else ar(OSEND(j, n))

MF = 'v_mfma_f32_16x16x32_bf16'
XBUF0, XBUFS = 81920, 20480
WBUF0, WBUFS = 16384, 16384
EXQ = 122880
EXF = 131072
OOB = 0x7f000000
TOUCH_LDS = 143360
XP = os.environ.get('XP', '').split(',')
FILL0 = int(os.environ.get('FILL0', 9))
TOUCH = os.environ.get("NOTOUCH") is None
FUSED = False
QSCALE = 0x3e0293ee

NSTAMP = [0]
def stamp(a, prof, real=False):
    if not prof: return
    k = NSTAMP[0]; NSTAMP[0] += 1
    if k >= 16: return
    real = real or os.environ.get('REAL') is not None
    a(f's_mem{"real" if real else ""}time s[{60+2*k}:{61+2*k}]')
    a('s_waitcnt lgkmcnt(0)')

def interleave(a, mf, fills):
    for i, m in enumerate(mf):
        a(m)
        for f in fills.get(i, []):
            a(f)

def init(a, prof):
    a(f"""
    s_cmp_ge_u32 s2, 256
    s_cbranch_scc1 L_k1_end
    s_load_dwordx2 {sr(sX,2)}, s[0:1], 0
    s_load_dwordx2 {sr(sW,2)}, s[0:1], 24
    s_load_dwordx2 {sr(sK,2)}, s[0:1], 8
    s_load_dwordx2 {sr(sV,2)}, s[0:1], 16
    s_load_dwordx2 {sr(sO,2)}, s[0:1], 56
    s_load_dwordx2 {sr(sWO,2)}, s[0:1], 32
    """)
    if FUSED:
        a('s_load_dwordx2 s[56:57], s[0:1], 40')
        a('s_load_dwordx2 s[92:93], s[0:1], 48')
        a('s_mov_b32 s58, 1474560')
        a('s_mov_b32 s59, 0x00020000')
        a('s_mov_b32 s94, 256')
        a('s_mov_b32 s95, 0x00020000')
    if prof:
        a('s_memrealtime s[96:97]')
    stamp(a, prof)
    a(f"""
    v_lshrrev_b32 v1, 6, v0
    v_and_b32 v{vLANE}, 63, v0
    s_mov_b32 s{sX+2}, 1474560
    s_mov_b32 s{sX+3}, 0x00020000
    v_readfirstlane_b32 s{sWAVE}, v1
    s_mov_b32 s{sW+2}, 4718592
    s_mov_b32 s{sW+3}, 0x00020000
    s_mov_b32 s{sK+2}, 0x4000000
    s_mov_b32 s{sK+3}, 0x00020000
    s_mov_b32 s{sV+2}, 0x4000000
    s_mov_b32 s{sV+3}, 0x00020000
    s_mov_b32 s{sO+2}, 10485760
    s_mov_b32 s{sO+3}, 0x00020000
    s_mov_b32 s{sWO+2}, 4718592
    s_mov_b32 s{sWO+3}, 0x00020000
    s_and_b32 s34, s2, 7
    s_lshr_b32 s35, s2, 3
    s_and_b32 s36, s35, 3
    s_lshl_b32 s{sHQ}, s34, 2
    s_add_u32 s{sHQ}, s{sHQ}, s36
    s_lshr_b32 s{sB}, s35, 2
    s_and_b32 s{sR}, s{sWAVE}, 1
    s_lshr_b32 s{sKH}, s{sWAVE}, 1
    ; chunk rotation c0 = (b + 2*hl) mod 9
    """)
    ROT = os.environ.get('ROT', '3')
    if ROT == '9':
        a(f"""
    s_lshl_b32 s37, s36, 1
    s_add_u32 s37, s37, s{sB}
    s_sub_u32 s38, s37, 9
    s_cmp_ge_u32 s37, 9
    s_cselect_b32 s37, s38, s37
    """)
    elif ROT == '3':
        a(f"""
    s_add_u32 s37, s{sB}, s36
    s_mul_i32 s38, s37, 43
    s_lshr_b32 s38, s38, 7
    s_mul_i32 s38, s38, 3
    s_sub_u32 s37, s37, s38
    s_mul_i32 s37, s37, 3
    """)
    else:
        a('s_mov_b32 s37, 0')
    a(f"""
    s_mul_i32 s{sXB0}, s{sB}, 184320
    s_lshl_b32 s{sWB0}, s{sHQ}, 8
    s_add_u32 s{sXE}, s{sXB0}, {9*128}
    s_lshl_b32 s38, s37, 7
    s_add_u32 s{sXo}, s{sXB0}, s38
    s_lshl_b32 s38, s37, 19
    s_add_u32 s{sWo}, s{sWB0}, s38
    """)
    l = f'v{vLANE}'
    t0, t1, t2, t3, t4, t5 = [f'v{x}' for x in vT[:6]]
    a(f"""
    s_lshl_b32 s34, s{sWAVE}, 3
    v_lshrrev_b32 {t0}, 3, {l}
    v_add_u32 {t0}, s34, {t0}
    v_mul_u32_u24 {t0}, 1152, {t0}
    v_and_b32 {t1}, 7, {l}
    v_lshrrev_b32 {t2}, 4, {l}
    v_xor_b32 {t1}, {t1}, {t2}
    s_lshl_b32 s35, s{sR}, 2
    v_xor_b32 {t1}, s35, {t1}
    v_lshl_add_u32 v{vXD[0]}, {t1}, 4, {t0}
    """)
    for i in range(1, 5):
        a(f'v_add_u32 v{vXD[i]}, {36864*i}, v{vXD[0]}')
    a(f"""
    s_lshl_b32 s34, s{sWAVE}, 2
    v_add_u32 {t0}, s34, {t2}
    v_lshlrev_b32 {t0}, 13, {t0}
    v_and_b32 {t3}, 15, {l}
    v_lshlrev_b32 {t1}, 2, {t2}
    v_xor_b32 {t1}, {t1}, {t3}
    v_lshl_add_u32 v{vWD[0]}, {t1}, 4, {t0}
    """)
    for i in range(1, 4):
        a(f'v_add_u32 v{vWD[i]}, {131072*i}, v{vWD[0]}')
    a(f"""
    s_lshl_b32 s34, s{sWAVE}, 10
    s_add_u32 s{sM0X}, s34, {XBUF0}
    s_add_u32 s{sM0W}, s34, {WBUF0}
    """)
    a('s_waitcnt lgkmcnt(0)')
    if os.environ.get('PSTAMP'): stamp(a, prof)

def initkv(a):
    l = f'v{vLANE}'
    t0, t1, t2, t3, t4, t5 = [f'v{x}' for x in vT[:6]]
    a(f"""
    ; K/V tile offsets
    s_lshr_b32 s34, s{sHQ}, 1
    s_lshl_b32 s35, s{sB}, 4
    s_add_u32 s34, s34, s35
    s_lshl_b32 s34, s34, 19
    s_lshl_b32 s35, s{sKH}, 18
    s_add_u32 s34, s34, s35
    s_lshl_b32 s35, s{sR}, 12
    s_add_u32 s{sTB}, s34, s35
    s_add_u32 s{sTE}, s{sTB}, 262144
    s_lshr_b32 s36, s{sHQ}, 1
    s_lshl_b32 s37, s{sB}, 4
    s_add_u32 s36, s36, s37
    s_mul_i32 s36, s36, {KROT}
    s_lshl_b32 s37, s{sKH}, 4
    s_add_u32 s36, s36, s37
    s_and_b32 s36, s36, {31 if KROT else 0}
    s_lshl_b32 s36, s36, 13
    s_add_u32 s{sT0}, s{sTB}, s36
    s_lshl_b32 s34, s{sKH}, 16
    s_add_u32 s{sM0K}, s34, s35
    s_mov_b32 s{sFB}, 0
    """)
    a(f"""
    v_lshrrev_b32 {t2}, 4, {l}
    v_and_b32 {t3}, 15, {l}
    v_lshlrev_b32 {t0}, 8, {t2}
    v_xor_b32 {t1}, {t3}, {t2}
    """)
    for j in range(4):
        a(f'v_xor_b32 {t4}, {4*j}, {t1}')
        a(f'v_lshl_add_u32 v{vKD[j]}, {t4}, 4, {t0}')
    a(f"""
    v_lshlrev_b32 {t4}, 1, {t2}
    v_xor_b32 {t1}, {t3}, {t4}
    """)
    for p in range(2):
        a(f'v_xor_b32 {t4}, {8*p}, {t1}')
        a(f'v_lshl_add_u32 v{vVD[p]}, {t4}, 4, {t0}')
    if TOUCH:
        a(f"""
    s_lshl_b32 s34, s2, 2
    s_add_u32 s34, s34, s{sWAVE}
    s_mul_i32 s{sTW}, s34, 4608
    v_lshlrev_b32 {t0}, 4, {l}
    v_mov_b32 {t1}, {hex(OOB)}
    v_cmp_gt_u32 vcc, 36, {l}
    s_nop 1
    v_cndmask_b32 v{vTCH}, {t1}, {t0}, vcc
    """)

def dma_x(G, within, i, buf):
    return [f's_add_u32 m0, s{sM0X}, {buf*XBUFS + 4096*i}',
            f'buffer_load_dwordx4 v{vXD[i]}, {sr(sX)}, s{sXo} offen lds']
def dma_w(G, within, i, buf):
    return [f's_add_u32 m0, s{sM0W}, {buf*WBUFS + 4096*i}',
            f'buffer_load_dwordx4 v{vWD[i]}, {sr(sW)}, s{sWo} offen lds']
def chunk_dmas(i9):
    G, w = i9 // 3, i9 % 3
    buf = i9 % 3
    pre = [] if i9 == 0 else [f's_add_u32 s{sXo}, s{sXo}, 128', f's_add_u32 s{sWo}, s{sWo}, 0x80000', f's_cmp_eq_u32 s{sXo}, s{sXE}',
                              f's_cselect_b32 s{sXo}, s{sXB0}, s{sXo}', f's_cselect_b32 s{sWo}, s{sWB0}, s{sWo}']
    grp = []
    for i in range(4):
        grp.append(dma_w(G, w, i, buf))
        grp.append(dma_x(G, w, i, buf))
    grp.append(dma_x(G, w, 4, buf))
    return pre, grp

def tile_dmas(slot):
    g = []
    for j in range(4):
        pre = [f's_add_u32 m0, s{sM0K}, {slot*16384}'] if j == 0 else []
        g.append(pre + [f'buffer_load_dwordx4 v{vKD[j]}, {sr(sK)}, s{sT} offen offset:{1024*j} nt lds'])
    for j in range(4):
        pre = [f's_add_u32 m0, s{sM0K}, {slot*16384 + 8192}'] if j == 0 else []
        g.append(pre + [f'buffer_load_dwordx4 v{vVD[j&1]}, {sr(sV)}, s{sT} offen offset:{1024*j} nt lds'])
    return g

def emit_groups(a, groups):
    for g in groups:
        for k, ins in enumerate(g):
            a(ins)
            if 'm0' in ins.split(',')[0]:
                a('s_nop 0')

def init2(a):
    l = f'v{vLANE}'
    t0, t1, t2, t3, t4, t5, t6 = [f'v{x}' for x in vT[:7]]
    a(f"""
    v_lshrrev_b32 {t2}, 4, {l}
    v_and_b32 {t3}, 15, {l}
    v_lshrrev_b32 {t5}, 2, {l}
    v_and_b32 {t5}, 3, {t5}
    v_and_b32 {t6}, 3, {l}
    s_mul_i32 s34, s{sR}, 10240
    s_add_u32 s34, s34, {XBUF0}
    v_lshlrev_b32 {t0}, 7, {t3}
    v_add_u32 {t0}, s34, {t0}
    v_lshrrev_b32 {t1}, 1, {t3}
    v_xor_b32 {t4}, {t2}, {t1}
    v_lshl_add_u32 v{vXR[0]}, {t4}, 4, {t0}
    v_xor_b32 {t4}, 4, {t4}
    v_lshl_add_u32 v{vXR[1]}, {t4}, 4, {t0}
    v_lshl_add_u32 {t0}, {t2}, 3, {t5}
    v_lshlrev_b32 {t0}, 8, {t0}
    v_add_u32 {t0}, {WBUF0}, {t0}
    s_lshl_b32 s34, s{sKH}, 1
    """)
    for sp in range(2):
        a(f"""
    s_add_u32 s35, s34, {sp}
    v_xor_b32 {t1}, s35, {t5}
    v_lshl_add_u32 {t1}, {t1}, 2, {t6}
    v_lshl_add_u32 v{vWR[sp]}, {t1}, 4, {t0}
    """)
    a(f"""
    s_lshl_b32 s35, s{sKH}, 16
    v_lshlrev_b32 {t0}, 8, {t3}
    v_add_u32 {t0}, s35, {t0}
    """)
    for sp in range(4):
        a(f"""
    s_xor_b32 s36, s34, {sp}
    s_lshl_b32 s36, s36, 2
    v_add_u32 {t1}, s36, {t2}
    v_xor_b32 {t1}, {t1}, {t3}
    v_lshl_add_u32 v{vKA[sp]}, {t1}, 4, {t0}
    """)
    a(f"""
    v_lshl_add_u32 {t0}, {t2}, 2, {t5}
    v_lshlrev_b32 {t0}, 8, {t0}
    s_add_u32 s35, s35, 8192
    v_add_u32 {t0}, s35, {t0}
    v_and_b32 {t1}, 1, {t6}
    v_lshl_add_u32 {t0}, {t1}, 3, {t0}
    v_lshrrev_b32 {t1}, 1, {t6}
    v_lshl_add_u32 {t0}, {t1}, 4, {t0}
    v_and_b32 {t1}, 1, {t2}
    v_lshl_add_u32 {t1}, {t1}, 2, {t5}
    s_lshl_b32 s36, s{sKH}, 2
    """)
    for n in range(8):
        a(f"""
    s_xor_b32 s37, s36, {n}
    v_xor_b32 {t4}, s37, {t1}
    v_lshl_add_u32 v{vVA[n]}, {t4}, 5, {t0}
    """)
    a(f"""
    s_mul_i32 s34, s{sWAVE}, 10240
    s_add_u32 s34, s34, {EXQ}
    v_lshlrev_b32 {t0}, 4, {l}
    v_add_u32 v{vE}, s34, {t0}
    s_xor_b32 s35, s{sWAVE}, 2
    s_mul_i32 s35, s35, 10240
    s_add_u32 s35, s35, {EXQ}
    v_add_u32 v{vEP}, s35, {t0}
    """)
    zero_acc(a, keep=False)
    for i in range(4):
        a(f'v_mov_b32 v{vONES+i}, 0x3f803f80')
    for j in range(5):
        for i in range(4):
            a(f'v_mov_b32 v{CI(j)+i}, 0')

def zero_acc(a, keep=True):
    for i in range(100):
        a(f'v_accvgpr_write_b32 a{i}, 0')
    for i in range(32):
        a(f'v_accvgpr_write_b32 a{VF(1,0)+i}, 0')
    for i in range(4):
        a(f'v_mov_b32 v{P(1)+i}, 0')
    if keep:
        for i in range(0, 80, 2):
            a(f'v_pk_mov_b32 {vr(96+i,2)}, 0, 0')

def qfrag_reads(u):
    i9, ks = u // 2, u % 2
    buf, fb = i9 % 3, u % 2
    r = []
    for j in range(5):
        r.append(f'ds_read_b128 {ar(QB(fb, j))}, v{vXR[ks]} offset:{XBUFS*buf + 2048*j}')
    for sp in range(2):
        for t in range(2):
            for h in range(2):
                r.append(f'ds_read_b64_tr_b16 {ar(QA(fb, 2*sp+t)+2*h, 2)}, v{vWR[sp]} offset:{WBUFS*buf + 8192*ks + 1024*h + 8*t}')
    A = r[5:]; B = r[:5]
    return [A[0], A[1], B[0], B[1], B[2], B[3], B[4]] + A[2:]

class VQ:
    def __init__(self): self.q = []
    def add(self, tag): self.q.append(tag)
    def need(self, tags):
        last = -1
        for i, t in enumerate(self.q):
            if t in tags: last = i
        n = len(self.q) - 1 - last
        self.q = self.q[last + 1:]
        return min(n, 63)

T0LATE = os.environ.get('T0LATE', '0') == '1'
def qproj(a, prof):
    q = VQ()
    def tagged(groups, tag): return [(g, tag) for g in groups]
    groups = []
    for i9 in range(3):
        pre, grp = chunk_dmas(i9)
        groups += tagged([pre + grp[0]] + grp[1:], ('C', i9))
    td = tile_dmas(0)
    t0 = tagged([[f's_mov_b32 s{sT}, s{sT0}'] + td[0]] + td[1:-1] + [td[-1] + t_adv()], ('T', 0))
    if not T0LATE: groups += t0; t0 = []
    tmp = Asm(); initkv(tmp); init2(tmp)
    fill = [i.text for i in tmp.items]
    per = -(-len(fill) // (len(groups) - FILL0))
    for d, (g, tag) in enumerate(groups):
        for k_, ins in enumerate(g):
            a(ins)
            if 'm0' in ins.split(',')[0]: a('s_nop 0')
            if ins.startswith('buffer'): q.add(tag)
        if d >= FILL0 - 1:
            for ins in fill[:per]: a(ins)
            fill = fill[per:]
        if os.environ.get('PSTAMP') and d in (0, 8, 17, 26): stamp(a, prof)
    assert not fill
    stamp(a, prof)
    a(f's_waitcnt vmcnt({q.need([("C", 0)])})')
    a('s_barrier')
    stamp(a, prof)
    for r in qfrag_reads(0): a(r)
    pend = []
    for u in range(18):
        fb = u % 2
        if u % 2 == 1:
            c = u // 2
            if c + 1 <= 8: a(f's_waitcnt vmcnt({q.need([("C", c + 1)])}) lgkmcnt(0)')
            else: a('s_waitcnt lgkmcnt(0)')
            a('s_barrier')
            if u in (1, 17): stamp(a, prof)
            assert not pend
            if c + 3 <= 8:
                pre, grp = chunk_dmas(c + 3)
                pend = tagged([pre + grp[0]] + grp[1:], ('C', c + 3))
                if c >= 2 and t0:
                    sl = t0[:3]; t0 = t0[3:]
                    n0 = 8 - len(t0) - len(sl)
                    g0, tg = sl[0]
                    if not any('m0' in x.split(',')[0] for x in g0):
                        g0 = [f's_add_u32 m0, s{sM0K}, {0 if n0 < 4 else 8192}'] + g0
                    pend += [(g0, tg)] + sl[1:]
            elif c + 3 == 9:
                pend = tagged(tile_dmas(1) + [t_adv()], ('T', 1))
            elif c + 3 == 10:
                pend = tagged(tile_dmas(2) + [t_adv()], ('T', 2))
        else:
            a('s_waitcnt lgkmcnt(0)')
        mf = []
        for t in range(4):
            for j in range(5):
                c_ = '0' if u == 0 else vr(QACC(j, t))
                mf.append(f'{MF} {vr(QACC(j,t))}, {ar(QA(fb,t))}, {ar(QB(fb,j))}, {c_}')
        fills = {}
        reads = qfrag_reads(u + 1) if u < 17 else []
        g = 0
        while reads:
            fills.setdefault(g, []).extend(reads[:2]); reads = reads[2:]; g += 1
        g = 7
        nmax = 6 if u % 2 == 1 else 99
        cnt = 0
        while pend and g < 19 and cnt < nmax:
            grp, tag = pend.pop(0)
            bi = [n for n, x in enumerate(grp) if x.startswith('buffer')]
            if bi:
                fills.setdefault(g, []).extend(grp[:bi[0]])
                fills.setdefault(g + 1, []).extend(grp[bi[0]:])
                q.add(tag)
                g += 2
            else:
                fills.setdefault(g, []).extend(grp); g += 1
            cnt += 1
        if u % 2 == 0: assert not pend, (u, pend)
        interleave(a, mf, fills)
    assert not pend and not t0
    assert q.need([('T', 1)]) == 8

def qfin(a, prof):
    stamp(a, prof)
    a(f's_mov_b32 s34, {hex(QSCALE)}')
    a(f's_mov_b32 s35, {hex(QSCALE)}')
    for r in k_reads(0, 0) + v_reads(0, 0): a(r)
    for j in range(5):
        for t in range(4):
            for i in (0, 2):
                a(f'v_pk_mul_f32 {vr(QACC(j,t)+i,2)}, {vr(QACC(j,t)+i,2)}, s[34:35]')
        for sp in range(2):
            for t in range(2):
                b = QACC(j, 2*sp + t)
                a(f'v_cvt_pk_bf16_f32 v{Q(j,sp)+2*t}, v{b}, v{b+1}')
                a(f'v_cvt_pk_bf16_f32 v{Q(j,sp)+2*t+1}, v{b+2}, v{b+3}')
        for sp in range(2):
            a(f'ds_write_b128 v{vE}, {vr(Q(j,sp))} offset:{(j*2+sp)*1024}')
    for i in range(0, 48, 2):
        a(f'v_pk_mov_b32 {vr(96+i,2)}, 0, 0')
    a('s_waitcnt vmcnt(8) lgkmcnt(0)')
    a('s_barrier')
    for j in range(5):
        for sp in range(2):
            a(f'ds_read_b128 {vr(Q(j,2+sp))}, v{vEP} offset:{(j*2+sp)*1024}')
    for i in range(48, 80, 2):
        a(f'v_pk_mov_b32 {vr(96+i,2)}, 0, 0')
    if FUSED == 3:
        import tail3
        tail3.tile_part1(a)
    a('s_waitcnt lgkmcnt(8)')

def k_reads(buf, slot):
    return [f'ds_read_b128 {ar(KF(buf,kb,ds))}, v{vKA[ds]} offset:{slot*16384 + kb*4096}' for kb in range(2) for ds in range(4)]
def v_reads(buf, slot):
    return [f'ds_read_b64_tr_b16 {ar(VF(buf,n)+2*h, 2)}, v{vVA[n]} offset:{slot*16384 + h*4096}' for n in range(8) for h in range(2)]
def qk_mf(j, kbuf, sbuf, cinit=True):
    m = []
    order = [(kb, ds) for kb in range(2) for ds in range(4)]
    if 'il' in XP: order = [(kb, ds) for ds in range(4) for kb in range(2)]
    for kb, ds in order:
        c = (vr(CI(j)) if cinit and 'c0' not in XP else '0') if ds == 0 else vr(S(sbuf, kb))
        m.append(f'{MF} {vr(S(sbuf,kb))}, {ar(KF(kbuf,kb,ds))}, {vr(Q(j,ds))}, {c}')
    return m
def pv_mf(j, vbuf, pbuf):
    m = [f'{MF} {ar(LS(j))}, {vr(vONES)}, {vr(P(pbuf))}, {ar(LS(j))}']
    for n in range(8):
        m.append(f'{MF} {OREG(j,n)}, {ar(VF(vbuf,n))}, {vr(P(pbuf))}, {OREG(j,n)}')
    return m

def pre_loop(a, prof):
    a.label('L_attn0')
    stamp(a, prof)
    mf = qk_mf(0, 0, 0)
    kr = k_reads(1, 1)
    td = tile_dmas(3)
    fills = {}
    for i in range(8):
        fills[i] = [kr[i]]
    interleave(a, mf, fills)
    a('s_waitcnt lgkmcnt(8)')
    a('s_barrier')
    emit_groups(a, td)
    for x in t_adv(): a(x)
    a(f's_mov_b32 s{sL}, 0')

def step(a, t, mode='loop', extra=None):
    extra = extra or {}
    td = tile_dmas(t % 4)
    vreads = v_reads((t + 1) & 1, (t + 1) % 4)
    kreads = k_reads(t & 1, (t + 2) % 4)
    for j in range(5):
        pn = (t + j) & 1
        if j < 4: qk = qk_mf(j + 1, t & 1, (pn + 1) & 1)
        else: qk = qk_mf(0, (t + 1) & 1, (pn + 1) & 1)
        if j == 0: pv = pv_mf(4, (t - 1) & 1, (pn + 1) & 1)
        else: pv = pv_mf(j - 1, t & 1, (pn + 1) & 1)
        if mode == 'p31' and j == 4:
            fills = {g: [] for g in range(9)}
            for e in range(8):
                reg = S(pn, e // 4) + (e % 4)
                fills[e].append(f'v_exp_f32 v{reg}, v{reg}')
            for g, l_ in extra.get(j, {}).items(): fills[g] += l_
            interleave(a, pv, fills)
            for c in range(4):
                b = S(pn, c // 2) + 2 * (c % 2)
                a(f'v_cvt_pk_bf16_f32 v{P(pn)+c}, v{b}, v{b+1}')
            continue
        mf = qk + pv
        fills = {g: [] for g in range(17)}
        for e in range(8):
            reg = S(pn, e // 4) + (e % 4)
            fills[2 * e].append(f'v_exp_f32 v{reg}, v{reg}')
        cv = []
        for c in range(4):
            b = S(pn, c // 2) + 2 * (c % 2)
            cv.append(f'v_cvt_pk_bf16_f32 v{P(pn)+c}, v{b}, v{b+1}')
        free2 = [1, 5, 9, 13, 16]
        free1 = [3, 7, 11, 15]
        rd = []
        if j in (1, 2): rd = [vreads.pop(0) for _ in range(6)]
        elif j == 3: rd = [vreads.pop(0) for _ in range(4)]
        elif j == 4: rd = list(kreads)
        if mode == 'p31' or (mode == 'p30' and j == 4): rd = []
        order = [(1, 2), (3, 1), (5, 2), (7, 1), (9, 2)]
        for g, k in order:
            for _ in range(k):
                if rd: fills[g].append(rd.pop(0))
        assert not rd
        for c, g in enumerate(free1):
            fills[g].append(cv[c])
        if mode != 'loop':
            for g, l_ in extra.get(j, {}).items(): fills[g] += l_
            interleave(a, mf, fills)
            continue
        if j < 4:
            d0 = td[2 * j]; d1 = td[2 * j + 1]
            if len(d0) == 2:
                fills[11].append(d0[0])
            gA, gB = (13, 16) if j < 3 else (9, 13)
            fills[gA].append(d0[-1]); fills[gB].append(d1[-1])
        if j == 3:
            fills[16] += [f's_waitcnt vmcnt({17 if (TOUCH and t in (1, 2)) else 16}) lgkmcnt(0)', 's_barrier']
        if j == 4:
            ta = t_adv()
            fills[11 if KROT else 13].append(ta[0])
            fills[13] += ta[1:]
            if TOUCH and t == 0:
                fills[15].append(f's_mov_b32 m0, {TOUCH_LDS}')
                fills[16].append(f'buffer_load_dwordx4 v{vTCH}, {sr(sWO)}, s{sTW} offen lds')
            if TOUCH and t == 1:
                fills[15].append(f's_add_u32 s{sTW}, s{sTW}, 576')
            if FUSED == 3 and t == 1:
                fills[16] += [f's_cmp_eq_u32 s{sL}, 7', 's_cbranch_scc1 L_peel']
        for g in fills:
            if 'nobar' in XP: fills[g] = [x for x in fills[g] if x != 's_barrier']
            if 'nodma' in XP: fills[g] = [x for x in fills[g] if not x.startswith('buffer_load')]
            if 'noexp' in XP: fills[g] = [x for x in fills[g] if not x.startswith('v_exp')]
            if 'nords' in XP: fills[g] = [x for x in fills[g] if not x.startswith('ds_read')]
            if 'nocvt' in XP: fills[g] = [x for x in fills[g] if not x.startswith('v_cvt')]
            if 'nowait' in XP: fills[g] = [x for x in fills[g] if not x.startswith('s_waitcnt')]
        if 'nols' in XP: mf = [m for n, m in enumerate(mf) if n != 8]
        interleave(a, mf, fills)

def loop(a):
    a.label('L_loop')
    for t in range(4): step(a, t)
    a(f"""
    s_add_u32 s{sL}, s{sL}, 1
    s_cmp_eq_u32 s{sL}, 7
    s_cselect_b32 s{sT}, {hex(OOB)}, s{sT}
    """)
    if FUSED == 3:
        a('s_branch L_loop')
    else:
        a(f"""
    s_cmp_lt_u32 s{sL}, 8
    s_cbranch_scc1 L_loop
    """)

def final_pv(a):
    if FUSED == 3: return
    for m in pv_mf(4, 1, 1): a(m)

def epilogue(a, prof):
    if FUSED == 2:
        import tail2
        return tail2.gen(a, prof)
    if FUSED == 3:
        import tail3
        return tail3.gen(a, prof)
    t = [f'v{x}' for x in vT]
    l = f'v{vLANE}'
    stamp(a, prof)
    a('s_nop 7')
    for j in range(5):
        a(f'v_accvgpr_read_b32 {t[j]}, a{LS(j)}')
    a(f"""
    v_mov_b32 {t[5]}, 0x33800000
    v_mov_b32 {t[6]}, 0x4e800000
    s_mov_b64 s[36:37], 0
    """)
    for j in range(5):
        a(f'v_cmp_nge_f32 vcc, {t[j]}, {t[5]}')
        a(f's_or_b64 s[36:37], s[36:37], vcc')
        a(f'v_cmp_nle_f32 vcc, {t[j]}, {t[6]}')
        a(f's_or_b64 s[36:37], s[36:37], vcc')
    a(f"""
    s_cmp_lg_u64 s[36:37], 0
    s_cselect_b32 s38, 1, 0
    v_mov_b32 {t[5]}, s38
    s_lshl_b32 s34, s{sWAVE}, 2
    s_add_u32 s34, s34, {EXF}
    v_mov_b32 {t[6]}, s34
    ds_write_b32 {t[6]}, {t[5]}
    s_mul_i32 s34, s{sWAVE}, 1280
    s_add_u32 s34, s34, {EXF+256}
    v_lshlrev_b32 {t[7]}, 2, {l}
    v_add_u32 {t[6]}, s34, {t[7]}
    """)
    for j in range(5):
        a(f'ds_write_b32 {t[6]}, {t[j]} offset:{256*j}')
    a(f"""
    s_xor_b32 s35, s{sWAVE}, 2
    s_mul_i32 s34, s35, 1280
    s_add_u32 s34, s34, {EXF+256}
    v_add_u32 {t[7]}, s34, {t[7]}
    v_mov_b32 {t[8]}, {EXF}
    s_waitcnt vmcnt(0) lgkmcnt(0)
    s_barrier
    ds_read_b128 v[{S(0,0)}:{S(0,0)+3}], {t[8]}
    """)
    for j in range(5):
        a(f'ds_read_b32 v{S(1,0)+j}, {t[7]} offset:{256*j}')
    a(f"""
    s_mul_i32 s34, s{sWAVE}, 20480
    v_lshlrev_b32 {t[9]}, 4, {l}
    v_add_u32 {t[6]}, s34, {t[9]}
    s_mul_i32 s34, s35, 20480
    v_add_u32 {t[7]}, s34, {t[9]}
    """)
    for j in range(5):
        for n in range(4):
            a(f'ds_write_b128 {t[6]}, {ar(OSEND(j,4+n))} offset:{(j*4+n)*1024}')
        if j == 0:
            a('s_waitcnt lgkmcnt(4)')
            b = S(0, 0)
            a(f"""
    v_or_b32 v{b}, v{b}, v{b+1}
    v_or3_b32 v{b}, v{b}, v{b+2}, v{b+3}
    s_nop 0
    v_readfirstlane_b32 s38, v{b}
    s_xor_b32 s39, s{sFB}, 1
    s_and_b32 s38, s38, s39
    s_cmp_lg_u32 s38, 0
    s_cbranch_scc1 L_fallback
    """)
            for jj in range(5):
                a(f'v_add_f32 {t[jj]}, {t[jj]}, v{S(1,0)+jj}')
            for jj in range(5):
                a(f'v_rcp_f32 {t[jj]}, {t[jj]}')
    a('s_waitcnt lgkmcnt(0)')
    a('s_barrier')
    for j in range(5):
        for n in range(4):
            a(f'ds_read_b128 {vr(Q(j,n))}, {t[7]} offset:{(j*4+n)*1024}')
    a(f"""
    s_mul_i32 s34, s{sB}, 10
    s_mul_i32 s35, s{sR}, 5
    s_add_u32 s34, s34, s35
    s_lshl_b32 s34, s34, 7
    s_lshl_b32 s35, s{sHQ}, 2
    s_add_u32 s34, s34, s35
    s_lshl_b32 s35, s{sKH}, 1
    s_add_u32 s34, s34, s35
    s_lshl_b32 s34, s34, 10
    """)
    for j in range(5):
        a(f's_waitcnt lgkmcnt({min(12, 16-4*j)})')
        for n in range(4):
            for i in range(4):
                a(f'v_add_f32 v{OKEEP(j,n)+i}, v{OKEEP(j,n)+i}, v{Q(j,n)+i}')
        for n in range(4):
            for i in range(4):
                a(f'v_mul_f32 v{OKEEP(j,n)+i}, {t[j]}, v{OKEEP(j,n)+i}')
        for u in range(2):
            for hh in range(2):
                b = OKEEP(j, 2*u + hh)
                a(f'v_cvt_pk_bf16_f32 v{Q(j,u)+2*hh}, v{b}, v{b+1}')
                a(f'v_cvt_pk_bf16_f32 v{Q(j,u)+2*hh+1}, v{b+2}, v{b+3}')
        if j > 0: a(f's_add_u32 s34, s34, {128*1024}')
        for u in range(2):
            a(f'buffer_store_dwordx4 {vr(Q(j,u))}, {t[9]}, {sr(sO)}, s34 offen offset:{1024*u}' + (' sc1' if FUSED else ''))
    if FUSED:
        import tail
        tail.gen_tail(a, prof)
    elif prof:
        a('s_waitcnt vmcnt(0)')
        stamp(a, prof)
        dump_stamps(a, t[0])
    a('s_branch L_k1_end')

def dump_dbg(a, tv):
    sel = [int(x) for x in os.environ['DBGP'].split(',')]
    slots = [1, 2, 3, 4, 5, 6, 7, 9, 10, 11, 12, 13, 14, 15]
    a(f's_cmp_lg_u32 s{sWAVE}, 0')
    a('s_cbranch_scc1 L_k1_end')
    a(f's_cmp_lg_u32 s2, {os.environ.get("DBGW", "100")}')
    a('s_cbranch_scc1 L_k1_end')
    a('s_mov_b64 exec, 1')
    a(f'v_mov_b32 {tv}, 0')
    for n, k in enumerate(sel):
        a(f's_sub_u32 s34, s{60+2*k}, s60')
        a(f'v_mov_b32 v{201+n}, s34')
        a(f'buffer_store_dword v{201+n}, {tv}, s[92:95], 0 offen offset:{4*slots[n]}')

def dump_stamps(a, tv):
    if os.environ.get('DBGP'): return dump_dbg(a, tv)
    if True:
        a('s_memrealtime s[98:99]')
        a('s_waitcnt lgkmcnt(0)')
        a(f"""
    s_lshl_b32 s34, s2, 2
    s_add_u32 s34, s34, s{sWAVE}
    s_lshl_b32 s34, s34, 7
    s_add_u32 s34, s34, 0x1000000
    s_mov_b32 s{sO+2}, 0x2000000
    v_mov_b32 {tv}, s34
    """)
        for k in range(NSTAMP[0]):
            a(f's_sub_u32 s35, s{60+2*k}, s60')
            a(f'v_mov_b32 v{200+k}, s35')
            a(f'buffer_store_dword v{200+k}, {tv}, {sr(sO)}, 0 offen offset:{4*k}')
        a('v_mov_b32 v230, s96')
        a('v_mov_b32 v231, s98')
        a(f'buffer_store_dword v230, {tv}, {sr(sO)}, 0 offen offset:120')
        a(f'buffer_store_dword v231, {tv}, {sr(sO)}, 0 offen offset:124')

def fallback(a):
    t = [f'v{x}' for x in vT]
    l = f'v{vLANE}'
    a.label('L_fallback')
    a('s_waitcnt vmcnt(0) lgkmcnt(0)')
    a('s_barrier')
    for j in range(5):
        a(f'v_mov_b32 {t[j]}, 0xff800000')
    a(f's_sub_u32 s{sT}, s{sTE}, 262144')
    a(f's_mov_b32 s{sL}, 0')
    a.label('L_fb_loop')
    a(f's_mov_b32 m0, s{sM0K}')
    a('s_nop 0')
    for j in range(4):
        a(f'buffer_load_dwordx4 v{vKD[j]}, {sr(sK)}, s{sT} offen offset:{1024*j} lds')
    a('s_waitcnt vmcnt(0)')
    a('s_barrier')
    for r in k_reads(0, 0): a(r)
    a('s_waitcnt lgkmcnt(0)')
    a('s_barrier')
    for j in range(5):
        for m in qk_mf(j, 0, 0, cinit=False): a(m)
        a('s_nop 7')
        b0, b1 = S(0, 0), S(0, 1)
        a(f'v_max3_f32 {t[j]}, {t[j]}, v{b0}, v{b0+1}')
        a(f'v_max3_f32 {t[j]}, {t[j]}, v{b0+2}, v{b0+3}')
        a(f'v_max3_f32 {t[j]}, {t[j]}, v{b1}, v{b1+1}')
        a(f'v_max3_f32 {t[j]}, {t[j]}, v{b1+2}, v{b1+3}')
    a(f"""
    s_add_u32 s{sT}, s{sT}, 8192
    s_add_u32 s{sL}, s{sL}, 1
    s_cmp_lt_u32 s{sL}, 32
    s_cbranch_scc1 L_fb_loop
    """)
    a(f"""
    s_mul_i32 s34, s{sWAVE}, 1280
    s_add_u32 s34, s34, {EXF}
    v_lshlrev_b32 {t[7]}, 2, {l}
    v_add_u32 {t[6]}, s34, {t[7]}
    """)
    for j in range(5):
        a(f'ds_write_b32 {t[6]}, {t[j]} offset:{256*j}')
    a(f"""
    s_waitcnt lgkmcnt(0)
    s_barrier
    v_and_b32 {t[7]}, 15, {l}
    v_lshlrev_b32 {t[7]}, 2, {t[7]}
    s_mul_i32 s34, s{sR}, 1280
    s_add_u32 s34, s34, {EXF}
    v_add_u32 {t[7]}, s34, {t[7]}
    """)
    for j in range(5):
        regs = [S(0,0)+i for i in range(8)]
        k = 0
        for kh in range(2):
            for g in range(4):
                a(f'ds_read_b32 v{regs[k]}, {t[7]} offset:{kh*2560 + j*256 + g*64}')
                k += 1
        a('s_waitcnt lgkmcnt(0)')
        a(f'v_max3_f32 {t[8]}, v{regs[0]}, v{regs[1]}, v{regs[2]}')
        a(f'v_max3_f32 {t[8]}, {t[8]}, v{regs[3]}, v{regs[4]}')
        a(f'v_max3_f32 {t[8]}, {t[8]}, v{regs[5]}, v{regs[6]}')
        a(f'v_max_f32 {t[8]}, {t[8]}, v{regs[7]}')
        for i in range(4):
            a(f'v_sub_f32 v{CI(j)+i}, 0, {t[8]}')
    zero_acc(a, keep=True)
    a(f's_mov_b32 s{sFB}, 1')
    if FUSED == 3:
        import tail3
        a(f's_mul_i32 s{tail3.sBo}, s{sWAVE}, 1179648')
    a(f's_mov_b32 s{sT}, s{sT0}')
    a('s_barrier')
    for slot in range(3):
        emit_groups(a, tile_dmas(slot))
        for x in t_adv(): a(x)
    a('s_waitcnt vmcnt(8)')
    a('s_barrier')
    for r in k_reads(0, 0) + v_reads(0, 0): a(r)
    a('s_waitcnt lgkmcnt(0)')
    a('s_branch L_attn0')

def gen_k1(prof=False):
    NSTAMP[0] = 0
    segs = {}
    def seg(name, f, *args):
        x = Asm(); f(x, *args); segs[name] = x; return x
    seg('init', init, prof)
    seg('qproj', qproj, prof)
    seg('qfin', qfin, prof)
    seg('pre', pre_loop, prof)
    seg('loop', loop)
    seg('fin', final_pv)
    seg('epi', epilogue, prof)
    seg('fb', fallback)
    order = ['init', 'qproj', 'qfin', 'pre', 'loop', 'fin', 'epi', 'fb']
    return segs, order
```

```python
import sys, struct, math
sys.path.insert(0, 'gen')
from asmlib import Asm, Ins, check_trace
import k1, k2

NAME = 'standalone__gqa_block_cached__near_ridge'

def desc(name, vgpr=512, accum=256, sgpr=102):
    return f""".amdhsa_kernel {name}
  .amdhsa_next_free_vgpr {vgpr}
  .amdhsa_next_free_sgpr {sgpr}
  .amdhsa_accum_offset {accum}
  .amdhsa_group_segment_fixed_size 0
  .amdhsa_kernarg_size 64
  .amdhsa_user_sgpr_count 2
  .amdhsa_user_sgpr_kernarg_segment_ptr 1
  .amdhsa_system_sgpr_workgroup_id_x 1
.end_amdhsa_kernel
"""

def ins_only(asm): return [i for i in asm.items if isinstance(i, Ins)]

def check_k1(segs):
    I = {k: ins_only(v) for k, v in segs.items()}
    lp = I['loop']
    ex = [n for n, i in enumerate(lp) if 'L_peel' in i.text]
    last = lp[:ex[0] + 1] if ex else lp
    tr = I['init'] + I['qproj'] + I['qfin'] + I['pre'] + lp + last + I['fin'] + I['epi']
    p = check_trace(tr, 'k1 main')
    epi = I['epi']
    cut = [n for n, i in enumerate(epi) if 'L_fallback' in i.text][0]
    fb = I['fb']
    l0 = [n for n, i in enumerate(fb) if 'L_fb_loop' in i.text][0]
    body_start = [n for n, i in enumerate(fb) if i.text.startswith('s_mov_b32 m0')][0]
    fb2 = fb[:l0 + 1] + fb[body_start:]
    tr2 = I['pre'] + lp + last + I['fin'] + epi[:cut + 1] + fb2 + I['pre'] + lp + last + I['fin'] + epi
    p += check_trace(tr2, 'k1 fallback')
    if I.get('loopB'):
        p += check_trace(I['qfin'] + I['pre'] + I['loopB'] + I['loopB'] + I['fin'] + I['epi'], 'k1 loopB')
    return p

def check_k2(segs):
    I = {k: ins_only(v) for k, v in segs.items()}
    return check_trace(I['init'] + I['loop'] + I['loop'] + I['tail'] + I['epi'], 'k2')

def build(prof=False, k1only=False, var=''):
    q = struct.unpack('<I', struct.pack('<f', 128 ** -0.5 * math.log2(math.e)))[0]
    assert q == k1.QSCALE, hex(q)
    if 'fused' in var:
        k1.FUSED = 4 if 'fused4' in var else 3 if 'fused3' in var else 2 if 'fused2' in var else True; k1only = True
    segs, order = k1.gen_k1(prof)
    probs = check_k1(segs)
    hdr = open('cdna_kernels/' + NAME + '.s.ref').read().split('; Override launch')[0]
    out = [hdr]
    kn = NAME + '_kernel'
    kn2 = 'gqa_outproj_kernel'
    if k1only:
        out.append('; @launch grid=(256,1,1) block=(256,1,1) lds=163840\n')
    else:
        out.append(f'; @launch kernel={kn} grid=(256,1,1) block=(256,1,1) lds=163840\n')
        out.append(f'; @launch kernel={kn2} grid=(243,1,1) block=(256,1,1) lds=131072\n')
        if 'k2twice' in var: out.append(f'; @launch kernel={kn2} grid=(243,1,1) block=(256,1,1) lds=131072\n')
    out.append('.amdgcn_target "amdgcn-amd-amdhsa--gfx950"\n.text\n')
    out.append(f'.globl {kn}\n.p2align 8\n.type {kn},@function\n{kn}:\n')
    for o in order: out.append(segs[o].text())
    out.append('L_k1_end:\n    s_endpgm\n')
    if not k1only:
        s2, o2 = k2.gen_k2(prof, var)
        probs += check_k2(s2)
        out.append(f'.globl {kn2}\n.p2align 8\n.type {kn2},@function\n{kn2}:\n')
        for o in o2: out.append(s2[o].text())
        out.append('L_k2_end:\n    s_endpgm\n')
    out.append('.section .rodata,"a"\n.p2align 6\n')
    out.append(desc(kn))
    if not k1only:
        out.append('.p2align 6\n' + desc(kn2, 256, 256))
    return ''.join(out), probs

if __name__ == '__main__':
    prof = 'prof' in sys.argv
    outp = [a for a in sys.argv[1:] if a.endswith('.s')]
    txt, probs = build(prof=prof, k1only='k1only' in sys.argv, var=' '.join(sys.argv))
    open(outp[0] if outp else 'k1.s', 'w').write(txt)
    print('lines', txt.count('\n'), 'bytes', len(txt))
```

```python
import os
from asmlib import Asm
import k1
from k1 import (vr, ar, sr, MF, sWAVE, sB, sO, sWO, sR, sKH, sHQ, sFB, vLANE, stamp, vT, LS, S, P, Q, OKEEP, OSEND, CI,
                step, pv_mf, interleave, vONES, VF, OREG)
sOUT, sDBG = 56, 92
sMT, sNT, sA, sBo, sM0 = 40, 41, 42, 43, 44
sXA, sXB = 45, 46
NWG = 243
MAP = os.environ.get('MAP', 'C')
DO = int(os.environ.get('DO', 5))
WFIRST = int(os.environ.get('WFIRST', 0))
NREG = 22
K_ = 1024
ASL = [0, 16*K_, 64*K_, 80*K_]
XSL = [32*K_, 48*K_, 96*K_, 112*K_, 128*K_, 144*K_]
SEQ = ASL + XSL
def slot(k): return ASL[k] if k < 4 else SEQ[(k - 4) % 10]
EXA = [32*K_, 52*K_, 104*K_, 128*K_]
EXB = [44*K_, 96*K_, 116*K_, 140*K_]
EXL = 148*K_
vWO = [3, 4, 5, 6]; vO = [7, 8, 9]; T = [10, 11, 12, 13, 14, 15]
vSA, vSB, vL16 = 7, 8, 9
vPA, vPB, vPL, vFL = 10, 11, 12, 13
vPOLL = 1
RDE = 176
def vRD(base, nb, early=False): return (RDE if early else 16) + base * 4 + nb
def ACC(nb, mb): return 28 + (nb * 3 + mb) * 4
def OR(slot_, mb): return 76 + (slot_ * 3 + mb) * 4
assert 76 + DO * 12 <= 160
def WR(k, nb):
    if k < 16: return ('a', k * 16 + nb * 4)
    if k < NREG: return ('v', 160 + (k - 16) * 16 + nb * 4)
    return ('a', (k & 1) * 16 + nb * 4)
def rtxt(r, n=4, off=0): return f'{r[0]}[{r[1]+off}:{r[1]+off+n-1}]'

def sel4(a, dst, vals):
    a(f's_mov_b32 s{dst}, {vals[0]}')
    for w in range(1, 4):
        a(f's_cmp_eq_u32 s{sWAVE}, {w}')
        a(f's_cselect_b32 s{dst}, {vals[w]}, s{dst}')

def tile_part1(a):
    t = [f'v{x}' for x in vT]
    l = f'v{vLANE}'
    a(f"""
    s_and_b32 s34, s2, 7
    s_lshr_b32 s35, s2, 3
    s_mul_i32 s36, s34, 30
    s_min_u32 s37, s34, 3
    s_add_u32 s36, s36, s37
    s_add_u32 s36, s36, s35
    """)
    if MAP == 'B':
        a(f"""
    s_mul_i32 s37, s36, 7282
    s_lshr_b32 s{sMT}, s37, 16
    s_mul_i32 s38, s{sMT}, 9
    s_sub_u32 s{sNT}, s36, s38
    """)
    elif MAP == 'C':
        a(f"""
    s_lshr_b32 s{sMT}, s36, 2
    s_and_b32 s{sNT}, s36, 3
    s_sub_u32 s37, s36, 108
    s_mul_i32 s38, s37, 13108
    s_lshr_b32 s38, s38, 16
    s_mul_i32 s39, s38, 5
    s_sub_u32 s39, s37, s39
    s_add_u32 s39, s39, 4
    s_cmp_ge_u32 s36, 108
    s_cselect_b32 s{sMT}, s38, s{sMT}
    s_cselect_b32 s{sNT}, s39, s{sNT}
    """)
    else:
        a(f"""
    s_mul_i32 s37, s36, 811
    s_lshr_b32 s37, s37, 16
    s_mul_i32 s38, s37, 81
    s_sub_u32 s38, s36, s38
    s_mul_i32 s39, s38, 171
    s_lshr_b32 s{sMT}, s39, 9
    s_mul_i32 s39, s{sMT}, 3
    s_sub_u32 s39, s38, s39
    s_mul_i32 s37, s37, 3
    s_add_u32 s{sNT}, s37, s39
    """)
    a(f"""
    s_mul_i32 s{sBo}, s{sWAVE}, 1179648
    s_lshl_b32 s{sM0}, s{sWAVE}, 12
    s_lshl_b32 s34, s{sNT}, 7
    v_lshrrev_b32 {t[0]}, 3, {l}
    v_mul_u32_u24 {t[0]}, 1152, {t[0]}
    v_add_u32 {t[0]}, s34, {t[0]}
    v_lshrrev_b32 {t[1]}, 4, {l}
    v_lshlrev_b32 {t[1]}, 1, {t[1]}
    v_and_b32 {t[2]}, 7, {l}
    v_xor_b32 {t[1]}, {t[1]}, {t[2]}
    v_lshl_add_u32 v{vWO[0]}, {t[1]}, 4, {t[0]}
    """)
    for p in range(1, 4):
        a(f'v_add_u32 v{vWO[p]}, {p*(8*1152-1024)}, v{vWO[0]}')
    a(f'v_lshlrev_b32 v{vL16}, 4, {l}')
    sel4(a, sXA, EXA); sel4(a, sXB, EXB)
    a(f'v_add_u32 v{vSA}, s{sXA}, v{vL16}')
    a(f'v_add_u32 v{vSB}, s{sXB}, v{vL16}')

def rd_addr(a, early):
    t = [f'v{x}' for x in vT[5:8]]
    l = f'v{vLANE}'
    a(f"""
    v_lshrrev_b32 {t[0]}, 4, {l}
    v_lshrrev_b32 {t[1]}, 2, {l}
    v_and_b32 {t[1]}, 3, {t[1]}
    v_lshl_add_u32 {t[0]}, {t[0]}, 2, {t[1]}
    v_lshrrev_b32 {t[1]}, 1, {t[0]}
    v_and_b32 {t[1]}, 3, {t[1]}
    v_lshlrev_b32 {t[0]}, 7, {t[0]}
    v_add_u32 {t[0]}, s{sM0}, {t[0]}
    v_and_b32 {t[2]}, 1, {l}
    v_lshl_add_u32 {t[0]}, {t[2]}, 3, {t[0]}
    v_lshrrev_b32 {t[2]}, 1, {l}
    v_and_b32 {t[2]}, 1, {t[2]}
    v_lshl_add_u32 {t[0]}, {t[2]}, 4, {t[0]}
    """)
    for nb in range(4):
        a(f'v_xor_b32 {t[2]}, {nb}, {t[1]}')
        a(f'v_lshl_add_u32 v{vRD(0,nb,early)}, {t[2]}, 5, {t[0]}')
        a(f'v_add_u32 v{vRD(1,nb,early)}, 65536, v{vRD(0,nb,early)}')

def tile_part2(a):
    t = [f'v{x}' for x in T]
    l = f'v{vLANE}'
    for nb in range(4):
        a(f'v_mov_b32 v{vRD(0,nb)}, v{vRD(0,nb,True)}')
        a(f'v_mov_b32 v{vRD(1,nb)}, v{vRD(1,nb,True)}')
        a(f'v_add_u32 v{vRD(2,nb)}, 65536, v{vRD(1,nb,True)}')
    a(f"""
    s_mul_i32 s34, s{sMT}, {3*131072}
    s_lshl_b32 s35, s{sWAVE}, 15
    s_add_u32 s{sA}, s34, s35
    v_add_u32 v{vO[1]}, 131072, v{vL16}
    v_add_u32 v{vO[2]}, 262144, v{vL16}
    v_mov_b32 v{vO[0]}, v{vL16}
    """)
    a.items[-1], a.items[-2] = a.items[-2], a.items[-1]
    a(f"""
    s_mul_i32 s34, s{sMT}, 48
    s_mul_i32 s35, s34, 52429
    s_lshr_b32 s35, s35, 23
    s_add_u32 s34, s34, 47
    s_min_u32 s34, s34, 1279
    s_mul_i32 s36, s34, 52429
    s_lshr_b32 s36, s36, 23
    s_lshl_b32 s35, s35, 5
    s_lshl_b32 s36, s36, 5
    v_mov_b32 {t[0]}, s35
    v_mov_b32 {t[1]}, s36
    v_cmp_eq_u32 vcc, 1, {l}
    s_nop 1
    v_cndmask_b32 v{vPOLL}, {t[0]}, {t[1]}, vcc
    """)

class VQ:
    def __init__(self): self.q = []
    def add(self, tag): self.q.append(tag)
    def has(self, tag): return any(x == tag for x in self.q)
    def need(self, tags):
        last = -1
        for i, t in enumerate(self.q):
            if t in tags: last = i
        n = len(self.q) - 1 - last
        self.q = self.q[last + 1:]
        return min(n, 63)

def w_ops(k):
    return ([f's_add_u32 m0, s{sM0}, {slot(k)}'],
            [f'buffer_load_dwordx4 v{vWO[p]}, {sr(sWO)}, s{sBo} offen offset:{1024*p} lds' for p in range(4)],
            [f's_add_u32 s{sBo}, s{sBo}, 36864'])
def emit_w(a, q, k):
    pre, d, post = w_ops(k)
    a(pre[0]); a('s_nop 0')
    for x in d:
        a(x); q.add(('W', k))
    a(post[0])
def w_list(q, k):
    pre, d, post = w_ops(k)
    return pre + d + post
def o_ops(k):
    return ([f'buffer_load_dwordx4 {vr(OR(k % DO, mb))}, v{vO[mb]}, {sr(sO)}, s{sA} offen sc1' for mb in range(3)],
            [f's_add_u32 s{sA}, s{sA}, 1024'])
def areads(k, early=False):
    sb = slot(k)
    return [f'ds_read_b64_tr_b16 {rtxt(WR(k, nb), 2, 2*h)}, v{vRD(sb >> 16, nb, early)} offset:{(sb & 65535) + h*2048}'
            for nb in range(4) for h in range(2)]

def send(j, n):
    if j < 3: return f'ds_write_b128 v{vSA}, {ar(OSEND(j,4+n))} offset:{(j*4+n)*1024}'
    return f'ds_write_b128 v{vSB}, {ar(OSEND(j,4+n))} offset:{((j-3)*4+n)*1024}'

def gen(a, prof):
    t = [f'v{x}' for x in vT]
    l = f'v{vLANE}'
    q = VQ()
    a.label('L_peel')
    stamp(a, prof)
    W = {}
    for k in range(4):
        pre, d, post = w_ops(k)
        W[k] = (pre[0], d, post[0])
        for _ in d: q.add(('W', k))
    e30 = {3: {13: ['s_waitcnt vmcnt(0) lgkmcnt(0)', 's_barrier'], 15: [W[0][0]], 16: [W[0][1][0]]},
           4: {1: [W[0][1][1]], 5: [W[0][1][2]], 9: [W[0][1][3], W[0][2]], 11: [W[1][0]], 13: [W[1][1][0]], 16: [W[1][1][1]]}}
    step(a, 2, 'p30', e30)
    e31 = {0: {1: [W[1][1][2]], 5: [W[1][1][3], W[1][2]], 7: [W[2][0]], 9: [W[2][1][0]], 13: [W[2][1][1]], 16: [W[2][1][2]]},
           1: {1: [W[2][1][3], W[2][2]], 3: [W[3][0]], 5: [W[3][1][0]], 9: [W[3][1][1]], 13: [W[3][1][2]], 16: [W[3][1][3], W[3][2]]},
           2: {g: [send(0, n)] for n, g in enumerate((1, 5, 9, 13))},
           3: {g: [send(1, n)] for n, g in enumerate((1, 5, 9, 16))},
           4: {g: [send(2, n)] for n, g in enumerate((1, 3, 5, 7))}}
    step(a, 3, 'p31', e31)
    for j in range(4):
        a(f'v_accvgpr_read_b32 {t[j]}, a{LS(j)}')
    m = pv_mf(4, 1, 1)
    mf = [m[0]] + m[5:9] + m[1:5]
    chk = [f'v_mov_b32 {t[5]}, 0x33800000', f'v_mov_b32 {t[6]}, 0x4e800000', 's_mov_b64 s[36:37], 0']
    def check(j):
        return [f'v_cmp_nge_f32 vcc, {t[j]}, {t[5]}', 's_or_b64 s[36:37], s[36:37], vcc',
                f'v_cmp_nle_f32 vcc, {t[j]}, {t[6]}', 's_or_b64 s[36:37], s[36:37], vcc']
    fills = {0: [send(3, 0)] + chk, 1: [send(3, 1)] + check(0), 2: [send(3, 2)] + check(1), 3: [send(3, 3)] + check(2),
             4: check(3), 5: [f'v_accvgpr_read_b32 {t[4]}, a{LS(4)}'], 6: [send(4, 0)], 7: [send(4, 1)] + check(4), 8: [send(4, 2)]}
    interleave(a, mf, fills)
    a(f"""
    s_cmp_lg_u64 s[36:37], 0
    s_cselect_b32 s38, 1, 0
    v_mov_b32 {t[5]}, s38
    s_lshl_b32 s34, s{sWAVE}, 2
    s_add_u32 s34, s34, {EXL}
    v_mov_b32 {t[6]}, s34
    """)
    a(send(4, 3))
    a(f"""
    ds_write_b32 {t[6]}, {t[5]}
    s_mul_i32 s34, s{sWAVE}, 1280
    s_add_u32 s34, s34, {EXL+256}
    v_lshlrev_b32 {t[7]}, 2, {l}
    v_add_u32 {t[6]}, s34, {t[7]}
    """)
    for j in range(5):
        a(f'ds_write_b32 {t[6]}, {t[j]} offset:{256*j}')
    a(f"""
    s_xor_b32 s35, s{sWAVE}, 2
    s_mul_i32 s34, s35, 1280
    s_add_u32 s34, s34, {EXL+256}
    v_add_u32 v{vPL}, s34, {t[7]}
    v_mov_b32 v{vFL}, {EXL}
    """)
    PA = [EXA[w ^ 2] for w in range(4)]; PB = [EXB[w ^ 2] for w in range(4)]
    sel4(a, sXA, PA); sel4(a, sXB, PB)
    a(f'v_add_u32 v{vPA}, s{sXA}, v{vL16}')
    a(f'v_add_u32 v{vPB}, s{sXB}, v{vL16}')
    rd_addr(a, True)
    a(f"""
    s_mul_i32 s34, s{sB}, 10
    s_mul_i32 s35, s{sR}, 5
    s_add_u32 s34, s34, s35
    s_lshl_b32 s34, s34, 7
    s_lshl_b32 s35, s{sHQ}, 2
    s_add_u32 s34, s34, s35
    s_lshl_b32 s35, s{sKH}, 1
    s_add_u32 s34, s34, s35
    s_lshl_b32 s{sA}, s34, 10
    s_waitcnt lgkmcnt(0)
    s_barrier
    """)
    stamp(a, prof)
    def pread(j, n, dst):
        if j < 3: return f'ds_read_b128 {vr(dst)}, v{vPA} offset:{(j*4+n)*1024}'
        return f'ds_read_b128 {vr(dst)}, v{vPB} offset:{((j-3)*4+n)*1024}'
    def PD(j, n): return CI(0) + 4 * n if j == 0 else Q(j, n)
    FL = P(0); LP = S(1, 0)
    a(f'ds_read_b128 {vr(FL)}, v{vFL}')
    for j in range(5):
        a(f'ds_read_b32 v{LP+j}, v{vPL} offset:{256*j}')
    a(f's_waitcnt vmcnt({q.need([("W", 0)])})')
    for x in areads(0, True): a(x)
    a(f"""
    s_waitcnt lgkmcnt(8)
    v_or_b32 v{FL}, v{FL}, v{FL+1}
    v_or3_b32 v{FL}, v{FL}, v{FL+2}, v{FL+3}
    s_nop 0
    v_readfirstlane_b32 s38, v{FL}
    s_xor_b32 s39, s{sFB}, 1
    s_and_b32 s38, s38, s39
    s_cmp_lg_u32 s38, {'s38' if any(x.startswith('no') for x in k1.XP) else 0}
    s_cbranch_scc1 L_fallback
    """)
    for k in range(1, 4):
        a(f's_waitcnt vmcnt({q.need([("W", k)])})')
        for x in areads(k, True): a(x)
        if k == 1:
            for jj in range(5):
                a(f'v_add_f32 {t[jj]}, {t[jj]}, v{LP+jj}')
            for jj in range(5):
                a(f'v_rcp_f32 {t[jj]}, {t[jj]}')
        a('s_waitcnt lgkmcnt(8)')
        emit_w(a, q, k + 3)
    for j in range(2):
        for n in range(4): a(pread(j, n, PD(j, n)))
    a('s_waitcnt lgkmcnt(8)')
    emit_w(a, q, 7)
    for j in range(2, 5):
        for n in range(4): a(pread(j, n, PD(j, n)))
    def math(j):
        r = []
        rp = vT[j] & ~1
        sel = 'op_sel_hi:[1,0]' if vT[j] % 2 == 0 else 'op_sel:[0,1] op_sel_hi:[1,1]'
        for n in range(4):
            for i in (0, 2):
                o = OKEEP(j, n) + i
                r.append(f'v_pk_add_f32 {vr(o,2)}, {vr(o,2)}, {vr(PD(j,n)+i,2)}')
        for n in range(4):
            for i in (0, 2):
                o = OKEEP(j, n) + i
                r.append(f'v_pk_mul_f32 {vr(o,2)}, {vr(o,2)}, {vr(rp,2)} {sel}')
        for u in range(2):
            for hh in range(2):
                bb = OKEEP(j, 2*u + hh)
                r.append(f'v_cvt_pk_bf16_f32 v{Q(j,u)+2*hh}, v{bb}, v{bb+1}')
                r.append(f'v_cvt_pk_bf16_f32 v{Q(j,u)+2*hh+1}, v{bb+2}, v{bb+3}')
        return r
    def stores(j):
        for u in range(2):
            a(f'buffer_store_dwordx4 {vr(Q(j,u))}, v{vL16}, {sr(sO)}, s{sA} offen offset:{1024*u} sc1')
            q.add(('S', j))
        if j < 4: a(f's_add_u32 s{sA}, s{sA}, {128*1024}')
    for j in range(2):
        a(f's_waitcnt lgkmcnt({15 - 3*j})')
        for x in math(j): a(x)
        stores(j)
    a('s_waitcnt lgkmcnt(0)')
    a('s_barrier')
    stamp(a, prof)
    nxtw = 8
    for j in range(2, 5):
        mt = math(j)
        if not WFIRST:
            wl = w_list(q, nxtw) + w_list(q, nxtw + 1)
            tags = [nxtw] * 6 + [nxtw + 1] * 6
            nxtw += 2
            pos = 0
            for n, x in enumerate(mt):
                a(x)
                if n % 2 == 1 and pos < len(wl):
                    a(wl[pos])
                    if wl[pos].startswith('buffer'): q.add(('W', tags[pos]))
                    pos += 1
            assert pos == len(wl)
        else:
            for x in mt: a(x)
        stores(j)
    tile_part2(a)
    a(f"""
    s_cmp_ge_u32 s2, {NWG}
    s_cbranch_scc1 L_t_tailwg
    """)
    while nxtw < 14:
        emit_w(a, q, nxtw); nxtw += 1
    stamp(a, prof)
    POLLS = [int(x) for x in os.environ.get('POLLS', '26,29').split(',')]
    vP = [T[2], T[3], T[4]]
    signalled = False
    def signal(lbl):
        a(f"""
    s_barrier
    s_cmp_lg_u32 s{sWAVE}, 0
    s_cbranch_scc1 {lbl}
    s_lshl_b32 s34, s{sB}, 5
    v_mov_b32 v{T[0]}, s34
    v_mov_b32 v{T[1]}, 1
    s_mov_b64 exec, 1
    buffer_atomic_add v{T[1]}, v{T[0]}, {sr(sDBG)}, 0 offen sc1
    s_mov_b64 exec, -1
    """)
        a.label(lbl)
    a(f's_waitcnt vmcnt({q.need([("W", 4)])})')
    for x in areads(4): a(x)
    for k in range(4, NREG):
        nxt = k + 1
        if nxt < NREG:
            had_s = q.has(('S', 4))
            if q.has(('W', nxt)): a(f's_waitcnt vmcnt({q.need([("W", nxt)])})')
            rd = areads(nxt)
            for x in rd: a(x)
            if had_s and not q.has(('S', 4)):
                signal('L_t_nosig')
                signalled = True
                stamp(a, prof)
            a('s_waitcnt lgkmcnt(8)')
        else:
            a('s_waitcnt lgkmcnt(0)')
        emit_w(a, q, k + 10)
        if k + 10 in POLLS:
            i = POLLS.index(k + 10)
            a(f'buffer_load_dword v{vP[i]}, v{vPOLL}, {sr(sDBG)}, 0 offen sc1')
            q.add(('P', i))
    assert signalled
    stamp(a, prof)
    a(f's_cmp_lg_u32 s{sWAVE}, 0')
    a('s_cbranch_scc1 L_t_go')
    qq = VQ(); qq.q = list(q.q)
    for i in range(len(POLLS)):
        n = qq.need([('P', i)])
        a(f's_waitcnt vmcnt({n})')
        a(f'v_cmp_gt_u32 vcc, 32, v{vP[i]}')
        a('s_cbranch_vccz L_t_go')
    a('s_mov_b32 s37, 0')
    a.label('L_t_poll')
    a(f"""
    buffer_load_dword v{vP[2]}, v{vPOLL}, {sr(sDBG)}, 0 offen sc1
    s_add_u32 s37, s37, 1
    s_waitcnt vmcnt(0)
    s_cmp_gt_u32 s37, 0x40000
    s_cbranch_scc1 L_t_go
    v_cmp_gt_u32 vcc, 32, v{vP[2]}
    s_cbranch_vccnz L_t_poll
    """)
    a.label('L_t_go')
    a('s_barrier')
    stamp(a, prof)
    for k in range(DO):
        ld, post = o_ops(k)
        for x in ld:
            a(x); q.add(('O', k))
        a(post[0])
    for u in range(32):
        need = [('O', u)]
        n = q.need(need)
        lg = u >= NREG
        a(f's_waitcnt vmcnt({n})' + (' lgkmcnt(0)' if lg else ''))
        rd = areads(u + 1) if NREG <= u + 1 < 32 else []
        mf = []
        for mb in range(3):
            for nb in range(4):
                c = '0' if u == 0 else vr(ACC(nb, mb))
                mf.append(f'{MF} {vr(ACC(nb,mb))}, {rtxt(WR(u,nb))}, {vr(OR(u % DO, mb))}, {c}')
        fills = {0: rd[0:2], 1: rd[2:4], 2: rd[4:6], 3: rd[6:8]}
        if u + DO < 32:
            ld, post2 = o_ops(u + DO)
            fills.setdefault(5, []).append(ld[0]); fills.setdefault(8, []).append(ld[1]); fills.setdefault(11, []).extend([ld[2]] + post2)
        for i, m in enumerate(mf):
            a(m)
            for x in fills.get(i, []):
                a(x)
                if x.startswith('buffer_load'): q.add(('O', u + DO))
    stamp(a, prof)
    tt = [f'v{x}' for x in T]
    a(f"""
    v_lshlrev_b32 {tt[0]}, 4, {l}
    v_add_u32 {tt[1]}, s{sM0}, {tt[0]}
    s_lshl_b32 s34, s{sWAVE}, 10
    v_add_u32 {tt[4]}, s34, {tt[0]}
    s_mul_i32 s34, s{sMT}, {48*1152}
    s_lshl_b32 s35, s{sNT}, 7
    s_add_u32 s34, s34, s35
    s_lshl_b32 s35, s{sWAVE}, 5
    s_add_u32 s34, s34, s35
    v_and_b32 {tt[2]}, 15, {l}
    v_mul_u32_u24 {tt[2]}, 1152, {tt[2]}
    v_lshrrev_b32 {tt[3]}, 4, {l}
    v_lshl_add_u32 {tt[2]}, {tt[3]}, 3, {tt[2]}
    """)
    for mb in range(3):
        for nb in range(4):
            a(f'ds_write_b128 {tt[1]}, {vr(ACC(nb,mb))} offset:{mb*16384 + nb*1024}')
    a(f"""
    s_waitcnt lgkmcnt(0)
    s_barrier
    """)
    R0 = 80
    for mb in range(3):
        for w in range(4):
            a(f'ds_read_b128 {vr(R0 + (mb*4+w)*4)}, {tt[4]} offset:{mb*16384 + w*4096}')
    for mb in range(3):
        a(f's_waitcnt lgkmcnt({8 - 4*mb})')
        r = R0 + mb * 16
        for i in (0, 2):
            a(f'v_pk_add_f32 {vr(r+i,2)}, {vr(r+i,2)}, {vr(r+4+i,2)}')
            a(f'v_pk_add_f32 {vr(r+8+i,2)}, {vr(r+8+i,2)}, {vr(r+12+i,2)}')
        for i in (0, 2):
            a(f'v_pk_add_f32 {vr(r+i,2)}, {vr(r+i,2)}, {vr(r+8+i,2)}')
        a(f'v_cvt_pk_bf16_f32 v{140+2*mb}, v{r}, v{r+1}')
        a(f'v_cvt_pk_bf16_f32 v{141+2*mb}, v{r+2}, v{r+3}')
        a(f'buffer_store_dwordx2 {vr(140+2*mb,2)}, {tt[2]}, {sr(sOUT)}, s34 offen' + os.environ.get('OUTF', ''))
        if mb < 2: a(f's_add_u32 s34, s34, {16*1152}')
    if prof:
        a('s_waitcnt vmcnt(0)')
        stamp(a, prof)
        k1.dump_stamps(a, tt[0])
    a('s_branch L_k1_end')
    a.label('L_t_tailwg')
    a('s_waitcnt vmcnt(0)')
    signal('L_t_nosig2')
    a('s_waitcnt vmcnt(0)')
    a('s_branch L_k1_end')
```

```python
import os
from asmlib import Asm, Ins, Label, Raw

sX, sK, sV, sW, sO = 8, 12, 16, 20, 24
sWO = 52
sWAVE, sR, sKH, sHQ, sB = 3, 4, 5, 6, 7
sT = 30
sM0K = 31
sL = 32
sFB = 33
sXB0, sWB0, sXE = 40, 41, 42
sXo, sWo = 46, 47
sT0 = 48
sTB, sTE = 100, 101
KROT = int(os.environ.get('KROT', 0))
def t_adv():
    r = [f's_add_u32 s{sT}, s{sT}, 8192']
    if KROT: r += [f's_cmp_eq_u32 s{sT}, s{sTE}', f's_cselect_b32 s{sT}, s{sTB}, s{sT}']
    return r
sM0X, sM0W = 49, 50
sTW = 51
vTCH = 255
sTMP = 34
vLANE = 2
def Q(j, s): return 16 + (j * 4 + s) * 4
def OKEEP(j, n): return 96 + (j * 4 + n) * 4
def S(buf, kb): return 176 + (buf * 2 + kb) * 4
def P(buf): return 192 + buf * 4
def CI(j): return 200 + 4 * j
vONES = 220
vKA = [224, 225, 226, 227]
vVA = [228 + i for i in range(8)]
vKD = [236, 237, 238, 239]
vVD = [240, 241]
vXD = [3, 4, 5, 6, 7]
vWD = [8, 9, 10, 11]
vXR = [12, 13]
vWR = [14, 15]
vE, vEP = 242, 243
vT = list(range(244, 256))
def OSEND(j, n): return (j * 4 + (n - 4)) * 4
def LS(j): return 80 + 4 * j
def KF(buf, kb, ds): return 100 + (buf * 8 + kb * 4 + ds) * 4
def VF(buf, n): return 164 + (buf * 8 + n) * 4
def QA(buf, a): return 100 + buf * 16 + a * 4
def QB(buf, j): return 132 + buf * 20 + j * 4
def QACC(j, a): return 96 + (j * 4 + a) * 4

def vr(b, n=4): return f'v[{b}:{b+n-1}]'
def ar(b, n=4): return f'a[{b}:{b+n-1}]'
def sr(b, n=4): return f's[{b}:{b+n-1}]'
def OREG(j, n): return vr(OKEEP(j, n)) if n < 4 else ar(OSEND(j, n))

MF = 'v_mfma_f32_16x16x32_bf16'
XBUF0, XBUFS = 81920, 20480
WBUF0, WBUFS = 16384, 16384
EXQ = 122880
EXF = 131072
OOB = 0x7f000000
TOUCH_LDS = 143360
XP = os.environ.get('XP', '').split(',')
FILL0 = int(os.environ.get('FILL0', 9))
TOUCH = os.environ.get("NOTOUCH") is None
FUSED = False
QSCALE = 0x3e0293ee

NSTAMP = [0]
def stamp(a, prof, real=False):
    if not prof: return
    k = NSTAMP[0]; NSTAMP[0] += 1
    if k >= 16: return
    real = real or os.environ.get('REAL') is not None
    a(f's_mem{"real" if real else ""}time s[{60+2*k}:{61+2*k}]')
    a('s_waitcnt lgkmcnt(0)')

def interleave(a, mf, fills):
    for i, m in enumerate(mf):
        a(m)
        for f in fills.get(i, []):
            a(f)

def init(a, prof):
    a(f"""
    s_cmp_ge_u32 s2, 256
    s_cbranch_scc1 L_k1_end
    s_load_dwordx2 {sr(sX,2)}, s[0:1], 0
    s_load_dwordx2 {sr(sW,2)}, s[0:1], 24
    s_load_dwordx2 {sr(sK,2)}, s[0:1], 8
    s_load_dwordx2 {sr(sV,2)}, s[0:1], 16
    s_load_dwordx2 {sr(sO,2)}, s[0:1], 56
    s_load_dwordx2 {sr(sWO,2)}, s[0:1], 32
    """)
    if FUSED:
        a('s_load_dwordx2 s[56:57], s[0:1], 40')
        a('s_load_dwordx2 s[92:93], s[0:1], 48')
        a('s_mov_b32 s58, 1474560')
        a('s_mov_b32 s59, 0x00020000')
        a('s_mov_b32 s94, 256')
        a('s_mov_b32 s95, 0x00020000')
    if prof:
        a('s_memrealtime s[96:97]')
    stamp(a, prof)
    a(f"""
    v_lshrrev_b32 v1, 6, v0
    v_and_b32 v{vLANE}, 63, v0
    s_mov_b32 s{sX+2}, 1474560
    s_mov_b32 s{sX+3}, 0x00020000
    v_readfirstlane_b32 s{sWAVE}, v1
    s_mov_b32 s{sW+2}, 4718592
    s_mov_b32 s{sW+3}, 0x00020000
    s_mov_b32 s{sK+2}, 0x4000000
    s_mov_b32 s{sK+3}, 0x00020000
    s_mov_b32 s{sV+2}, 0x4000000
    s_mov_b32 s{sV+3}, 0x00020000
    s_mov_b32 s{sO+2}, 10485760
    s_mov_b32 s{sO+3}, 0x00020000
    s_mov_b32 s{sWO+2}, 4718592
    s_mov_b32 s{sWO+3}, 0x00020000
    s_and_b32 s34, s2, 7
    s_lshr_b32 s35, s2, 3
    s_and_b32 s36, s35, 3
    s_lshl_b32 s{sHQ}, s34, 2
    s_add_u32 s{sHQ}, s{sHQ}, s36
    s_lshr_b32 s{sB}, s35, 2
    s_and_b32 s{sR}, s{sWAVE}, 1
    s_lshr_b32 s{sKH}, s{sWAVE}, 1
    ; chunk rotation c0 = (b + 2*hl) mod 9
    """)
    ROT = os.environ.get('ROT', '3')
    if ROT == '9':
        a(f"""
    s_lshl_b32 s37, s36, 1
    s_add_u32 s37, s37, s{sB}
    s_sub_u32 s38, s37, 9
    s_cmp_ge_u32 s37, 9
    s_cselect_b32 s37, s38, s37
    """)
    elif ROT == '3':
        a(f"""
    s_add_u32 s37, s{sB}, s36
    s_mul_i32 s38, s37, 43
    s_lshr_b32 s38, s38, 7
    s_mul_i32 s38, s38, 3
    s_sub_u32 s37, s37, s38
    s_mul_i32 s37, s37, 3
    """)
    else:
        a('s_mov_b32 s37, 0')
    a(f"""
    s_mul_i32 s{sXB0}, s{sB}, 184320
    s_lshl_b32 s{sWB0}, s{sHQ}, 8
    s_add_u32 s{sXE}, s{sXB0}, {9*128}
    s_lshl_b32 s38, s37, 7
    s_add_u32 s{sXo}, s{sXB0}, s38
    s_lshl_b32 s38, s37, 19
    s_add_u32 s{sWo}, s{sWB0}, s38
    """)
    l = f'v{vLANE}'
    t0, t1, t2, t3, t4, t5 = [f'v{x}' for x in vT[:6]]
    a(f"""
    s_lshl_b32 s34, s{sWAVE}, 3
    v_lshrrev_b32 {t0}, 3, {l}
    v_add_u32 {t0}, s34, {t0}
    v_mul_u32_u24 {t0}, 1152, {t0}
    v_and_b32 {t1}, 7, {l}
    v_lshrrev_b32 {t2}, 4, {l}
    v_xor_b32 {t1}, {t1}, {t2}
    s_lshl_b32 s35, s{sR}, 2
    v_xor_b32 {t1}, s35, {t1}
    v_lshl_add_u32 v{vXD[0]}, {t1}, 4, {t0}
    """)
    for i in range(1, 5):
        a(f'v_add_u32 v{vXD[i]}, {36864*i}, v{vXD[0]}')
    a(f"""
    s_lshl_b32 s34, s{sWAVE}, 2
    v_add_u32 {t0}, s34, {t2}
    v_lshlrev_b32 {t0}, 13, {t0}
    v_and_b32 {t3}, 15, {l}
    v_lshlrev_b32 {t1}, 2, {t2}
    v_xor_b32 {t1}, {t1}, {t3}
    v_lshl_add_u32 v{vWD[0]}, {t1}, 4, {t0}
    """)
    for i in range(1, 4):
        a(f'v_add_u32 v{vWD[i]}, {131072*i}, v{vWD[0]}')
    a(f"""
    s_lshl_b32 s34, s{sWAVE}, 10
    s_add_u32 s{sM0X}, s34, {XBUF0}
    s_add_u32 s{sM0W}, s34, {WBUF0}
    """)
    a('s_waitcnt lgkmcnt(0)')
    if os.environ.get('PSTAMP'): stamp(a, prof)

def initkv(a):
    l = f'v{vLANE}'
    t0, t1, t2, t3, t4, t5 = [f'v{x}' for x in vT[:6]]
    a(f"""
    ; K/V tile offsets
    s_lshr_b32 s34, s{sHQ}, 1
    s_lshl_b32 s35, s{sB}, 4
    s_add_u32 s34, s34, s35
    s_lshl_b32 s34, s34, 19
    s_lshl_b32 s35, s{sKH}, 18
    s_add_u32 s34, s34, s35
    s_lshl_b32 s35, s{sR}, 12
    s_add_u32 s{sTB}, s34, s35
    s_add_u32 s{sTE}, s{sTB}, 262144
    s_lshr_b32 s36, s{sHQ}, 1
    s_lshl_b32 s37, s{sB}, 4
    s_add_u32 s36, s36, s37
    s_mul_i32 s36, s36, {KROT}
    s_lshl_b32 s37, s{sKH}, 4
    s_add_u32 s36, s36, s37
    s_and_b32 s36, s36, {31 if KROT else 0}
    s_lshl_b32 s36, s36, 13
    s_add_u32 s{sT0}, s{sTB}, s36
    s_lshl_b32 s34, s{sKH}, 16
    s_add_u32 s{sM0K}, s34, s35
    s_mov_b32 s{sFB}, 0
    """)
    a(f"""
    v_lshrrev_b32 {t2}, 4, {l}
    v_and_b32 {t3}, 15, {l}
    v_lshlrev_b32 {t0}, 8, {t2}
    v_xor_b32 {t1}, {t3}, {t2}
    """)
    for j in range(4):
        a(f'v_xor_b32 {t4}, {4*j}, {t1}')
        a(f'v_lshl_add_u32 v{vKD[j]}, {t4}, 4, {t0}')
    a(f"""
    v_lshlrev_b32 {t4}, 1, {t2}
    v_xor_b32 {t1}, {t3}, {t4}
    """)
    for p in range(2):
        a(f'v_xor_b32 {t4}, {8*p}, {t1}')
        a(f'v_lshl_add_u32 v{vVD[p]}, {t4}, 4, {t0}')
    if TOUCH:
        a(f"""
    s_lshl_b32 s34, s2, 2
    s_add_u32 s34, s34, s{sWAVE}
    s_mul_i32 s{sTW}, s34, 4608
    v_lshlrev_b32 {t0}, 4, {l}
    v_mov_b32 {t1}, {hex(OOB)}
    v_cmp_gt_u32 vcc, {42 if FUSED == 4 else 36}, {l}
    s_nop 1
    v_cndmask_b32 v{vTCH}, {t1}, {t0}, vcc
    """)

def dma_x(G, within, i, buf):
    return [f's_add_u32 m0, s{sM0X}, {buf*XBUFS + 4096*i}',
            f'buffer_load_dwordx4 v{vXD[i]}, {sr(sX)}, s{sXo} offen lds']
def dma_w(G, within, i, buf):
    return [f's_add_u32 m0, s{sM0W}, {buf*WBUFS + 4096*i}',
            f'buffer_load_dwordx4 v{vWD[i]}, {sr(sW)}, s{sWo} offen lds']
def chunk_dmas(i9):
    G, w = i9 // 3, i9 % 3
    buf = i9 % 3
    pre = [] if i9 == 0 else [f's_add_u32 s{sXo}, s{sXo}, 128', f's_add_u32 s{sWo}, s{sWo}, 0x80000', f's_cmp_eq_u32 s{sXo}, s{sXE}',
                              f's_cselect_b32 s{sXo}, s{sXB0}, s{sXo}', f's_cselect_b32 s{sWo}, s{sWB0}, s{sWo}']
    grp = []
    for i in range(4):
        grp.append(dma_w(G, w, i, buf))
        grp.append(dma_x(G, w, i, buf))
    grp.append(dma_x(G, w, 4, buf))
    return pre, grp

def tile_dmas(slot):
    g = []
    for j in range(4):
        pre = [f's_add_u32 m0, s{sM0K}, {slot*16384}'] if j == 0 else []
        g.append(pre + [f'buffer_load_dwordx4 v{vKD[j]}, {sr(sK)}, s{sT} offen offset:{1024*j} nt lds'])
    for j in range(4):
        pre = [f's_add_u32 m0, s{sM0K}, {slot*16384 + 8192}'] if j == 0 else []
        g.append(pre + [f'buffer_load_dwordx4 v{vVD[j&1]}, {sr(sV)}, s{sT} offen offset:{1024*j} nt lds'])
    return g

def emit_groups(a, groups):
    for g in groups:
        for k, ins in enumerate(g):
            a(ins)
            if 'm0' in ins.split(',')[0]:
                a('s_nop 0')

def init2(a):
    l = f'v{vLANE}'
    t0, t1, t2, t3, t4, t5, t6 = [f'v{x}' for x in vT[:7]]
    a(f"""
    v_lshrrev_b32 {t2}, 4, {l}
    v_and_b32 {t3}, 15, {l}
    v_lshrrev_b32 {t5}, 2, {l}
    v_and_b32 {t5}, 3, {t5}
    v_and_b32 {t6}, 3, {l}
    s_mul_i32 s34, s{sR}, 10240
    s_add_u32 s34, s34, {XBUF0}
    v_lshlrev_b32 {t0}, 7, {t3}
    v_add_u32 {t0}, s34, {t0}
    v_lshrrev_b32 {t1}, 1, {t3}
    v_xor_b32 {t4}, {t2}, {t1}
    v_lshl_add_u32 v{vXR[0]}, {t4}, 4, {t0}
    v_xor_b32 {t4}, 4, {t4}
    v_lshl_add_u32 v{vXR[1]}, {t4}, 4, {t0}
    v_lshl_add_u32 {t0}, {t2}, 3, {t5}
    v_lshlrev_b32 {t0}, 8, {t0}
    v_add_u32 {t0}, {WBUF0}, {t0}
    s_lshl_b32 s34, s{sKH}, 1
    """)
    for sp in range(2):
        a(f"""
    s_add_u32 s35, s34, {sp}
    v_xor_b32 {t1}, s35, {t5}
    v_lshl_add_u32 {t1}, {t1}, 2, {t6}
    v_lshl_add_u32 v{vWR[sp]}, {t1}, 4, {t0}
    """)
    a(f"""
    s_lshl_b32 s35, s{sKH}, 16
    v_lshlrev_b32 {t0}, 8, {t3}
    v_add_u32 {t0}, s35, {t0}
    """)
    for sp in range(4):
        a(f"""
    s_xor_b32 s36, s34, {sp}
    s_lshl_b32 s36, s36, 2
    v_add_u32 {t1}, s36, {t2}
    v_xor_b32 {t1}, {t1}, {t3}
    v_lshl_add_u32 v{vKA[sp]}, {t1}, 4, {t0}
    """)
    a(f"""
    v_lshl_add_u32 {t0}, {t2}, 2, {t5}
    v_lshlrev_b32 {t0}, 8, {t0}
    s_add_u32 s35, s35, 8192
    v_add_u32 {t0}, s35, {t0}
    v_and_b32 {t1}, 1, {t6}
    v_lshl_add_u32 {t0}, {t1}, 3, {t0}
    v_lshrrev_b32 {t1}, 1, {t6}
    v_lshl_add_u32 {t0}, {t1}, 4, {t0}
    v_and_b32 {t1}, 1, {t2}
    v_lshl_add_u32 {t1}, {t1}, 2, {t5}
    s_lshl_b32 s36, s{sKH}, 2
    """)
    for n in range(8):
        a(f"""
    s_xor_b32 s37, s36, {n}
    v_xor_b32 {t4}, s37, {t1}
    v_lshl_add_u32 v{vVA[n]}, {t4}, 5, {t0}
    """)
    a(f"""
    s_mul_i32 s34, s{sWAVE}, 10240
    s_add_u32 s34, s34, {EXQ}
    v_lshlrev_b32 {t0}, 4, {l}
    v_add_u32 v{vE}, s34, {t0}
    s_xor_b32 s35, s{sWAVE}, 2
    s_mul_i32 s35, s35, 10240
    s_add_u32 s35, s35, {EXQ}
    v_add_u32 v{vEP}, s35, {t0}
    """)
    zero_acc(a, keep=False)
    for i in range(4):
        a(f'v_mov_b32 v{vONES+i}, 0x3f803f80')
    for j in range(5):
        for i in range(4):
            a(f'v_mov_b32 v{CI(j)+i}, 0')

def zero_acc(a, keep=True):
    for i in range(100):
        a(f'v_accvgpr_write_b32 a{i}, 0')
    for i in range(32):
        a(f'v_accvgpr_write_b32 a{VF(1,0)+i}, 0')
    for i in range(4):
        a(f'v_mov_b32 v{P(1)+i}, 0')
    if keep:
        for i in range(0, 80, 2):
            a(f'v_pk_mov_b32 {vr(96+i,2)}, 0, 0')

def qfrag_reads(u):
    i9, ks = u // 2, u % 2
    buf, fb = i9 % 3, u % 2
    r = []
    for j in range(5):
        r.append(f'ds_read_b128 {ar(QB(fb, j))}, v{vXR[ks]} offset:{XBUFS*buf + 2048*j}')
    for sp in range(2):
        for t in range(2):
            for h in range(2):
                r.append(f'ds_read_b64_tr_b16 {ar(QA(fb, 2*sp+t)+2*h, 2)}, v{vWR[sp]} offset:{WBUFS*buf + 8192*ks + 1024*h + 8*t}')
    A = r[5:]; B = r[:5]
    return [A[0], A[1], B[0], B[1], B[2], B[3], B[4]] + A[2:]

class VQ:
    def __init__(self): self.q = []
    def add(self, tag): self.q.append(tag)
    def need(self, tags):
        last = -1
        for i, t in enumerate(self.q):
            if t in tags: last = i
        n = len(self.q) - 1 - last
        self.q = self.q[last + 1:]
        return min(n, 63)

T0LATE = os.environ.get('T0LATE', '0') == '1'
def qproj(a, prof):
    q = VQ()
    def tagged(groups, tag): return [(g, tag) for g in groups]
    groups = []
    for i9 in range(3):
        pre, grp = chunk_dmas(i9)
        groups += tagged([pre + grp[0]] + grp[1:], ('C', i9))
    td = tile_dmas(0)
    t0 = tagged([[f's_mov_b32 s{sT}, s{sT0}'] + td[0]] + td[1:-1] + [td[-1] + t_adv()], ('T', 0))
    if not T0LATE: groups += t0; t0 = []
    tmp = Asm(); initkv(tmp); init2(tmp)
    fill = [i.text for i in tmp.items]
    per = -(-len(fill) // (len(groups) - FILL0))
    for d, (g, tag) in enumerate(groups):
        for k_, ins in enumerate(g):
            a(ins)
            if 'm0' in ins.split(',')[0]: a('s_nop 0')
            if ins.startswith('buffer'): q.add(tag)
        if d >= FILL0 - 1:
            for ins in fill[:per]: a(ins)
            fill = fill[per:]
        if os.environ.get('PSTAMP') and d in (0, 8, 17, 26): stamp(a, prof)
    assert not fill
    stamp(a, prof)
    a(f's_waitcnt vmcnt({q.need([("C", 0)])})')
    a('s_barrier')
    stamp(a, prof)
    for r in qfrag_reads(0): a(r)
    pend = []
    for u in range(18):
        fb = u % 2
        if u % 2 == 1:
            c = u // 2
            if c + 1 <= 8: a(f's_waitcnt vmcnt({q.need([("C", c + 1)])}) lgkmcnt(0)')
            else: a('s_waitcnt lgkmcnt(0)')
            a('s_barrier')
            if u in (1, 17): stamp(a, prof)
            assert not pend
            if c + 3 <= 8:
                pre, grp = chunk_dmas(c + 3)
                pend = tagged([pre + grp[0]] + grp[1:], ('C', c + 3))
                if c >= 2 and t0:
                    sl = t0[:3]; t0 = t0[3:]
                    n0 = 8 - len(t0) - len(sl)
                    g0, tg = sl[0]
                    if not any('m0' in x.split(',')[0] for x in g0):
                        g0 = [f's_add_u32 m0, s{sM0K}, {0 if n0 < 4 else 8192}'] + g0
                    pend += [(g0, tg)] + sl[1:]
            elif c + 3 == 9:
                pend = tagged(tile_dmas(1) + [t_adv()], ('T', 1))
            elif c + 3 == 10:
                pend = tagged(tile_dmas(2) + [t_adv()], ('T', 2))
        else:
            a('s_waitcnt lgkmcnt(0)')
        mf = []
        for t in range(4):
            for j in range(5):
                c_ = '0' if u == 0 else vr(QACC(j, t))
                mf.append(f'{MF} {vr(QACC(j,t))}, {ar(QA(fb,t))}, {ar(QB(fb,j))}, {c_}')
        fills = {}
        reads = qfrag_reads(u + 1) if u < 17 else []
        g = 0
        while reads:
            fills.setdefault(g, []).extend(reads[:2]); reads = reads[2:]; g += 1
        g = 7
        nmax = 6 if u % 2 == 1 else 99
        cnt = 0
        while pend and g < 19 and cnt < nmax:
            grp, tag = pend.pop(0)
            bi = [n for n, x in enumerate(grp) if x.startswith('buffer')]
            if bi:
                fills.setdefault(g, []).extend(grp[:bi[0]])
                fills.setdefault(g + 1, []).extend(grp[bi[0]:])
                q.add(tag)
                g += 2
            else:
                fills.setdefault(g, []).extend(grp); g += 1
            cnt += 1
        if u % 2 == 0: assert not pend, (u, pend)
        interleave(a, mf, fills)
    assert not pend and not t0
    assert q.need([('T', 1)]) == 8

def qfin(a, prof):
    stamp(a, prof)
    a(f's_mov_b32 s34, {hex(QSCALE)}')
    a(f's_mov_b32 s35, {hex(QSCALE)}')
    for r in k_reads(0, 0) + v_reads(0, 0): a(r)
    for j in range(5):
        for t in range(4):
            for i in (0, 2):
                a(f'v_pk_mul_f32 {vr(QACC(j,t)+i,2)}, {vr(QACC(j,t)+i,2)}, s[34:35]')
        for sp in range(2):
            for t in range(2):
                b = QACC(j, 2*sp + t)
                a(f'v_cvt_pk_bf16_f32 v{Q(j,sp)+2*t}, v{b}, v{b+1}')
                a(f'v_cvt_pk_bf16_f32 v{Q(j,sp)+2*t+1}, v{b+2}, v{b+3}')
        for sp in range(2):
            a(f'ds_write_b128 v{vE}, {vr(Q(j,sp))} offset:{(j*2+sp)*1024}')
    for i in range(0, 48, 2):
        a(f'v_pk_mov_b32 {vr(96+i,2)}, 0, 0')
    a('s_waitcnt vmcnt(8) lgkmcnt(0)')
    a('s_barrier')
    for j in range(5):
        for sp in range(2):
            a(f'ds_read_b128 {vr(Q(j,2+sp))}, v{vEP} offset:{(j*2+sp)*1024}')
    for i in range(48, 80, 2):
        a(f'v_pk_mov_b32 {vr(96+i,2)}, 0, 0')
    if FUSED == 3:
        import tail3
        tail3.tile_part1(a)
    if FUSED == 4:
        import tail4
        tail4.tile_part1(a)
    a('s_waitcnt lgkmcnt(8)')

def k_reads(buf, slot):
    return [f'ds_read_b128 {ar(KF(buf,kb,ds))}, v{vKA[ds]} offset:{slot*16384 + kb*4096}' for kb in range(2) for ds in range(4)]
def v_reads(buf, slot):
    return [f'ds_read_b64_tr_b16 {ar(VF(buf,n)+2*h, 2)}, v{vVA[n]} offset:{slot*16384 + h*4096}' for n in range(8) for h in range(2)]
def qk_mf(j, kbuf, sbuf, cinit=True):
    m = []
    order = [(kb, ds) for kb in range(2) for ds in range(4)]
    if 'il' in XP: order = [(kb, ds) for ds in range(4) for kb in range(2)]
    for kb, ds in order:
        c = (vr(CI(j)) if cinit and 'c0' not in XP else '0') if ds == 0 else vr(S(sbuf, kb))
        m.append(f'{MF} {vr(S(sbuf,kb))}, {ar(KF(kbuf,kb,ds))}, {vr(Q(j,ds))}, {c}')
    return m
def pv_mf(j, vbuf, pbuf):
    m = [f'{MF} {ar(LS(j))}, {vr(vONES)}, {vr(P(pbuf))}, {ar(LS(j))}']
    for n in range(8):
        m.append(f'{MF} {OREG(j,n)}, {ar(VF(vbuf,n))}, {vr(P(pbuf))}, {OREG(j,n)}')
    return m

def pre_loop(a, prof):
    a.label('L_attn0')
    stamp(a, prof)
    mf = qk_mf(0, 0, 0)
    kr = k_reads(1, 1)
    td = tile_dmas(3)
    fills = {}
    for i in range(8):
        fills[i] = [kr[i]]
    interleave(a, mf, fills)
    a('s_waitcnt lgkmcnt(8)')
    a('s_barrier')
    emit_groups(a, td)
    for x in t_adv(): a(x)
    a(f's_mov_b32 s{sL}, 0')

def step(a, t, mode='loop', extra=None, tdx=None, bar=None):
    extra = extra or {}
    td = tdx or tile_dmas(t % 4)
    vreads = v_reads((t + 1) & 1, (t + 1) % 4)
    kreads = k_reads(t & 1, (t + 2) % 4)
    for j in range(5):
        pn = (t + j) & 1
        if j < 4: qk = qk_mf(j + 1, t & 1, (pn + 1) & 1)
        else: qk = qk_mf(0, (t + 1) & 1, (pn + 1) & 1)
        if j == 0: pv = pv_mf(4, (t - 1) & 1, (pn + 1) & 1)
        else: pv = pv_mf(j - 1, t & 1, (pn + 1) & 1)
        if mode == 'p31' and j == 4:
            fills = {g: [] for g in range(9)}
            for e in range(8):
                reg = S(pn, e // 4) + (e % 4)
                fills[e].append(f'v_exp_f32 v{reg}, v{reg}')
            for g, l_ in extra.get(j, {}).items(): fills[g] += l_
            interleave(a, pv, fills)
            for c in range(4):
                b = S(pn, c // 2) + 2 * (c % 2)
                a(f'v_cvt_pk_bf16_f32 v{P(pn)+c}, v{b}, v{b+1}')
            continue
        mf = qk + pv
        fills = {g: [] for g in range(17)}
        for e in range(8):
            reg = S(pn, e // 4) + (e % 4)
            fills[2 * e].append(f'v_exp_f32 v{reg}, v{reg}')
        cv = []
        for c in range(4):
            b = S(pn, c // 2) + 2 * (c % 2)
            cv.append(f'v_cvt_pk_bf16_f32 v{P(pn)+c}, v{b}, v{b+1}')
        free2 = [1, 5, 9, 13, 16]
        free1 = [3, 7, 11, 15]
        rd = []
        if j in (1, 2): rd = [vreads.pop(0) for _ in range(6)]
        elif j == 3: rd = [vreads.pop(0) for _ in range(4)]
        elif j == 4: rd = list(kreads)
        if mode == 'p31' or (mode == 'p30' and j == 4): rd = []
        order = [(1, 2), (3, 1), (5, 2), (7, 1), (9, 2)]
        for g, k in order:
            for _ in range(k):
                if rd: fills[g].append(rd.pop(0))
        assert not rd
        for c, g in enumerate(free1):
            fills[g].append(cv[c])
        if mode != 'loop':
            if tdx and j < 4:
                d0 = td[2 * j]; d1 = td[2 * j + 1]
                n0 = [n for n, x in enumerate(d0) if x.startswith('buffer')][0]
                n1 = [n for n, x in enumerate(d1) if x.startswith('buffer')][0]
                gA, gB = (13, 16) if j < 3 else (9, 13)
                fills[11 if j < 3 else 7] += d0[:n0]
                fills[gA] += d0[n0:]; fills[gB] += d1[n1:]
                assert n1 == 0
            if bar and j == 3: fills[16] += bar
            for g, l_ in extra.get(j, {}).items(): fills[g] += l_
            interleave(a, mf, fills)
            continue
        if j < 4:
            d0 = td[2 * j]; d1 = td[2 * j + 1]
            if len(d0) == 2:
                fills[11].append(d0[0])
            gA, gB = (13, 16) if j < 3 else (9, 13)
            fills[gA].append(d0[-1]); fills[gB].append(d1[-1])
        if j == 3:
            fills[16] += [f's_waitcnt vmcnt({17 if (TOUCH and t in (1, 2)) else 16}) lgkmcnt(0)', 's_barrier']
        if j == 4:
            ta = t_adv()
            fills[11 if KROT else 13].append(ta[0])
            fills[13] += ta[1:]
            if TOUCH and t == 0:
                fills[15].append(f's_mov_b32 m0, {TOUCH_LDS}')
                fills[16].append(f'buffer_load_dwordx4 v{vTCH}, {sr(sWO)}, s{sTW} offen lds')
            if TOUCH and t == 1:
                fills[15].append(f's_add_u32 s{sTW}, s{sTW}, {672 if FUSED == 4 else 576}')
            if FUSED == 3 and t == 1:
                fills[16] += [f's_cmp_eq_u32 s{sL}, 7', 's_cbranch_scc1 L_peel']
        for g in fills:
            if 'nobar' in XP: fills[g] = [x for x in fills[g] if x != 's_barrier']
            if 'nodma' in XP: fills[g] = [x for x in fills[g] if not x.startswith('buffer_load')]
            if 'noexp' in XP: fills[g] = [x for x in fills[g] if not x.startswith('v_exp')]
            if 'nords' in XP: fills[g] = [x for x in fills[g] if not x.startswith('ds_read')]
            if 'nocvt' in XP: fills[g] = [x for x in fills[g] if not x.startswith('v_cvt')]
            if 'nowait' in XP: fills[g] = [x for x in fills[g] if not x.startswith('s_waitcnt')]
        if 'nols' in XP: mf = [m for n, m in enumerate(mf) if n != 8]
        interleave(a, mf, fills)

def loop(a):
    a.label('L_loop')
    for t in range(4): step(a, t)
    if FUSED == 4:
        a(f"""
    s_add_u32 s{sL}, s{sL}, 1
    s_cmp_lt_u32 s{sL}, 7
    s_cbranch_scc1 L_loop
    """)
        return
    a(f"""
    s_add_u32 s{sL}, s{sL}, 1
    s_cmp_eq_u32 s{sL}, 7
    s_cselect_b32 s{sT}, {hex(OOB)}, s{sT}
    """)
    if FUSED == 3:
        a('s_branch L_loop')
    else:
        a(f"""
    s_cmp_lt_u32 s{sL}, 8
    s_cbranch_scc1 L_loop
    """)

def final_pv(a):
    if FUSED in (3, 4): return
    for m in pv_mf(4, 1, 1): a(m)

def epilogue(a, prof):
    if FUSED == 2:
        import tail2
        return tail2.gen(a, prof)
    if FUSED == 3:
        import tail3
        return tail3.gen(a, prof)
    if FUSED == 4:
        import tail4
        return tail4.gen(a, prof)
    t = [f'v{x}' for x in vT]
    l = f'v{vLANE}'
    stamp(a, prof)
    a('s_nop 7')
    for j in range(5):
        a(f'v_accvgpr_read_b32 {t[j]}, a{LS(j)}')
    a(f"""
    v_mov_b32 {t[5]}, 0x33800000
    v_mov_b32 {t[6]}, 0x4e800000
    s_mov_b64 s[36:37], 0
    """)
    for j in range(5):
        a(f'v_cmp_nge_f32 vcc, {t[j]}, {t[5]}')
        a(f's_or_b64 s[36:37], s[36:37], vcc')
        a(f'v_cmp_nle_f32 vcc, {t[j]}, {t[6]}')
        a(f's_or_b64 s[36:37], s[36:37], vcc')
    a(f"""
    s_cmp_lg_u64 s[36:37], 0
    s_cselect_b32 s38, 1, 0
    v_mov_b32 {t[5]}, s38
    s_lshl_b32 s34, s{sWAVE}, 2
    s_add_u32 s34, s34, {EXF}
    v_mov_b32 {t[6]}, s34
    ds_write_b32 {t[6]}, {t[5]}
    s_mul_i32 s34, s{sWAVE}, 1280
    s_add_u32 s34, s34, {EXF+256}
    v_lshlrev_b32 {t[7]}, 2, {l}
    v_add_u32 {t[6]}, s34, {t[7]}
    """)
    for j in range(5):
        a(f'ds_write_b32 {t[6]}, {t[j]} offset:{256*j}')
    a(f"""
    s_xor_b32 s35, s{sWAVE}, 2
    s_mul_i32 s34, s35, 1280
    s_add_u32 s34, s34, {EXF+256}
    v_add_u32 {t[7]}, s34, {t[7]}
    v_mov_b32 {t[8]}, {EXF}
    s_waitcnt vmcnt(0) lgkmcnt(0)
    s_barrier
    ds_read_b128 v[{S(0,0)}:{S(0,0)+3}], {t[8]}
    """)
    for j in range(5):
        a(f'ds_read_b32 v{S(1,0)+j}, {t[7]} offset:{256*j}')
    a(f"""
    s_mul_i32 s34, s{sWAVE}, 20480
    v_lshlrev_b32 {t[9]}, 4, {l}
    v_add_u32 {t[6]}, s34, {t[9]}
    s_mul_i32 s34, s35, 20480
    v_add_u32 {t[7]}, s34, {t[9]}
    """)
    for j in range(5):
        for n in range(4):
            a(f'ds_write_b128 {t[6]}, {ar(OSEND(j,4+n))} offset:{(j*4+n)*1024}')
        if j == 0:
            a('s_waitcnt lgkmcnt(4)')
            b = S(0, 0)
            a(f"""
    v_or_b32 v{b}, v{b}, v{b+1}
    v_or3_b32 v{b}, v{b}, v{b+2}, v{b+3}
    s_nop 0
    v_readfirstlane_b32 s38, v{b}
    s_xor_b32 s39, s{sFB}, 1
    s_and_b32 s38, s38, s39
    s_cmp_lg_u32 s38, 0
    s_cbranch_scc1 L_fallback
    """)
            for jj in range(5):
                a(f'v_add_f32 {t[jj]}, {t[jj]}, v{S(1,0)+jj}')
            for jj in range(5):
                a(f'v_rcp_f32 {t[jj]}, {t[jj]}')
    a('s_waitcnt lgkmcnt(0)')
    a('s_barrier')
    for j in range(5):
        for n in range(4):
            a(f'ds_read_b128 {vr(Q(j,n))}, {t[7]} offset:{(j*4+n)*1024}')
    a(f"""
    s_mul_i32 s34, s{sB}, 10
    s_mul_i32 s35, s{sR}, 5
    s_add_u32 s34, s34, s35
    s_lshl_b32 s34, s34, 7
    s_lshl_b32 s35, s{sHQ}, 2
    s_add_u32 s34, s34, s35
    s_lshl_b32 s35, s{sKH}, 1
    s_add_u32 s34, s34, s35
    s_lshl_b32 s34, s34, 10
    """)
    for j in range(5):
        a(f's_waitcnt lgkmcnt({min(12, 16-4*j)})')
        for n in range(4):
            for i in range(4):
                a(f'v_add_f32 v{OKEEP(j,n)+i}, v{OKEEP(j,n)+i}, v{Q(j,n)+i}')
        for n in range(4):
            for i in range(4):
                a(f'v_mul_f32 v{OKEEP(j,n)+i}, {t[j]}, v{OKEEP(j,n)+i}')
        for u in range(2):
            for hh in range(2):
                b = OKEEP(j, 2*u + hh)
                a(f'v_cvt_pk_bf16_f32 v{Q(j,u)+2*hh}, v{b}, v{b+1}')
                a(f'v_cvt_pk_bf16_f32 v{Q(j,u)+2*hh+1}, v{b+2}, v{b+3}')
        if j > 0: a(f's_add_u32 s34, s34, {128*1024}')
        for u in range(2):
            a(f'buffer_store_dwordx4 {vr(Q(j,u))}, {t[9]}, {sr(sO)}, s34 offen offset:{1024*u}' + (' sc1' if FUSED else ''))
    if FUSED:
        import tail
        tail.gen_tail(a, prof)
    elif prof:
        a('s_waitcnt vmcnt(0)')
        stamp(a, prof)
        dump_stamps(a, t[0])
    a('s_branch L_k1_end')

def dump_dbg(a, tv):
    sel = [int(x) for x in os.environ['DBGP'].split(',')]
    slots = [1, 2, 3, 4, 5, 6, 7, 9, 10, 11, 12, 13, 14, 15]
    a(f's_cmp_lg_u32 s{sWAVE}, 0')
    a('s_cbranch_scc1 L_k1_end')
    a(f's_cmp_lg_u32 s2, {os.environ.get("DBGW", "100")}')
    a('s_cbranch_scc1 L_k1_end')
    a('s_mov_b64 exec, 1')
    a(f'v_mov_b32 {tv}, 0')
    for n, k in enumerate(sel):
        a(f's_sub_u32 s34, s{60+2*k}, s60')
        a(f'v_mov_b32 v{201+n}, s34')
        a(f'buffer_store_dword v{201+n}, {tv}, s[92:95], 0 offen offset:{4*slots[n]}')

def dump_stamps(a, tv):
    if os.environ.get('DBGP'): return dump_dbg(a, tv)
    if True:
        a('s_memrealtime s[98:99]')
        a('s_waitcnt lgkmcnt(0)')
        a(f"""
    s_lshl_b32 s34, s2, 2
    s_add_u32 s34, s34, s{sWAVE}
    s_lshl_b32 s34, s34, 7
    s_add_u32 s34, s34, 0x1000000
    s_mov_b32 s{sO+2}, 0x2000000
    v_mov_b32 {tv}, s34
    """)
        for k in range(NSTAMP[0]):
            a(f's_sub_u32 s35, s{60+2*k}, s60')
            a(f'v_mov_b32 v{200+k}, s35')
            a(f'buffer_store_dword v{200+k}, {tv}, {sr(sO)}, 0 offen offset:{4*k}')
        a('v_mov_b32 v230, s96')
        a('v_mov_b32 v231, s98')
        a(f'buffer_store_dword v230, {tv}, {sr(sO)}, 0 offen offset:120')
        a(f'buffer_store_dword v231, {tv}, {sr(sO)}, 0 offen offset:124')

def fallback(a):
    t = [f'v{x}' for x in vT]
    l = f'v{vLANE}'
    a.label('L_fallback')
    a('s_waitcnt vmcnt(0) lgkmcnt(0)')
    a('s_barrier')
    for j in range(5):
        a(f'v_mov_b32 {t[j]}, 0xff800000')
    a(f's_sub_u32 s{sT}, s{sTE}, 262144')
    a(f's_mov_b32 s{sL}, 0')
    a.label('L_fb_loop')
    a(f's_mov_b32 m0, s{sM0K}')
    a('s_nop 0')
    for j in range(4):
        a(f'buffer_load_dwordx4 v{vKD[j]}, {sr(sK)}, s{sT} offen offset:{1024*j} lds')
    a('s_waitcnt vmcnt(0)')
    a('s_barrier')
    for r in k_reads(0, 0): a(r)
    a('s_waitcnt lgkmcnt(0)')
    a('s_barrier')
    for j in range(5):
        for m in qk_mf(j, 0, 0, cinit=False): a(m)
        a('s_nop 7')
        b0, b1 = S(0, 0), S(0, 1)
        a(f'v_max3_f32 {t[j]}, {t[j]}, v{b0}, v{b0+1}')
        a(f'v_max3_f32 {t[j]}, {t[j]}, v{b0+2}, v{b0+3}')
        a(f'v_max3_f32 {t[j]}, {t[j]}, v{b1}, v{b1+1}')
        a(f'v_max3_f32 {t[j]}, {t[j]}, v{b1+2}, v{b1+3}')
    a(f"""
    s_add_u32 s{sT}, s{sT}, 8192
    s_add_u32 s{sL}, s{sL}, 1
    s_cmp_lt_u32 s{sL}, 32
    s_cbranch_scc1 L_fb_loop
    """)
    a(f"""
    s_mul_i32 s34, s{sWAVE}, 1280
    s_add_u32 s34, s34, {EXF}
    v_lshlrev_b32 {t[7]}, 2, {l}
    v_add_u32 {t[6]}, s34, {t[7]}
    """)
    for j in range(5):
        a(f'ds_write_b32 {t[6]}, {t[j]} offset:{256*j}')
    a(f"""
    s_waitcnt lgkmcnt(0)
    s_barrier
    v_and_b32 {t[7]}, 15, {l}
    v_lshlrev_b32 {t[7]}, 2, {t[7]}
    s_mul_i32 s34, s{sR}, 1280
    s_add_u32 s34, s34, {EXF}
    v_add_u32 {t[7]}, s34, {t[7]}
    """)
    for j in range(5):
        regs = [S(0,0)+i for i in range(8)]
        k = 0
        for kh in range(2):
            for g in range(4):
                a(f'ds_read_b32 v{regs[k]}, {t[7]} offset:{kh*2560 + j*256 + g*64}')
                k += 1
        a('s_waitcnt lgkmcnt(0)')
        a(f'v_max3_f32 {t[8]}, v{regs[0]}, v{regs[1]}, v{regs[2]}')
        a(f'v_max3_f32 {t[8]}, {t[8]}, v{regs[3]}, v{regs[4]}')
        a(f'v_max3_f32 {t[8]}, {t[8]}, v{regs[5]}, v{regs[6]}')
        a(f'v_max_f32 {t[8]}, {t[8]}, v{regs[7]}')
        for i in range(4):
            a(f'v_sub_f32 v{CI(j)+i}, 0, {t[8]}')
    zero_acc(a, keep=True)
    a(f's_mov_b32 s{sFB}, 1')
    if FUSED == 3:
        import tail3
        a(f's_mul_i32 s{tail3.sBo}, s{sWAVE}, 1179648')
    if FUSED == 4:
        import tail4
        a(f's_mul_i32 s{tail4.sBo}, s{sWAVE}, 1179648')
    a(f's_mov_b32 s{sT}, s{sT0}')
    a('s_barrier')
    for slot in range(3):
        emit_groups(a, tile_dmas(slot))
        for x in t_adv(): a(x)
    a('s_waitcnt vmcnt(8)')
    a('s_barrier')
    for r in k_reads(0, 0) + v_reads(0, 0): a(r)
    a('s_waitcnt lgkmcnt(0)')
    a('s_branch L_attn0')

def gen_k1(prof=False):
    NSTAMP[0] = 0
    segs = {}
    def seg(name, f, *args):
        x = Asm(); f(x, *args); segs[name] = x; return x
    seg('init', init, prof)
    seg('qproj', qproj, prof)
    seg('qfin', qfin, prof)
    seg('pre', pre_loop, prof)
    seg('loop', loop)
    seg('fin', final_pv)
    seg('epi', epilogue, prof)
    seg('fb', fallback)
    order = ['init', 'qproj', 'qfin', 'pre', 'loop', 'fin', 'epi', 'fb']
    return segs, order
```

```python
import os
from asmlib import Asm
import k1
from k1 import (vr, ar, sr, MF, sWAVE, sB, sO, sWO, sR, sKH, sHQ, sFB, vLANE, stamp, vT, LS, S, P, Q, OKEEP, OSEND, CI,
                step, pv_mf, interleave, vONES, VF, OREG)
sOUT, sDBG = 56, 92
sMT, sNT, sA, sBo, sM0 = 40, 41, 42, 43, 44
sXA, sXB = 45, 46
NWG = 243
MAP = os.environ.get('MAP', 'C')
DO = int(os.environ.get('DO', 5))
WFIRST = int(os.environ.get('WFIRST', 0))
NREG = 22
K_ = 1024
ASL = [0, 16*K_, 64*K_, 80*K_]
XSL = [32*K_, 48*K_, 96*K_, 112*K_, 128*K_, 144*K_]
A0, A1, A2, A3 = ASL
X0, X1, X2, X3, X4, X5 = XSL
SLOT = [A0, A2, A1, A3, X0, X2, A0, A2, A1, A3, A0, A2, A1, A3, A0, A2, A1, X0, X1, X2, X3, X4, X5,
        A3, A0, A2, A1, X0, X1, X2, X3, X4]
def slot(k): return SLOT[k]
assert len(set(SLOT[22:])) == 10
EXA = [48*K_, 112*K_, 128*K_, 140*K_]
EXB = [32*K_, 40*K_, 96*K_, 104*K_]
EXL = 152*K_
vWO = [3, 4, 5, 6]; vO = [7, 8, 9]; T = [10, 11, 12, 13, 14, 15]
vSA, vSB, vL16 = 7, 8, 9
vPA, vPB, vPL, vFL = 252, 253, 254, 251
vPOLL = 1
RDE = [10, 11, 12, 13, 14, 15, 242, 243]
def vRD(base, nb, early=False): return RDE[base * 4 + nb] if early else 16 + base * 4 + nb
def ACC(nb, mb): return 28 + (nb * 3 + mb) * 4
def OR(slot_, mb): return 76 + (slot_ * 3 + mb) * 4
assert 76 + DO * 12 <= 160
def WR(k, nb):
    tab = {0: 228, 1: 100, 2: 116, 4: 164, 5: 180, 3: 132, 6: 148, 7: 212, 8: 196, 9: 0, 10: 16, 11: 32, 12: 48, 13: 64, 14: 80}
    if k in tab: return ('a', tab[k] + nb * 4)
    if k == 15: return ('a', [96, 244, 248, 252][nb])
    if k < NREG: return ('v', 160 + (k - 16) * 16 + nb * 4)
    return WR(k & 1, nb)
def rtxt(r, n=4, off=0): return f'{r[0]}[{r[1]+off}:{r[1]+off+n-1}]'

def sel4(a, dst, vals):
    a(f's_mov_b32 s{dst}, {vals[0]}')
    for w in range(1, 4):
        a(f's_cmp_eq_u32 s{sWAVE}, {w}')
        a(f's_cselect_b32 s{dst}, {vals[w]}, s{dst}')

def tile_part1(a):
    t = [f'v{x}' for x in vT]
    l = f'v{vLANE}'
    a(f"""
    s_and_b32 s34, s2, 7
    s_lshr_b32 s35, s2, 3
    s_mul_i32 s36, s34, 30
    s_min_u32 s37, s34, 3
    s_add_u32 s36, s36, s37
    s_add_u32 s36, s36, s35
    """)
    if MAP == 'B':
        a(f"""
    s_mul_i32 s37, s36, 7282
    s_lshr_b32 s{sMT}, s37, 16
    s_mul_i32 s38, s{sMT}, 9
    s_sub_u32 s{sNT}, s36, s38
    """)
    elif MAP == 'C':
        a(f"""
    s_lshr_b32 s{sMT}, s36, 2
    s_and_b32 s{sNT}, s36, 3
    s_sub_u32 s37, s36, 108
    s_mul_i32 s38, s37, 13108
    s_lshr_b32 s38, s38, 16
    s_mul_i32 s39, s38, 5
    s_sub_u32 s39, s37, s39
    s_add_u32 s39, s39, 4
    s_cmp_ge_u32 s36, 108
    s_cselect_b32 s{sMT}, s38, s{sMT}
    s_cselect_b32 s{sNT}, s39, s{sNT}
    """)
    else:
        a(f"""
    s_mul_i32 s37, s36, 811
    s_lshr_b32 s37, s37, 16
    s_mul_i32 s38, s37, 81
    s_sub_u32 s38, s36, s38
    s_mul_i32 s39, s38, 171
    s_lshr_b32 s{sMT}, s39, 9
    s_mul_i32 s39, s{sMT}, 3
    s_sub_u32 s39, s38, s39
    s_mul_i32 s37, s37, 3
    s_add_u32 s{sNT}, s37, s39
    """)
    a(f"""
    s_mul_i32 s{sBo}, s{sWAVE}, 1179648
    s_lshl_b32 s{sM0}, s{sWAVE}, 12
    s_lshl_b32 s34, s{sNT}, 7
    v_lshrrev_b32 {t[0]}, 3, {l}
    v_mul_u32_u24 {t[0]}, 1152, {t[0]}
    v_add_u32 {t[0]}, s34, {t[0]}
    v_lshrrev_b32 {t[1]}, 4, {l}
    v_lshlrev_b32 {t[1]}, 1, {t[1]}
    v_and_b32 {t[2]}, 7, {l}
    v_xor_b32 {t[1]}, {t[1]}, {t[2]}
    v_lshl_add_u32 v{vWO[0]}, {t[1]}, 4, {t[0]}
    """)
    for p in range(1, 4):
        a(f'v_add_u32 v{vWO[p]}, {p*(8*1152-1024)}, v{vWO[0]}')
    a(f'v_lshlrev_b32 v{vL16}, 4, {l}')
    sel4(a, sXA, EXA); sel4(a, sXB, EXB)
    a(f'v_add_u32 v{vSA}, s{sXA}, v{vL16}')
    a(f'v_add_u32 v{vSB}, s{sXB}, v{vL16}')
    rd_addr(a, True)

def rd_addr(a, early):
    t = [f'v{x}' for x in vT[5:8]]
    l = f'v{vLANE}'
    a(f"""
    v_lshrrev_b32 {t[0]}, 4, {l}
    v_lshrrev_b32 {t[1]}, 2, {l}
    v_and_b32 {t[1]}, 3, {t[1]}
    v_lshl_add_u32 {t[0]}, {t[0]}, 2, {t[1]}
    v_lshrrev_b32 {t[1]}, 1, {t[0]}
    v_and_b32 {t[1]}, 3, {t[1]}
    v_lshlrev_b32 {t[0]}, 7, {t[0]}
    v_add_u32 {t[0]}, s{sM0}, {t[0]}
    v_and_b32 {t[2]}, 1, {l}
    v_lshl_add_u32 {t[0]}, {t[2]}, 3, {t[0]}
    v_lshrrev_b32 {t[2]}, 1, {l}
    v_and_b32 {t[2]}, 1, {t[2]}
    v_lshl_add_u32 {t[0]}, {t[2]}, 4, {t[0]}
    """)
    for nb in range(4):
        a(f'v_xor_b32 {t[2]}, {nb}, {t[1]}')
        a(f'v_lshl_add_u32 v{vRD(0,nb,early)}, {t[2]}, 5, {t[0]}')
        a(f'v_add_u32 v{vRD(1,nb,early)}, 65536, v{vRD(0,nb,early)}')

def tile_part2(a):
    t = [f'v{x}' for x in T]
    l = f'v{vLANE}'
    for nb in range(4):
        a(f'v_mov_b32 v{vRD(0,nb)}, v{vRD(0,nb,True)}')
        a(f'v_mov_b32 v{vRD(1,nb)}, v{vRD(1,nb,True)}')
        a(f'v_add_u32 v{vRD(2,nb)}, 65536, v{vRD(1,nb,True)}')
    a(f"""
    s_mul_i32 s34, s{sMT}, {3*131072}
    s_lshl_b32 s35, s{sWAVE}, 15
    s_add_u32 s{sA}, s34, s35
    v_add_u32 v{vO[1]}, 131072, v{vL16}
    v_add_u32 v{vO[2]}, 262144, v{vL16}
    v_mov_b32 v{vO[0]}, v{vL16}
    """)
    a.items[-1], a.items[-2] = a.items[-2], a.items[-1]
    a(f"""
    s_mul_i32 s34, s{sMT}, 48
    s_mul_i32 s35, s34, 52429
    s_lshr_b32 s35, s35, 23
    s_add_u32 s34, s34, 47
    s_min_u32 s34, s34, 1279
    s_mul_i32 s36, s34, 52429
    s_lshr_b32 s36, s36, 23
    s_lshl_b32 s35, s35, 5
    s_lshl_b32 s36, s36, 5
    v_mov_b32 {t[0]}, s35
    v_mov_b32 {t[1]}, s36
    v_cmp_eq_u32 vcc, 1, {l}
    s_nop 1
    v_cndmask_b32 v{vPOLL}, {t[0]}, {t[1]}, vcc
    """)

def wv(tag, l0=False): return f's_waitcnt vmcnt(63) ; @wv {tag}' + (' +l0' if l0 else '')
def wl(tag): return f's_waitcnt lgkmcnt(15) ; @wl {tag}'
def resolve(a, start, vq):
    from asmlib import Ins, parse_wait
    import re
    vq = list(vq); lq = []; tmp = None
    out = []
    def need(q, tag, cap):
        idx = [i for i, t in enumerate(q) if t == tag]
        if not idx: return None
        n = len(q) - 1 - idx[-1]
        del q[:idx[-1] + 1]
        return min(n, cap)
    for it in a.items[start:]:
        if not isinstance(it, Ins):
            out.append(it); continue
        txt = it.text
        cm = txt.split(';', 1)[1].strip() if ';' in txt else ''
        tag = None
        m = re.search(r'#(\S+)', cm)
        if m: tag = m.group(1)
        if cm.startswith('@wvt'):
            if cm.split()[1] == 'begin':
                tmp = list(vq); continue
            n = need(tmp, cm.split()[1], 63)
            out.append(Ins(f's_waitcnt vmcnt({n})')); continue
        if cm.startswith('@wv'):
            n = need(vq, cm.split()[1], 63)
            l0 = '+l0' in cm
            if l0: lq.clear()
            if n is None and not l0: continue
            out.append(Ins('s_waitcnt ' + (f'vmcnt({n}) ' if n is not None else '') + ('lgkmcnt(0)' if l0 else ''))); continue
        if cm.startswith('@wl'):
            n = need(lq, cm.split()[1], 14)
            if n is None: continue
            out.append(Ins(f's_waitcnt lgkmcnt({n})')); continue
        if cm.startswith('@nostores'):
            assert not any(t.startswith('S') for t in vq), vq
            continue
        if it.cls == 'wait' and '@keep' not in cm:
            vm, lg = parse_wait(it)
            if vm is not None: del vq[:max(0, len(vq) - vm)]
            if lg is not None: del lq[:max(0, len(lq) - lg)]
        elif it.cls in ('vmem', 'vst'):
            if tag != '-': vq.append(tag or 'x')
        elif it.cls in ('dsr', 'dsw', 'smem'):
            lq.append(tag or 'x')
        out.append(Ins(txt.split(';')[0].rstrip()) if cm else it)
    a.items[start:] = out

def m0w(k): return f's_add_u32 m0, s{sM0}, {slot(k)}'
def dma(k, p): return f'buffer_load_dwordx4 v{vWO[p]}, {sr(sWO)}, s{sBo} offen offset:{1024*p} lds ; #W{k}'
BADV = f's_add_u32 s{sBo}, s{sBo}, 36864'
def wgroups(k0, k1_):
    g = []
    for k in (k0, k1_):
        g += [[m0w(k), dma(k, 0)], [dma(k, 1)], [dma(k, 2)], [dma(k, 3), BADV]]
    return g
def emit_w(a, k):
    a(m0w(k)); a('s_nop 0')
    for p in range(4): a(dma(k, p))
    a(BADV)
def o_ops(k):
    return ([f'buffer_load_dwordx4 {vr(OR(k % DO, mb))}, v{vO[mb]}, {sr(sO)}, s{sA} offen sc1 ; #O{k}' for mb in range(3)],
            [f's_add_u32 s{sA}, s{sA}, 1024'])
def areads(k, early=False):
    sb = slot(k)
    return [f'ds_read_b64_tr_b16 {rtxt(WR(k, nb), 2, 2*h)}, v{vRD(sb >> 16, nb, early)} offset:{(sb & 65535) + h*2048} ; #R{k}'
            for nb in range(4) for h in range(2)]
def spread(k, first=None):
    r = areads(k, True)
    f = {0: [wv(f'W{k}')]}
    for g in (1, 1, 3, 5, 5, 7, 9, 9): f.setdefault(g, []).append(r.pop(0))
    return f
def merge(*ds):
    o = {}
    for d in ds:
        for g, l_ in d.items(): o.setdefault(g, []).extend(l_)
    return o

def send(j, n):
    if j < 3: return f'ds_write_b128 v{vSA}, {ar(OSEND(j,4+n))} offset:{(j*4+n)*1024}'
    return f'ds_write_b128 v{vSB}, {ar(OSEND(j,4+n))} offset:{((j-3)*4+n)*1024}'

def gen(a, prof):
    t = [f'v{x}' for x in vT]
    l = f'v{vLANE}'
    start = len(a.items)
    a.label('L_tail')
    stamp(a, prof)
    step(a, 0, 'pk', tdx=wgroups(0, 1), bar=[wv('T30', True), 's_barrier'])
    step(a, 1, 'pk', tdx=wgroups(2, 3), bar=[wv('T31', True), 's_barrier'])
    e30 = {0: spread(0),
           4: merge(spread(1), {11: [m0w(6)], 13: [dma(6, 0)], 16: [dma(6, 1)]})}
    step(a, 2, 'p30', e30, tdx=wgroups(4, 5), bar=['s_waitcnt lgkmcnt(0)', 's_barrier'])
    r3 = areads(3, True)
    e31 = {0: merge(spread(2), {11: [dma(6, 2)], 13: [dma(6, 3), BADV], 15: [wl('R1'), m0w(7)], 16: [dma(7, 0)]}),
           1: merge(spread(4), {11: [dma(7, 1)], 13: [dma(7, 2)], 16: [dma(7, 3), BADV]}),
           2: merge(spread(5), {11: [send(0, 0)], 13: [send(0, 1)], 15: [send(0, 2)], 16: [send(0, 3), wl('R2'), m0w(8)]}),
           3: merge({g: [send(1, n)] for n, g in enumerate((1, 5, 9, 13))},
                    {3: [dma(8, 0)], 7: [dma(8, 1)], 11: [dma(8, 2)], 15: [dma(8, 3), BADV], 16: [wl('R5'), 's_barrier']}),
           4: merge({0: [wv('W3')]}, {g: [r3[g]] for g in range(8)}, {g: [send(2, n)] for n, g in enumerate((1, 3, 5, 7))})}
    step(a, 3, 'p31', e31)
    for j in range(4):
        a(f'v_accvgpr_read_b32 {t[j]}, a{LS(j)}')
    m = pv_mf(4, 1, 1)
    mf = [m[0]] + m[5:9] + m[1:5]
    chk = [f'v_mov_b32 {t[5]}, 0x33800000', f'v_mov_b32 {t[6]}, 0x4e800000', 's_mov_b64 s[36:37], 0']
    def check(j):
        return [f'v_cmp_nge_f32 vcc, {t[j]}, {t[5]}', 's_or_b64 s[36:37], s[36:37], vcc',
                f'v_cmp_nle_f32 vcc, {t[j]}, {t[6]}', 's_or_b64 s[36:37], s[36:37], vcc']
    r6 = areads(6, True)
    fills = {0: [send(3, 0), wv('W6')] + r6[0:2] + chk, 1: [send(3, 1)] + r6[2:4] + check(0), 2: [send(3, 2)] + r6[4:6] + check(1),
             3: [send(3, 3)] + r6[6:8] + check(2),
             4: check(3) + [wl('R3'), m0w(9)], 5: [f'v_accvgpr_read_b32 {t[4]}, a{LS(4)}', dma(9, 0)], 6: [send(4, 0), dma(9, 1)],
             7: [send(4, 1), dma(9, 2)] + check(4), 8: [send(4, 2), dma(9, 3), BADV]}
    interleave(a, mf, fills)
    a(f"""
    s_cmp_lg_u64 s[36:37], 0
    s_cselect_b32 s38, 1, 0
    v_mov_b32 {t[5]}, s38
    s_lshl_b32 s34, s{sWAVE}, 2
    s_add_u32 s34, s34, {EXL}
    v_mov_b32 {t[6]}, s34
    """)
    a(send(4, 3))
    a(f"""
    ds_write_b32 {t[6]}, {t[5]}
    s_mul_i32 s34, s{sWAVE}, 1280
    s_add_u32 s34, s34, {EXL+256}
    v_lshlrev_b32 {t[7]}, 2, {l}
    v_add_u32 {t[6]}, s34, {t[7]}
    """)
    for j in range(5):
        a(f'ds_write_b32 {t[6]}, {t[j]} offset:{256*j}')
    a(wv('W7'))
    for x in areads(7, True): a(x)
    a(wl('R6'))
    emit_w(a, 10)
    a(f"""
    s_xor_b32 s35, s{sWAVE}, 2
    s_mul_i32 s34, s35, 1280
    s_add_u32 s34, s34, {EXL+256}
    v_add_u32 v{vPL}, s34, {t[7]}
    v_mov_b32 v{vFL}, {EXL}
    """)
    PA = [EXA[w ^ 2] for w in range(4)]; PB = [EXB[w ^ 2] for w in range(4)]
    sel4(a, sXA, PA); sel4(a, sXB, PB)
    a(f'v_add_u32 v{vPA}, s{sXA}, v{vL16}')
    a(f'v_add_u32 v{vPB}, s{sXB}, v{vL16}')
    a(f"""
    s_mul_i32 s34, s{sB}, 10
    s_mul_i32 s35, s{sR}, 5
    s_add_u32 s34, s34, s35
    s_lshl_b32 s34, s34, 7
    s_lshl_b32 s35, s{sHQ}, 2
    s_add_u32 s34, s34, s35
    s_lshl_b32 s35, s{sKH}, 1
    s_add_u32 s34, s34, s35
    s_lshl_b32 s{sA}, s34, 10
    s_waitcnt lgkmcnt(0)
    s_barrier
    """)
    stamp(a, prof)
    def pread(j, n, dst):
        if j < 3: return f'ds_read_b128 {vr(dst)}, v{vPA} offset:{(j*4+n)*1024} ; #P{j}'
        return f'ds_read_b128 {vr(dst)}, v{vPB} offset:{((j-3)*4+n)*1024} ; #P{j}'
    def PD(j, n): return CI(0) + 4 * n if j == 0 else Q(j, n)
    FL = P(0); LP = S(1, 0)
    a(f'ds_read_b128 {vr(FL)}, v{vFL} ; #F')
    for j in range(5):
        a(f'ds_read_b32 v{LP+j}, v{vPL} offset:{256*j} ; #F')
    for n in range(4): a(pread(0, n, PD(0, n)))
    emit_w(a, 11)
    a(wl('F'))
    a(f"""
    v_or_b32 v{FL}, v{FL}, v{FL+1}
    v_or3_b32 v{FL}, v{FL}, v{FL+2}, v{FL+3}
    s_nop 0
    v_readfirstlane_b32 s38, v{FL}
    s_xor_b32 s39, s{sFB}, 1
    s_and_b32 s38, s38, s39
    s_cmp_lg_u32 s38, {'s38' if any(x.startswith('no') for x in k1.XP) else 0}
    s_cbranch_scc1 L_fallback
    """)
    a(wv('W8'))
    for x in areads(8, True): a(x)
    for j in range(1, 5):
        for n in range(4): a(pread(j, n, PD(j, n)))
    for jj in range(5):
        a(f'v_add_f32 {t[jj]}, {t[jj]}, v{LP+jj}')
    for jj in range(5):
        a(f'v_rcp_f32 {t[jj]}, {t[jj]}')
    a(wl('R8'))
    emit_w(a, 12)
    a(wv('W9'))
    for x in areads(9, True): a(x)
    def math(j):
        r = []
        rp = vT[j] & ~1
        sel = 'op_sel_hi:[1,0]' if vT[j] % 2 == 0 else 'op_sel:[0,1] op_sel_hi:[1,1]'
        for n in range(4):
            for i in (0, 2):
                o = OKEEP(j, n) + i
                r.append(f'v_pk_add_f32 {vr(o,2)}, {vr(o,2)}, {vr(PD(j,n)+i,2)}')
        for n in range(4):
            for i in (0, 2):
                o = OKEEP(j, n) + i
                r.append(f'v_pk_mul_f32 {vr(o,2)}, {vr(o,2)}, {vr(rp,2)} {sel}')
        for u in range(2):
            for hh in range(2):
                bb = OKEEP(j, 2*u + hh)
                r.append(f'v_cvt_pk_bf16_f32 v{Q(j,u)+2*hh}, v{bb}, v{bb+1}')
                r.append(f'v_cvt_pk_bf16_f32 v{Q(j,u)+2*hh+1}, v{bb+2}, v{bb+3}')
        return r
    def stores(j):
        for u in range(2):
            a(f'buffer_store_dwordx4 {vr(Q(j,u))}, v{vL16}, {sr(sO)}, s{sA} offen offset:{1024*u} sc1 ; #S{j}')
        if j < 4: a(f's_add_u32 s{sA}, s{sA}, {128*1024}')
    for j in range(2):
        a(wl(f'P{j}'))
        for x in math(j): a(x)
        stores(j)
    a('s_waitcnt lgkmcnt(0)')
    a('s_barrier')
    stamp(a, prof)
    emit_w(a, 13)
    for j in range(2, 5):
        a(wv(f'W{8+j}'))
        for x in areads(8 + j, True): a(x)
        for x in math(j): a(x)
        stores(j)
        a(wl(f'R{8+j}'))
        emit_w(a, 12 + j)
    tile_part2(a)
    a(f"""
    s_cmp_ge_u32 s2, {NWG}
    s_cbranch_scc1 L_t_tailwg
    """)
    for k in range(17, 23): emit_w(a, k)
    stamp(a, prof)
    POLLS = [int(x) for x in os.environ.get('POLLS', '26,29').split(',')]
    SIGK = 16
    vP = [T[2], T[3], T[4]]
    def signal(lbl):
        a(f"""
    s_barrier
    s_cmp_lg_u32 s{sWAVE}, 0
    s_cbranch_scc1 {lbl}
    s_lshl_b32 s34, s{sB}, 5
    v_mov_b32 v{T[0]}, s34
    v_mov_b32 v{T[1]}, 1
    s_mov_b64 exec, 1
    buffer_atomic_add v{T[1]}, v{T[0]}, {sr(sDBG)}, 0 offen sc1 ; #-
    s_mov_b64 exec, -1
    """)
        a.label(lbl)
    a(wv('W13'))
    for x in areads(13): a(x)
    for k in range(13, NREG):
        nxt = k + 1
        if nxt < NREG:
            a(wv(f'W{nxt}'))
            for x in areads(nxt): a(x)
            if nxt == SIGK:
                a('s_nop 0 ; @nostores')
                signal('L_t_nosig')
                stamp(a, prof)
        a(wl(f'R{k}'))
        emit_w(a, k + 10)
        if k + 10 in POLLS:
            i = POLLS.index(k + 10)
            a(f'buffer_load_dword v{vP[i]}, v{vPOLL}, {sr(sDBG)}, 0 offen sc1 ; #P{i}q')
    stamp(a, prof)
    a(f's_cmp_lg_u32 s{sWAVE}, 0')
    a('s_cbranch_scc1 L_t_go')
    a('s_nop 0 ; @wvt begin')
    for i in range(len(POLLS)):
        a(f's_nop 0 ; @wvt P{i}q')
        a(f'v_cmp_gt_u32 vcc, 32, v{vP[i]}')
        a('s_cbranch_vccz L_t_go')
    a('s_mov_b32 s37, 0')
    a.label('L_t_poll')
    a(f"""
    buffer_load_dword v{vP[2]}, v{vPOLL}, {sr(sDBG)}, 0 offen sc1 ; #-
    s_add_u32 s37, s37, 1
    s_waitcnt vmcnt(0) ; @keep
    s_cmp_gt_u32 s37, 0x40000
    s_cbranch_scc1 L_t_go
    v_cmp_gt_u32 vcc, 32, v{vP[2]}
    s_cbranch_vccnz L_t_poll
    """)
    a.label('L_t_go')
    a('s_barrier')
    stamp(a, prof)
    for k in range(DO):
        ld, post = o_ops(k)
        for x in ld: a(x)
        a(post[0])
    for u in range(32):
        lg = u >= NREG
        if lg: a(wv(f'W{u}'))
        a(wv(f'O{u}', lg))
        rd = areads(u + 1) if NREG <= u + 1 < 32 else []
        if rd: rd = [wv(f'W{u+1}')] + rd; rd = [rd[0:3], rd[3:5], rd[5:7], rd[7:9]]
        else: rd = [[], [], [], []]
        mf = []
        for mb in range(3):
            for nb in range(4):
                c = '0' if u == 0 else vr(ACC(nb, mb))
                mf.append(f'{MF} {vr(ACC(nb,mb))}, {rtxt(WR(u,nb))}, {vr(OR(u % DO, mb))}, {c}')
        fills = {0: rd[0], 1: rd[1], 2: rd[2], 3: rd[3]}
        if u + DO < 32:
            ld, post2 = o_ops(u + DO)
            fills.setdefault(5, []).append(ld[0]); fills.setdefault(8, []).append(ld[1]); fills.setdefault(11, []).extend([ld[2]] + post2)
        interleave(a, mf, fills)
    stamp(a, prof)
    tt = [f'v{x}' for x in T]
    a(f"""
    v_lshlrev_b32 {tt[0]}, 4, {l}
    v_add_u32 {tt[1]}, s{sM0}, {tt[0]}
    s_lshl_b32 s34, s{sWAVE}, 10
    v_add_u32 {tt[4]}, s34, {tt[0]}
    s_mul_i32 s34, s{sMT}, {48*1152}
    s_lshl_b32 s35, s{sNT}, 7
    s_add_u32 s34, s34, s35
    s_lshl_b32 s35, s{sWAVE}, 5
    s_add_u32 s34, s34, s35
    v_and_b32 {tt[2]}, 15, {l}
    v_mul_u32_u24 {tt[2]}, 1152, {tt[2]}
    v_lshrrev_b32 {tt[3]}, 4, {l}
    v_lshl_add_u32 {tt[2]}, {tt[3]}, 3, {tt[2]}
    """)
    for mb in range(3):
        for nb in range(4):
            a(f'ds_write_b128 {tt[1]}, {vr(ACC(nb,mb))} offset:{mb*16384 + nb*1024}')
    a(f"""
    s_waitcnt lgkmcnt(0)
    s_barrier
    """)
    R0 = 80
    for mb in range(3):
        for w in range(4):
            a(f'ds_read_b128 {vr(R0 + (mb*4+w)*4)}, {tt[4]} offset:{mb*16384 + w*4096}')
    for mb in range(3):
        a(f's_waitcnt lgkmcnt({8 - 4*mb})')
        r = R0 + mb * 16
        for i in (0, 2):
            a(f'v_pk_add_f32 {vr(r+i,2)}, {vr(r+i,2)}, {vr(r+4+i,2)}')
            a(f'v_pk_add_f32 {vr(r+8+i,2)}, {vr(r+8+i,2)}, {vr(r+12+i,2)}')
        for i in (0, 2):
            a(f'v_pk_add_f32 {vr(r+i,2)}, {vr(r+i,2)}, {vr(r+8+i,2)}')
        a(f'v_cvt_pk_bf16_f32 v{140+2*mb}, v{r}, v{r+1}')
        a(f'v_cvt_pk_bf16_f32 v{141+2*mb}, v{r+2}, v{r+3}')
        a(f'buffer_store_dwordx2 {vr(140+2*mb,2)}, {tt[2]}, {sr(sOUT)}, s34 offen' + os.environ.get('OUTF', ''))
        if mb < 2: a(f's_add_u32 s34, s34, {16*1152}')
    resolve(a, start, ['T30'] * 8 + ['T31'] * 8)
    if prof:
        a('s_waitcnt vmcnt(0)')
        stamp(a, prof)
        k1.dump_stamps(a, tt[0])
    a('s_branch L_k1_end')
    start2 = len(a.items)
    a.label('L_t_tailwg')
    a('s_waitcnt vmcnt(0)')
    signal('L_t_nosig2')
    a('s_waitcnt vmcnt(0)')
    resolve(a, start2, [])
    a('s_branch L_k1_end')
```

```python
import os
from asmlib import Asm, Ins, Label, Raw

sX, sK, sV, sW, sO = 8, 12, 16, 20, 24
sWO = 52
sWAVE, sR, sKH, sHQ, sB = 3, 4, 5, 6, 7
sT = 30
sM0K = 31
sL = 32
sFB = 33
sXB0, sWB0, sXE = 40, 41, 42
sXo, sWo = 46, 47
sT0 = 48
sTB, sTE = 100, 101
KROT = int(os.environ.get('KROT', 0))
PAIR = int(os.environ.get('PAIR', 0))
NTP = os.environ.get('NTP', 'both')
sINC = [28, 29]
def t_adv(n=0):
    if PAIR:
        return [f's_add_u32 s{sT}, s{sT}, s{sINC[n & 1]}', f's_and_b32 s{sT}, s{sT}, 0x3ffff', f's_or_b32 s{sT}, s{sT}, s{sTB}']
    r = [f's_add_u32 s{sT}, s{sT}, 8192']
    if KROT: r += [f's_cmp_eq_u32 s{sT}, s{sTE}', f's_cselect_b32 s{sT}, s{sTB}, s{sT}']
    return r
sM0X, sM0W = 49, 50
sTW = 51
vTCH = 255
sTMP = 34
vLANE = 2
def Q(j, s): return 16 + (j * 4 + s) * 4
def OKEEP(j, n): return 96 + (j * 4 + n) * 4
def S(buf, kb): return 176 + (buf * 2 + kb) * 4
def P(buf): return 192 + buf * 4
def CI(j): return 200 + 4 * j
vONES = 220
vKA = [224, 225, 226, 227]
vVA = [228 + i for i in range(8)]
vKD = [236, 237, 238, 239]
vVD = [240, 241]
vXD = [3, 4, 5, 6, 7]
vWD = [8, 9, 10, 11]
vXR = [12, 13]
vWR = [14, 15]
vE, vEP = 242, 243
vT = list(range(244, 256))
def OSEND(j, n): return (j * 4 + (n - 4)) * 4
def LS(j): return 80 + 4 * j
def KF(buf, kb, ds): return 100 + (buf * 8 + kb * 4 + ds) * 4
def VF(buf, n): return 164 + (buf * 8 + n) * 4
def QA(buf, a): return 100 + buf * 16 + a * 4
def QB(buf, j): return 132 + buf * 20 + j * 4
def QACC(j, a): return 96 + (j * 4 + a) * 4

def vr(b, n=4): return f'v[{b}:{b+n-1}]'
def ar(b, n=4): return f'a[{b}:{b+n-1}]'
def sr(b, n=4): return f's[{b}:{b+n-1}]'
def OREG(j, n): return vr(OKEEP(j, n)) if n < 4 else ar(OSEND(j, n))

MF = 'v_mfma_f32_16x16x32_bf16'
XBUF0, XBUFS = 81920, 20480
WBUF0, WBUFS = 16384, 16384
EXQ = 122880
EXF = 131072
OOB = 0x7f000000
TOUCH_LDS = 143360
XP = os.environ.get('XP', '').split(',')
FILL0 = int(os.environ.get('FILL0', 9))
TOUCH = os.environ.get("NOTOUCH") is None
FUSED = False
QSCALE = 0x3e0293ee

NSTAMP = [0]
def stamp(a, prof, real=False):
    if not prof: return
    k = NSTAMP[0]; NSTAMP[0] += 1
    if k >= 16: return
    real = real or os.environ.get('REAL') is not None
    a(f's_mem{"real" if real else ""}time s[{60+2*k}:{61+2*k}]')
    a('s_waitcnt lgkmcnt(0)')

def interleave(a, mf, fills):
    for i, m in enumerate(mf):
        a(m)
        for f in fills.get(i, []):
            a(f)

def init(a, prof):
    a(f"""
    s_cmp_ge_u32 s2, 256
    s_cbranch_scc1 L_k1_end
    s_load_dwordx2 {sr(sX,2)}, s[0:1], 0
    s_load_dwordx2 {sr(sW,2)}, s[0:1], 24
    s_load_dwordx2 {sr(sK,2)}, s[0:1], 8
    s_load_dwordx2 {sr(sV,2)}, s[0:1], 16
    s_load_dwordx2 {sr(sO,2)}, s[0:1], 56
    s_load_dwordx2 {sr(sWO,2)}, s[0:1], 32
    """)
    if FUSED:
        a('s_load_dwordx2 s[56:57], s[0:1], 40')
        a('s_load_dwordx2 s[92:93], s[0:1], 48')
        a('s_mov_b32 s58, 1474560')
        a('s_mov_b32 s59, 0x00020000')
        a('s_mov_b32 s94, 256')
        a('s_mov_b32 s95, 0x00020000')
    if prof:
        a('s_memrealtime s[96:97]')
    stamp(a, prof)
    a(f"""
    v_lshrrev_b32 v1, 6, v0
    v_and_b32 v{vLANE}, 63, v0
    s_mov_b32 s{sX+2}, 1474560
    s_mov_b32 s{sX+3}, 0x00020000
    v_readfirstlane_b32 s{sWAVE}, v1
    s_mov_b32 s{sW+2}, 4718592
    s_mov_b32 s{sW+3}, 0x00020000
    s_mov_b32 s{sK+2}, 0x4000000
    s_mov_b32 s{sK+3}, 0x00020000
    s_mov_b32 s{sV+2}, 0x4000000
    s_mov_b32 s{sV+3}, 0x00020000
    s_mov_b32 s{sO+2}, 10485760
    s_mov_b32 s{sO+3}, 0x00020000
    s_mov_b32 s{sWO+2}, 4718592
    s_mov_b32 s{sWO+3}, 0x00020000
    s_and_b32 s34, s2, 7
    s_lshr_b32 s35, s2, 3
    s_and_b32 s36, s35, 3
    s_lshl_b32 s{sHQ}, s34, 2
    s_add_u32 s{sHQ}, s{sHQ}, s36
    s_lshr_b32 s{sB}, s35, 2
    s_and_b32 s{sR}, s{sWAVE}, 1
    s_lshr_b32 s{sKH}, s{sWAVE}, 1
    ; chunk rotation c0 = (b + 2*hl) mod 9
    """)
    ROT = os.environ.get('ROT', '3')
    if ROT == '9':
        a(f"""
    s_lshl_b32 s37, s36, 1
    s_add_u32 s37, s37, s{sB}
    s_sub_u32 s38, s37, 9
    s_cmp_ge_u32 s37, 9
    s_cselect_b32 s37, s38, s37
    """)
    elif ROT == '3':
        a(f"""
    s_add_u32 s37, s{sB}, s36
    s_mul_i32 s38, s37, 43
    s_lshr_b32 s38, s38, 7
    s_mul_i32 s38, s38, 3
    s_sub_u32 s37, s37, s38
    s_mul_i32 s37, s37, 3
    """)
    else:
        a('s_mov_b32 s37, 0')
    a(f"""
    s_mul_i32 s{sXB0}, s{sB}, 184320
    s_lshl_b32 s{sWB0}, s{sHQ}, 8
    s_add_u32 s{sXE}, s{sXB0}, {9*128}
    s_lshl_b32 s38, s37, 7
    s_add_u32 s{sXo}, s{sXB0}, s38
    s_lshl_b32 s38, s37, 19
    s_add_u32 s{sWo}, s{sWB0}, s38
    """)
    l = f'v{vLANE}'
    t0, t1, t2, t3, t4, t5 = [f'v{x}' for x in vT[:6]]
    a(f"""
    s_lshl_b32 s34, s{sWAVE}, 3
    v_lshrrev_b32 {t0}, 3, {l}
    v_add_u32 {t0}, s34, {t0}
    v_mul_u32_u24 {t0}, 1152, {t0}
    v_and_b32 {t1}, 7, {l}
    v_lshrrev_b32 {t2}, 4, {l}
    v_xor_b32 {t1}, {t1}, {t2}
    s_lshl_b32 s35, s{sR}, 2
    v_xor_b32 {t1}, s35, {t1}
    v_lshl_add_u32 v{vXD[0]}, {t1}, 4, {t0}
    """)
    for i in range(1, 5):
        a(f'v_add_u32 v{vXD[i]}, {36864*i}, v{vXD[0]}')
    a(f"""
    s_lshl_b32 s34, s{sWAVE}, 2
    v_add_u32 {t0}, s34, {t2}
    v_lshlrev_b32 {t0}, 13, {t0}
    v_and_b32 {t3}, 15, {l}
    v_lshlrev_b32 {t1}, 2, {t2}
    v_xor_b32 {t1}, {t1}, {t3}
    v_lshl_add_u32 v{vWD[0]}, {t1}, 4, {t0}
    """)
    for i in range(1, 4):
        a(f'v_add_u32 v{vWD[i]}, {131072*i}, v{vWD[0]}')
    a(f"""
    s_lshl_b32 s34, s{sWAVE}, 10
    s_add_u32 s{sM0X}, s34, {XBUF0}
    s_add_u32 s{sM0W}, s34, {WBUF0}
    """)
    a('s_waitcnt lgkmcnt(0)')
    if os.environ.get('PSTAMP'): stamp(a, prof)

def initkv(a):
    l = f'v{vLANE}'
    t0, t1, t2, t3, t4, t5 = [f'v{x}' for x in vT[:6]]
    a(f"""
    ; K/V tile offsets
    s_lshr_b32 s34, s{sHQ}, 1
    s_lshl_b32 s35, s{sB}, 4
    s_add_u32 s34, s34, s35
    s_lshl_b32 s34, s34, 19
    s_lshl_b32 s35, s{sKH}, 18
    s_add_u32 s34, s34, s35
    s_lshl_b32 s35, s{sR}, 12
    s_add_u32 s{sTB}, s34, s35
    s_add_u32 s{sTE}, s{sTB}, 262144
    s_lshr_b32 s36, s{sHQ}, 1
    s_lshl_b32 s37, s{sB}, 4
    s_add_u32 s36, s36, s37
    s_mul_i32 s36, s36, {KROT}
    s_lshl_b32 s37, s{sKH}, 4
    s_add_u32 s36, s36, s37
    s_and_b32 s36, s36, {31 if KROT else 0}
    s_lshl_b32 s36, s36, 13
    s_add_u32 s{sT0}, s{sTB}, s36
    """)
    if PAIR:
        assert KROT % 2 == 0
        a(f"""
    s_and_b32 s36, s{sHQ}, 1
    s_lshl_b32 s37, s36, 13
    s_xor_b32 s{sT0}, s{sT0}, s37
    s_mul_i32 s37, s36, 16384
    s_sub_u32 s{sINC[0]}, 8192, s37
    s_add_u32 s{sINC[1]}, s37, 8192
    s_mov_b32 s{sTB}, s34
    """)
    a(f"""
    s_lshl_b32 s34, s{sKH}, 16
    s_add_u32 s{sM0K}, s34, s35
    s_mov_b32 s{sFB}, 0
    """)
    a(f"""
    v_lshrrev_b32 {t2}, 4, {l}
    v_and_b32 {t3}, 15, {l}
    v_lshlrev_b32 {t0}, 8, {t2}
    v_xor_b32 {t1}, {t3}, {t2}
    """)
    for j in range(4):
        a(f'v_xor_b32 {t4}, {4*j}, {t1}')
        a(f'v_lshl_add_u32 v{vKD[j]}, {t4}, 4, {t0}')
    a(f"""
    v_lshlrev_b32 {t4}, 1, {t2}
    v_xor_b32 {t1}, {t3}, {t4}
    """)
    for p in range(2):
        a(f'v_xor_b32 {t4}, {8*p}, {t1}')
        a(f'v_lshl_add_u32 v{vVD[p]}, {t4}, 4, {t0}')
    if TOUCH:
        a(f"""
    s_lshl_b32 s34, s2, 2
    s_add_u32 s34, s34, s{sWAVE}
    s_mul_i32 s{sTW}, s34, 4608
    v_lshlrev_b32 {t0}, 4, {l}
    v_mov_b32 {t1}, {hex(OOB)}
    v_cmp_gt_u32 vcc, {42 if FUSED == 4 else 36}, {l}
    s_nop 1
    v_cndmask_b32 v{vTCH}, {t1}, {t0}, vcc
    """)

def dma_x(G, within, i, buf):
    return [f's_add_u32 m0, s{sM0X}, {buf*XBUFS + 4096*i}',
            f'buffer_load_dwordx4 v{vXD[i]}, {sr(sX)}, s{sXo} offen lds']
def dma_w(G, within, i, buf):
    return [f's_add_u32 m0, s{sM0W}, {buf*WBUFS + 4096*i}',
            f'buffer_load_dwordx4 v{vWD[i]}, {sr(sW)}, s{sWo} offen lds']
def chunk_dmas(i9):
    G, w = i9 // 3, i9 % 3
    buf = i9 % 3
    pre = [] if i9 == 0 else [f's_add_u32 s{sXo}, s{sXo}, 128', f's_add_u32 s{sWo}, s{sWo}, 0x80000', f's_cmp_eq_u32 s{sXo}, s{sXE}',
                              f's_cselect_b32 s{sXo}, s{sXB0}, s{sXo}', f's_cselect_b32 s{sWo}, s{sWB0}, s{sWo}']
    grp = []
    for i in range(4):
        grp.append(dma_w(G, w, i, buf))
        grp.append(dma_x(G, w, i, buf))
    grp.append(dma_x(G, w, 4, buf))
    return pre, grp

def tile_dmas(slot):
    g = []
    nt = {'both': ' nt', 'none': '', 'odd': ' nt' if slot & 1 else '', 'even': '' if slot & 1 else ' nt'}[NTP]
    for j in range(4):
        pre = [f's_add_u32 m0, s{sM0K}, {slot*16384}'] if j == 0 else []
        g.append(pre + [f'buffer_load_dwordx4 v{vKD[j]}, {sr(sK)}, s{sT} offen offset:{1024*j}{nt} lds'])
    for j in range(4):
        pre = [f's_add_u32 m0, s{sM0K}, {slot*16384 + 8192}'] if j == 0 else []
        g.append(pre + [f'buffer_load_dwordx4 v{vVD[j&1]}, {sr(sV)}, s{sT} offen offset:{1024*j}{nt} lds'])
    return g

def emit_groups(a, groups):
    for g in groups:
        for k, ins in enumerate(g):
            a(ins)
            if 'm0' in ins.split(',')[0]:
                a('s_nop 0')

def init2(a):
    l = f'v{vLANE}'
    t0, t1, t2, t3, t4, t5, t6 = [f'v{x}' for x in vT[:7]]
    a(f"""
    v_lshrrev_b32 {t2}, 4, {l}
    v_and_b32 {t3}, 15, {l}
    v_lshrrev_b32 {t5}, 2, {l}
    v_and_b32 {t5}, 3, {t5}
    v_and_b32 {t6}, 3, {l}
    s_mul_i32 s34, s{sR}, 10240
    s_add_u32 s34, s34, {XBUF0}
    v_lshlrev_b32 {t0}, 7, {t3}
    v_add_u32 {t0}, s34, {t0}
    v_lshrrev_b32 {t1}, 1, {t3}
    v_xor_b32 {t4}, {t2}, {t1}
    v_lshl_add_u32 v{vXR[0]}, {t4}, 4, {t0}
    v_xor_b32 {t4}, 4, {t4}
    v_lshl_add_u32 v{vXR[1]}, {t4}, 4, {t0}
    v_lshl_add_u32 {t0}, {t2}, 3, {t5}
    v_lshlrev_b32 {t0}, 8, {t0}
    v_add_u32 {t0}, {WBUF0}, {t0}
    s_lshl_b32 s34, s{sKH}, 1
    """)
    for sp in range(2):
        a(f"""
    s_add_u32 s35, s34, {sp}
    v_xor_b32 {t1}, s35, {t5}
    v_lshl_add_u32 {t1}, {t1}, 2, {t6}
    v_lshl_add_u32 v{vWR[sp]}, {t1}, 4, {t0}
    """)
    a(f"""
    s_lshl_b32 s35, s{sKH}, 16
    v_lshlrev_b32 {t0}, 8, {t3}
    v_add_u32 {t0}, s35, {t0}
    """)
    for sp in range(4):
        a(f"""
    s_xor_b32 s36, s34, {sp}
    s_lshl_b32 s36, s36, 2
    v_add_u32 {t1}, s36, {t2}
    v_xor_b32 {t1}, {t1}, {t3}
    v_lshl_add_u32 v{vKA[sp]}, {t1}, 4, {t0}
    """)
    a(f"""
    v_lshl_add_u32 {t0}, {t2}, 2, {t5}
    v_lshlrev_b32 {t0}, 8, {t0}
    s_add_u32 s35, s35, 8192
    v_add_u32 {t0}, s35, {t0}
    v_and_b32 {t1}, 1, {t6}
    v_lshl_add_u32 {t0}, {t1}, 3, {t0}
    v_lshrrev_b32 {t1}, 1, {t6}
    v_lshl_add_u32 {t0}, {t1}, 4, {t0}
    v_and_b32 {t1}, 1, {t2}
    v_lshl_add_u32 {t1}, {t1}, 2, {t5}
    s_lshl_b32 s36, s{sKH}, 2
    """)
    for n in range(8):
        a(f"""
    s_xor_b32 s37, s36, {n}
    v_xor_b32 {t4}, s37, {t1}
    v_lshl_add_u32 v{vVA[n]}, {t4}, 5, {t0}
    """)
    a(f"""
    s_mul_i32 s34, s{sWAVE}, 10240
    s_add_u32 s34, s34, {EXQ}
    v_lshlrev_b32 {t0}, 4, {l}
    v_add_u32 v{vE}, s34, {t0}
    s_xor_b32 s35, s{sWAVE}, 2
    s_mul_i32 s35, s35, 10240
    s_add_u32 s35, s35, {EXQ}
    v_add_u32 v{vEP}, s35, {t0}
    """)
    zero_acc(a, keep=False)
    for i in range(4):
        a(f'v_mov_b32 v{vONES+i}, 0x3f803f80')
    for j in range(5):
        for i in range(4):
            a(f'v_mov_b32 v{CI(j)+i}, 0')

def zero_acc(a, keep=True):
    for i in range(100):
        a(f'v_accvgpr_write_b32 a{i}, 0')
    for i in range(32):
        a(f'v_accvgpr_write_b32 a{VF(1,0)+i}, 0')
    for i in range(4):
        a(f'v_mov_b32 v{P(1)+i}, 0')
    if keep:
        for i in range(0, 80, 2):
            a(f'v_pk_mov_b32 {vr(96+i,2)}, 0, 0')

def qfrag_reads(u):
    i9, ks = u // 2, u % 2
    buf, fb = i9 % 3, u % 2
    r = []
    for j in range(5):
        r.append(f'ds_read_b128 {ar(QB(fb, j))}, v{vXR[ks]} offset:{XBUFS*buf + 2048*j}')
    for sp in range(2):
        for t in range(2):
            for h in range(2):
                r.append(f'ds_read_b64_tr_b16 {ar(QA(fb, 2*sp+t)+2*h, 2)}, v{vWR[sp]} offset:{WBUFS*buf + 8192*ks + 1024*h + 8*t}')
    A = r[5:]; B = r[:5]
    return [A[0], A[1], B[0], B[1], B[2], B[3], B[4]] + A[2:]

class VQ:
    def __init__(self): self.q = []
    def add(self, tag): self.q.append(tag)
    def need(self, tags):
        last = -1
        for i, t in enumerate(self.q):
            if t in tags: last = i
        n = len(self.q) - 1 - last
        self.q = self.q[last + 1:]
        return min(n, 63)

T0LATE = os.environ.get('T0LATE', '0') == '1'
def qproj(a, prof):
    q = VQ()
    def tagged(groups, tag): return [(g, tag) for g in groups]
    groups = []
    for i9 in range(3):
        pre, grp = chunk_dmas(i9)
        groups += tagged([pre + grp[0]] + grp[1:], ('C', i9))
    td = tile_dmas(0)
    t0 = tagged([[f's_mov_b32 s{sT}, s{sT0}'] + td[0]] + td[1:-1] + [td[-1] + t_adv(0)], ('T', 0))
    if not T0LATE: groups += t0; t0 = []
    tmp = Asm(); initkv(tmp); init2(tmp)
    fill = [i.text for i in tmp.items]
    per = -(-len(fill) // (len(groups) - FILL0))
    for d, (g, tag) in enumerate(groups):
        for k_, ins in enumerate(g):
            a(ins)
            if 'm0' in ins.split(',')[0]: a('s_nop 0')
            if ins.startswith('buffer'): q.add(tag)
        if d >= FILL0 - 1:
            for ins in fill[:per]: a(ins)
            fill = fill[per:]
        if os.environ.get('PSTAMP') and d in (0, 8, 17, 26): stamp(a, prof)
    assert not fill
    stamp(a, prof)
    a(f's_waitcnt vmcnt({q.need([("C", 0)])})')
    a('s_barrier')
    stamp(a, prof)
    for r in qfrag_reads(0): a(r)
    pend = []
    for u in range(18):
        fb = u % 2
        if u % 2 == 1:
            c = u // 2
            if c + 1 <= 8: a(f's_waitcnt vmcnt({q.need([("C", c + 1)])}) lgkmcnt(0)')
            else: a('s_waitcnt lgkmcnt(0)')
            a('s_barrier')
            if u in (1, 17): stamp(a, prof)
            assert not pend
            if c + 3 <= 8:
                pre, grp = chunk_dmas(c + 3)
                pend = tagged([pre + grp[0]] + grp[1:], ('C', c + 3))
                if c >= 2 and t0:
                    sl = t0[:3]; t0 = t0[3:]
                    n0 = 8 - len(t0) - len(sl)
                    g0, tg = sl[0]
                    if not any('m0' in x.split(',')[0] for x in g0):
                        g0 = [f's_add_u32 m0, s{sM0K}, {0 if n0 < 4 else 8192}'] + g0
                    pend += [(g0, tg)] + sl[1:]
            elif c + 3 == 9:
                pend = tagged(tile_dmas(1) + [t_adv(1)], ('T', 1))
            elif c + 3 == 10:
                pend = tagged(tile_dmas(2) + [t_adv(2)], ('T', 2))
        else:
            a('s_waitcnt lgkmcnt(0)')
        mf = []
        for t in range(4):
            for j in range(5):
                c_ = '0' if u == 0 else vr(QACC(j, t))
                mf.append(f'{MF} {vr(QACC(j,t))}, {ar(QA(fb,t))}, {ar(QB(fb,j))}, {c_}')
        fills = {}
        reads = qfrag_reads(u + 1) if u < 17 else []
        g = 0
        while reads:
            fills.setdefault(g, []).extend(reads[:2]); reads = reads[2:]; g += 1
        g = 7
        nmax = 6 if u % 2 == 1 else 99
        cnt = 0
        while pend and g < 19 and cnt < nmax:
            grp, tag = pend.pop(0)
            bi = [n for n, x in enumerate(grp) if x.startswith('buffer')]
            if bi:
                fills.setdefault(g, []).extend(grp[:bi[0]])
                fills.setdefault(g + 1, []).extend(grp[bi[0]:])
                q.add(tag)
                g += 2
            else:
                fills.setdefault(g, []).extend(grp); g += 1
            cnt += 1
        if u % 2 == 0: assert not pend, (u, pend)
        interleave(a, mf, fills)
    assert not pend and not t0
    assert q.need([('T', 1)]) == 8

def qfin(a, prof):
    stamp(a, prof)
    a(f's_mov_b32 s34, {hex(QSCALE)}')
    a(f's_mov_b32 s35, {hex(QSCALE)}')
    for r in k_reads(0, 0) + v_reads(0, 0): a(r)
    for j in range(5):
        for t in range(4):
            for i in (0, 2):
                a(f'v_pk_mul_f32 {vr(QACC(j,t)+i,2)}, {vr(QACC(j,t)+i,2)}, s[34:35]')
        for sp in range(2):
            for t in range(2):
                b = QACC(j, 2*sp + t)
                a(f'v_cvt_pk_bf16_f32 v{Q(j,sp)+2*t}, v{b}, v{b+1}')
                a(f'v_cvt_pk_bf16_f32 v{Q(j,sp)+2*t+1}, v{b+2}, v{b+3}')
        for sp in range(2):
            a(f'ds_write_b128 v{vE}, {vr(Q(j,sp))} offset:{(j*2+sp)*1024}')
    for i in range(0, 48, 2):
        a(f'v_pk_mov_b32 {vr(96+i,2)}, 0, 0')
    a('s_waitcnt vmcnt(8) lgkmcnt(0)')
    a('s_barrier')
    for j in range(5):
        for sp in range(2):
            a(f'ds_read_b128 {vr(Q(j,2+sp))}, v{vEP} offset:{(j*2+sp)*1024}')
    for i in range(48, 80, 2):
        a(f'v_pk_mov_b32 {vr(96+i,2)}, 0, 0')
    if FUSED == 3:
        import tail3
        tail3.tile_part1(a)
    if FUSED == 4:
        import tail4
        tail4.tile_part1(a)
    a('s_waitcnt lgkmcnt(8)')

def k_reads(buf, slot):
    return [f'ds_read_b128 {ar(KF(buf,kb,ds))}, v{vKA[ds]} offset:{slot*16384 + kb*4096}' for kb in range(2) for ds in range(4)]
def v_reads(buf, slot):
    return [f'ds_read_b64_tr_b16 {ar(VF(buf,n)+2*h, 2)}, v{vVA[n]} offset:{slot*16384 + h*4096}' for n in range(8) for h in range(2)]
def qk_mf(j, kbuf, sbuf, cinit=True):
    m = []
    order = [(kb, ds) for kb in range(2) for ds in range(4)]
    if 'il' in XP: order = [(kb, ds) for ds in range(4) for kb in range(2)]
    for kb, ds in order:
        c = (vr(CI(j)) if cinit and 'c0' not in XP else '0') if ds == 0 else vr(S(sbuf, kb))
        m.append(f'{MF} {vr(S(sbuf,kb))}, {ar(KF(kbuf,kb,ds))}, {vr(Q(j,ds))}, {c}')
    return m
def pv_mf(j, vbuf, pbuf):
    m = [f'{MF} {ar(LS(j))}, {vr(vONES)}, {vr(P(pbuf))}, {ar(LS(j))}']
    for n in range(8):
        m.append(f'{MF} {OREG(j,n)}, {ar(VF(vbuf,n))}, {vr(P(pbuf))}, {OREG(j,n)}')
    return m

def pre_loop(a, prof):
    a.label('L_attn0')
    stamp(a, prof)
    mf = qk_mf(0, 0, 0)
    kr = k_reads(1, 1)
    td = tile_dmas(3)
    fills = {}
    for i in range(8):
        fills[i] = [kr[i]]
    interleave(a, mf, fills)
    a('s_waitcnt lgkmcnt(8)')
    a('s_barrier')
    emit_groups(a, td)
    for x in t_adv(3): a(x)
    a(f's_mov_b32 s{sL}, 0')

def step(a, t, mode='loop', extra=None, tdx=None, bar=None):
    extra = extra or {}
    td = tdx or tile_dmas(t % 4)
    vreads = v_reads((t + 1) & 1, (t + 1) % 4)
    kreads = k_reads(t & 1, (t + 2) % 4)
    for j in range(5):
        pn = (t + j) & 1
        if j < 4: qk = qk_mf(j + 1, t & 1, (pn + 1) & 1)
        else: qk = qk_mf(0, (t + 1) & 1, (pn + 1) & 1)
        if j == 0: pv = pv_mf(4, (t - 1) & 1, (pn + 1) & 1)
        else: pv = pv_mf(j - 1, t & 1, (pn + 1) & 1)
        if mode == 'p31' and j == 4:
            fills = {g: [] for g in range(9)}
            for e in range(8):
                reg = S(pn, e // 4) + (e % 4)
                fills[e].append(f'v_exp_f32 v{reg}, v{reg}')
            for g, l_ in extra.get(j, {}).items(): fills[g] += l_
            interleave(a, pv, fills)
            for c in range(4):
                b = S(pn, c // 2) + 2 * (c % 2)
                a(f'v_cvt_pk_bf16_f32 v{P(pn)+c}, v{b}, v{b+1}')
            continue
        mf = qk + pv
        fills = {g: [] for g in range(17)}
        for e in range(8):
            reg = S(pn, e // 4) + (e % 4)
            fills[2 * e].append(f'v_exp_f32 v{reg}, v{reg}')
        cv = []
        for c in range(4):
            b = S(pn, c // 2) + 2 * (c % 2)
            cv.append(f'v_cvt_pk_bf16_f32 v{P(pn)+c}, v{b}, v{b+1}')
        free2 = [1, 5, 9, 13, 16]
        free1 = [3, 7, 11, 15]
        rd = []
        if j in (1, 2): rd = [vreads.pop(0) for _ in range(6)]
        elif j == 3: rd = [vreads.pop(0) for _ in range(4)]
        elif j == 4: rd = list(kreads)
        if mode == 'p31' or (mode == 'p30' and j == 4): rd = []
        order = [(1, 2), (3, 1), (5, 2), (7, 1), (9, 2)]
        for g, k in order:
            for _ in range(k):
                if rd: fills[g].append(rd.pop(0))
        assert not rd
        for c, g in enumerate(free1):
            fills[g].append(cv[c])
        if mode != 'loop':
            if tdx and j < 4:
                d0 = td[2 * j]; d1 = td[2 * j + 1]
                n0 = [n for n, x in enumerate(d0) if x.startswith('buffer')][0]
                n1 = [n for n, x in enumerate(d1) if x.startswith('buffer')][0]
                gA, gB = (13, 16) if j < 3 else (9, 13)
                fills[11 if j < 3 else 7] += d0[:n0]
                fills[gA] += d0[n0:]; fills[gB] += d1[n1:]
                assert n1 == 0
            if bar and j == 3: fills[16] += bar
            for g, l_ in extra.get(j, {}).items(): fills[g] += l_
            interleave(a, mf, fills)
            continue
        if j < 4:
            d0 = td[2 * j]; d1 = td[2 * j + 1]
            if len(d0) == 2:
                fills[11].append(d0[0])
            gA, gB = (13, 16) if j < 3 else (9, 13)
            fills[gA].append(d0[-1]); fills[gB].append(d1[-1])
        if j == 3:
            fills[16] += [f's_waitcnt vmcnt({17 if (TOUCH and t in (1, 2)) else 16}) lgkmcnt(0)', 's_barrier']
        if j == 4:
            ta = t_adv(t)
            fills[11 if (KROT or PAIR) else 13].append(ta[0])
            fills[13] += ta[1:]
            if TOUCH and t == 0:
                fills[15].append(f's_mov_b32 m0, {TOUCH_LDS}')
                fills[16].append(f'buffer_load_dwordx4 v{vTCH}, {sr(sWO)}, s{sTW} offen lds')
            if TOUCH and t == 1:
                fills[15].append(f's_add_u32 s{sTW}, s{sTW}, {672 if FUSED == 4 else 576}')
            if FUSED == 3 and t == 1:
                fills[16] += [f's_cmp_eq_u32 s{sL}, 7', 's_cbranch_scc1 L_peel']
        for g in fills:
            if 'nobar' in XP: fills[g] = [x for x in fills[g] if x != 's_barrier']
            if 'nodma' in XP: fills[g] = [x for x in fills[g] if not x.startswith('buffer_load')]
            if 'noexp' in XP: fills[g] = [x for x in fills[g] if not x.startswith('v_exp')]
            if 'nords' in XP: fills[g] = [x for x in fills[g] if not x.startswith('ds_read')]
            if 'nocvt' in XP: fills[g] = [x for x in fills[g] if not x.startswith('v_cvt')]
            if 'nowait' in XP: fills[g] = [x for x in fills[g] if not x.startswith('s_waitcnt')]
        if 'nols' in XP: mf = [m for n, m in enumerate(mf) if n != 8]
        interleave(a, mf, fills)

def loop(a):
    a.label('L_loop')
    for t in range(4): step(a, t)
    if FUSED == 4:
        a(f"""
    s_add_u32 s{sL}, s{sL}, 1
    s_cmp_lt_u32 s{sL}, 7
    s_cbranch_scc1 L_loop
    """)
        return
    a(f"""
    s_add_u32 s{sL}, s{sL}, 1
    s_cmp_eq_u32 s{sL}, 7
    s_cselect_b32 s{sT}, {hex(OOB)}, s{sT}
    """)
    if FUSED == 3:
        a('s_branch L_loop')
    else:
        a(f"""
    s_cmp_lt_u32 s{sL}, 8
    s_cbranch_scc1 L_loop
    """)

def final_pv(a):
    if FUSED in (3, 4): return
    for m in pv_mf(4, 1, 1): a(m)

def epilogue(a, prof):
    if FUSED == 2:
        import tail2
        return tail2.gen(a, prof)
    if FUSED == 3:
        import tail3
        return tail3.gen(a, prof)
    if FUSED == 4:
        import tail4
        return tail4.gen(a, prof)
    t = [f'v{x}' for x in vT]
    l = f'v{vLANE}'
    stamp(a, prof)
    a('s_nop 7')
    for j in range(5):
        a(f'v_accvgpr_read_b32 {t[j]}, a{LS(j)}')
    a(f"""
    v_mov_b32 {t[5]}, 0x33800000
    v_mov_b32 {t[6]}, 0x4e800000
    s_mov_b64 s[36:37], 0
    """)
    for j in range(5):
        a(f'v_cmp_nge_f32 vcc, {t[j]}, {t[5]}')
        a(f's_or_b64 s[36:37], s[36:37], vcc')
        a(f'v_cmp_nle_f32 vcc, {t[j]}, {t[6]}')
        a(f's_or_b64 s[36:37], s[36:37], vcc')
    a(f"""
    s_cmp_lg_u64 s[36:37], 0
    s_cselect_b32 s38, 1, 0
    v_mov_b32 {t[5]}, s38
    s_lshl_b32 s34, s{sWAVE}, 2
    s_add_u32 s34, s34, {EXF}
    v_mov_b32 {t[6]}, s34
    ds_write_b32 {t[6]}, {t[5]}
    s_mul_i32 s34, s{sWAVE}, 1280
    s_add_u32 s34, s34, {EXF+256}
    v_lshlrev_b32 {t[7]}, 2, {l}
    v_add_u32 {t[6]}, s34, {t[7]}
    """)
    for j in range(5):
        a(f'ds_write_b32 {t[6]}, {t[j]} offset:{256*j}')
    a(f"""
    s_xor_b32 s35, s{sWAVE}, 2
    s_mul_i32 s34, s35, 1280
    s_add_u32 s34, s34, {EXF+256}
    v_add_u32 {t[7]}, s34, {t[7]}
    v_mov_b32 {t[8]}, {EXF}
    s_waitcnt vmcnt(0) lgkmcnt(0)
    s_barrier
    ds_read_b128 v[{S(0,0)}:{S(0,0)+3}], {t[8]}
    """)
    for j in range(5):
        a(f'ds_read_b32 v{S(1,0)+j}, {t[7]} offset:{256*j}')
    a(f"""
    s_mul_i32 s34, s{sWAVE}, 20480
    v_lshlrev_b32 {t[9]}, 4, {l}
    v_add_u32 {t[6]}, s34, {t[9]}
    s_mul_i32 s34, s35, 20480
    v_add_u32 {t[7]}, s34, {t[9]}
    """)
    for j in range(5):
        for n in range(4):
            a(f'ds_write_b128 {t[6]}, {ar(OSEND(j,4+n))} offset:{(j*4+n)*1024}')
        if j == 0:
            a('s_waitcnt lgkmcnt(4)')
            b = S(0, 0)
            a(f"""
    v_or_b32 v{b}, v{b}, v{b+1}
    v_or3_b32 v{b}, v{b}, v{b+2}, v{b+3}
    s_nop 0
    v_readfirstlane_b32 s38, v{b}
    s_xor_b32 s39, s{sFB}, 1
    s_and_b32 s38, s38, s39
    s_cmp_lg_u32 s38, 0
    s_cbranch_scc1 L_fallback
    """)
            for jj in range(5):
                a(f'v_add_f32 {t[jj]}, {t[jj]}, v{S(1,0)+jj}')
            for jj in range(5):
                a(f'v_rcp_f32 {t[jj]}, {t[jj]}')
    a('s_waitcnt lgkmcnt(0)')
    a('s_barrier')
    for j in range(5):
        for n in range(4):
            a(f'ds_read_b128 {vr(Q(j,n))}, {t[7]} offset:{(j*4+n)*1024}')
    a(f"""
    s_mul_i32 s34, s{sB}, 10
    s_mul_i32 s35, s{sR}, 5
    s_add_u32 s34, s34, s35
    s_lshl_b32 s34, s34, 7
    s_lshl_b32 s35, s{sHQ}, 2
    s_add_u32 s34, s34, s35
    s_lshl_b32 s35, s{sKH}, 1
    s_add_u32 s34, s34, s35
    s_lshl_b32 s34, s34, 10
    """)
    for j in range(5):
        a(f's_waitcnt lgkmcnt({min(12, 16-4*j)})')
        for n in range(4):
            for i in range(4):
                a(f'v_add_f32 v{OKEEP(j,n)+i}, v{OKEEP(j,n)+i}, v{Q(j,n)+i}')
        for n in range(4):
            for i in range(4):
                a(f'v_mul_f32 v{OKEEP(j,n)+i}, {t[j]}, v{OKEEP(j,n)+i}')
        for u in range(2):
            for hh in range(2):
                b = OKEEP(j, 2*u + hh)
                a(f'v_cvt_pk_bf16_f32 v{Q(j,u)+2*hh}, v{b}, v{b+1}')
                a(f'v_cvt_pk_bf16_f32 v{Q(j,u)+2*hh+1}, v{b+2}, v{b+3}')
        if j > 0: a(f's_add_u32 s34, s34, {128*1024}')
        for u in range(2):
            a(f'buffer_store_dwordx4 {vr(Q(j,u))}, {t[9]}, {sr(sO)}, s34 offen offset:{1024*u}' + (' sc1' if FUSED else ''))
    if FUSED:
        import tail
        tail.gen_tail(a, prof)
    elif prof:
        a('s_waitcnt vmcnt(0)')
        stamp(a, prof)
        dump_stamps(a, t[0])
    a('s_branch L_k1_end')

def dump_dbg(a, tv):
    sel = [int(x) for x in os.environ['DBGP'].split(',')]
    slots = [1, 2, 3, 4, 5, 6, 7, 9, 10, 11, 12, 13, 14, 15]
    a(f's_cmp_lg_u32 s{sWAVE}, 0')
    a('s_cbranch_scc1 L_k1_end')
    a(f's_cmp_lg_u32 s2, {os.environ.get("DBGW", "100")}')
    a('s_cbranch_scc1 L_k1_end')
    a('s_mov_b64 exec, 1')
    a(f'v_mov_b32 {tv}, 0')
    for n, k in enumerate(sel):
        a(f's_sub_u32 s34, s{60+2*k}, s60')
        a(f'v_mov_b32 v{201+n}, s34')
        a(f'buffer_store_dword v{201+n}, {tv}, s[92:95], 0 offen offset:{4*slots[n]}')

def dump_stamps(a, tv):
    if os.environ.get('DBGP'): return dump_dbg(a, tv)
    if True:
        a('s_memrealtime s[98:99]')
        a('s_waitcnt lgkmcnt(0)')
        a(f"""
    s_lshl_b32 s34, s2, 2
    s_add_u32 s34, s34, s{sWAVE}
    s_lshl_b32 s34, s34, 7
    s_add_u32 s34, s34, 0x1000000
    s_mov_b32 s{sO+2}, 0x2000000
    v_mov_b32 {tv}, s34
    """)
        for k in range(NSTAMP[0]):
            a(f's_sub_u32 s35, s{60+2*k}, s60')
            a(f'v_mov_b32 v{200+k}, s35')
            a(f'buffer_store_dword v{200+k}, {tv}, {sr(sO)}, 0 offen offset:{4*k}')
        a('v_mov_b32 v230, s96')
        a('v_mov_b32 v231, s98')
        a(f'buffer_store_dword v230, {tv}, {sr(sO)}, 0 offen offset:120')
        a(f'buffer_store_dword v231, {tv}, {sr(sO)}, 0 offen offset:124')

def fallback(a):
    t = [f'v{x}' for x in vT]
    l = f'v{vLANE}'
    a.label('L_fallback')
    a('s_waitcnt vmcnt(0) lgkmcnt(0)')
    a('s_barrier')
    for j in range(5):
        a(f'v_mov_b32 {t[j]}, 0xff800000')
    a(f's_sub_u32 s{sT}, s{sTE}, 262144')
    a(f's_mov_b32 s{sL}, 0')
    a.label('L_fb_loop')
    a(f's_mov_b32 m0, s{sM0K}')
    a('s_nop 0')
    for j in range(4):
        a(f'buffer_load_dwordx4 v{vKD[j]}, {sr(sK)}, s{sT} offen offset:{1024*j} lds')
    a('s_waitcnt vmcnt(0)')
    a('s_barrier')
    for r in k_reads(0, 0): a(r)
    a('s_waitcnt lgkmcnt(0)')
    a('s_barrier')
    for j in range(5):
        for m in qk_mf(j, 0, 0, cinit=False): a(m)
        a('s_nop 7')
        b0, b1 = S(0, 0), S(0, 1)
        a(f'v_max3_f32 {t[j]}, {t[j]}, v{b0}, v{b0+1}')
        a(f'v_max3_f32 {t[j]}, {t[j]}, v{b0+2}, v{b0+3}')
        a(f'v_max3_f32 {t[j]}, {t[j]}, v{b1}, v{b1+1}')
        a(f'v_max3_f32 {t[j]}, {t[j]}, v{b1+2}, v{b1+3}')
    a(f"""
    s_add_u32 s{sT}, s{sT}, 8192
    s_add_u32 s{sL}, s{sL}, 1
    s_cmp_lt_u32 s{sL}, 32
    s_cbranch_scc1 L_fb_loop
    """)
    a(f"""
    s_mul_i32 s34, s{sWAVE}, 1280
    s_add_u32 s34, s34, {EXF}
    v_lshlrev_b32 {t[7]}, 2, {l}
    v_add_u32 {t[6]}, s34, {t[7]}
    """)
    for j in range(5):
        a(f'ds_write_b32 {t[6]}, {t[j]} offset:{256*j}')
    a(f"""
    s_waitcnt lgkmcnt(0)
    s_barrier
    v_and_b32 {t[7]}, 15, {l}
    v_lshlrev_b32 {t[7]}, 2, {t[7]}
    s_mul_i32 s34, s{sR}, 1280
    s_add_u32 s34, s34, {EXF}
    v_add_u32 {t[7]}, s34, {t[7]}
    """)
    for j in range(5):
        regs = [S(0,0)+i for i in range(8)]
        k = 0
        for kh in range(2):
            for g in range(4):
                a(f'ds_read_b32 v{regs[k]}, {t[7]} offset:{kh*2560 + j*256 + g*64}')
                k += 1
        a('s_waitcnt lgkmcnt(0)')
        a(f'v_max3_f32 {t[8]}, v{regs[0]}, v{regs[1]}, v{regs[2]}')
        a(f'v_max3_f32 {t[8]}, {t[8]}, v{regs[3]}, v{regs[4]}')
        a(f'v_max3_f32 {t[8]}, {t[8]}, v{regs[5]}, v{regs[6]}')
        a(f'v_max_f32 {t[8]}, {t[8]}, v{regs[7]}')
        for i in range(4):
            a(f'v_sub_f32 v{CI(j)+i}, 0, {t[8]}')
    zero_acc(a, keep=True)
    a(f's_mov_b32 s{sFB}, 1')
    if FUSED == 3:
        import tail3
        a(f's_mul_i32 s{tail3.sBo}, s{sWAVE}, 1179648')
    if FUSED == 4:
        import tail4
        a(f's_mul_i32 s{tail4.sBo}, s{sWAVE}, 1179648')
    a(f's_mov_b32 s{sT}, s{sT0}')
    a('s_barrier')
    for slot in range(3):
        emit_groups(a, tile_dmas(slot))
        for x in t_adv(slot): a(x)
    a('s_waitcnt vmcnt(8)')
    a('s_barrier')
    for r in k_reads(0, 0) + v_reads(0, 0): a(r)
    a('s_waitcnt lgkmcnt(0)')
    a('s_branch L_attn0')

def gen_k1(prof=False):
    NSTAMP[0] = 0
    segs = {}
    def seg(name, f, *args):
        x = Asm(); f(x, *args); segs[name] = x; return x
    seg('init', init, prof)
    seg('qproj', qproj, prof)
    seg('qfin', qfin, prof)
    seg('pre', pre_loop, prof)
    seg('loop', loop)
    seg('fin', final_pv)
    seg('epi', epilogue, prof)
    seg('fb', fallback)
    order = ['init', 'qproj', 'qfin', 'pre', 'loop', 'fin', 'epi', 'fb']
    return segs, order
```

```python
import os
from asmlib import Asm
import k1
from k1 import (vr, ar, sr, MF, sWAVE, sB, sO, sWO, sR, sKH, sHQ, sFB, vLANE, stamp, vT, LS, S, P, Q, OKEEP, OSEND, CI,
                step, pv_mf, interleave, vONES, VF, OREG)
sOUT, sDBG = 56, 92
sMT, sNT, sA, sBo, sM0 = 40, 41, 42, 43, 44
sXA, sXB = 45, 46
NWG = 243
MAP = os.environ.get('MAP', 'C')
DO = int(os.environ.get('DO', 5))
WFIRST = int(os.environ.get('WFIRST', 0))
NREG = 22
K_ = 1024
ASL = [0, 16*K_, 64*K_, 80*K_]
XSL = [32*K_, 48*K_, 96*K_, 112*K_, 128*K_, 144*K_]
A0, A1, A2, A3 = ASL
X0, X1, X2, X3, X4, X5 = XSL
SLOT = [A0, A2, A1, A3, X0, X2, A0, A2, A1, A3, A0, A2, A1, A3, A0, A2, A1, X0, X1, X2, X3, X4, X5,
        A3, A0, A2, A1, X0, X1, X2, X3, X4]
def slot(k): return SLOT[k]
assert len(set(SLOT[22:])) == 10
EXA = [48*K_, 112*K_, 128*K_, 140*K_]
EXB = [32*K_, 40*K_, 96*K_, 104*K_]
EXL = 152*K_
vWO = [3, 4, 5, 6]; vO = [7, 8, 9]; T = [10, 11, 12, 13, 14, 15]
vSA, vSB, vL16 = 7, 8, 9
vPA, vPB, vPL, vFL = 252, 253, 254, 251
vPOLL = 1
RDE = [10, 11, 12, 13, 14, 15, 242, 243]
def vRD(base, nb, early=False): return RDE[base * 4 + nb] if early else 16 + base * 4 + nb
def ACC(nb, mb): return 28 + (nb * 3 + mb) * 4
def OR(slot_, mb): return 76 + (slot_ * 3 + mb) * 4
assert 76 + DO * 12 <= 160
def WR(k, nb):
    tab = {0: 228, 1: 100, 2: 116, 4: 164, 5: 180, 3: 132, 6: 148, 7: 212, 8: 196, 9: 0, 10: 16, 11: 32, 12: 48, 13: 64, 14: 80}
    if k in tab: return ('a', tab[k] + nb * 4)
    if k == 15: return ('a', [96, 244, 248, 252][nb])
    if k < NREG: return ('v', 160 + (k - 16) * 16 + nb * 4)
    return WR(k & 1, nb)
def rtxt(r, n=4, off=0): return f'{r[0]}[{r[1]+off}:{r[1]+off+n-1}]'

def sel4(a, dst, vals):
    a(f's_mov_b32 s{dst}, {vals[0]}')
    for w in range(1, 4):
        a(f's_cmp_eq_u32 s{sWAVE}, {w}')
        a(f's_cselect_b32 s{dst}, {vals[w]}, s{dst}')

def tile_part1(a):
    t = [f'v{x}' for x in vT]
    l = f'v{vLANE}'
    a(f"""
    s_and_b32 s34, s2, 7
    s_lshr_b32 s35, s2, 3
    s_mul_i32 s36, s34, 30
    s_min_u32 s37, s34, 3
    s_add_u32 s36, s36, s37
    s_add_u32 s36, s36, s35
    """)
    if MAP == 'B':
        a(f"""
    s_mul_i32 s37, s36, 7282
    s_lshr_b32 s{sMT}, s37, 16
    s_mul_i32 s38, s{sMT}, 9
    s_sub_u32 s{sNT}, s36, s38
    """)
    elif MAP == 'C':
        a(f"""
    s_lshr_b32 s{sMT}, s36, 2
    s_and_b32 s{sNT}, s36, 3
    s_sub_u32 s37, s36, 108
    s_mul_i32 s38, s37, 13108
    s_lshr_b32 s38, s38, 16
    s_mul_i32 s39, s38, 5
    s_sub_u32 s39, s37, s39
    s_add_u32 s39, s39, 4
    s_cmp_ge_u32 s36, 108
    s_cselect_b32 s{sMT}, s38, s{sMT}
    s_cselect_b32 s{sNT}, s39, s{sNT}
    """)
    else:
        a(f"""
    s_mul_i32 s37, s36, 811
    s_lshr_b32 s37, s37, 16
    s_mul_i32 s38, s37, 81
    s_sub_u32 s38, s36, s38
    s_mul_i32 s39, s38, 171
    s_lshr_b32 s{sMT}, s39, 9
    s_mul_i32 s39, s{sMT}, 3
    s_sub_u32 s39, s38, s39
    s_mul_i32 s37, s37, 3
    s_add_u32 s{sNT}, s37, s39
    """)
    a(f"""
    s_mul_i32 s{sBo}, s{sWAVE}, 1179648
    s_lshl_b32 s{sM0}, s{sWAVE}, 12
    s_lshl_b32 s34, s{sNT}, 7
    v_lshrrev_b32 {t[0]}, 3, {l}
    v_mul_u32_u24 {t[0]}, 1152, {t[0]}
    v_add_u32 {t[0]}, s34, {t[0]}
    v_lshrrev_b32 {t[1]}, 4, {l}
    v_lshlrev_b32 {t[1]}, 1, {t[1]}
    v_and_b32 {t[2]}, 7, {l}
    v_xor_b32 {t[1]}, {t[1]}, {t[2]}
    v_lshl_add_u32 v{vWO[0]}, {t[1]}, 4, {t[0]}
    """)
    for p in range(1, 4):
        a(f'v_add_u32 v{vWO[p]}, {p*(8*1152-1024)}, v{vWO[0]}')
    a(f'v_lshlrev_b32 v{vL16}, 4, {l}')
    sel4(a, sXA, EXA); sel4(a, sXB, EXB)
    a(f'v_add_u32 v{vSA}, s{sXA}, v{vL16}')
    a(f'v_add_u32 v{vSB}, s{sXB}, v{vL16}')
    rd_addr(a, True)

def rd_addr(a, early):
    t = [f'v{x}' for x in vT[5:8]]
    l = f'v{vLANE}'
    a(f"""
    v_lshrrev_b32 {t[0]}, 4, {l}
    v_lshrrev_b32 {t[1]}, 2, {l}
    v_and_b32 {t[1]}, 3, {t[1]}
    v_lshl_add_u32 {t[0]}, {t[0]}, 2, {t[1]}
    v_lshrrev_b32 {t[1]}, 1, {t[0]}
    v_and_b32 {t[1]}, 3, {t[1]}
    v_lshlrev_b32 {t[0]}, 7, {t[0]}
    v_add_u32 {t[0]}, s{sM0}, {t[0]}
    v_and_b32 {t[2]}, 1, {l}
    v_lshl_add_u32 {t[0]}, {t[2]}, 3, {t[0]}
    v_lshrrev_b32 {t[2]}, 1, {l}
    v_and_b32 {t[2]}, 1, {t[2]}
    v_lshl_add_u32 {t[0]}, {t[2]}, 4, {t[0]}
    """)
    for nb in range(4):
        a(f'v_xor_b32 {t[2]}, {nb}, {t[1]}')
        a(f'v_lshl_add_u32 v{vRD(0,nb,early)}, {t[2]}, 5, {t[0]}')
        a(f'v_add_u32 v{vRD(1,nb,early)}, 65536, v{vRD(0,nb,early)}')

def tile_part2(a):
    t = [f'v{x}' for x in T]
    l = f'v{vLANE}'
    for nb in range(4):
        a(f'v_mov_b32 v{vRD(0,nb)}, v{vRD(0,nb,True)}')
        a(f'v_mov_b32 v{vRD(1,nb)}, v{vRD(1,nb,True)}')
        a(f'v_add_u32 v{vRD(2,nb)}, 65536, v{vRD(1,nb,True)}')
    a(f"""
    s_mul_i32 s34, s{sMT}, {3*131072}
    s_lshl_b32 s35, s{sWAVE}, 15
    s_add_u32 s{sA}, s34, s35
    v_add_u32 v{vO[1]}, 131072, v{vL16}
    v_add_u32 v{vO[2]}, 262144, v{vL16}
    v_mov_b32 v{vO[0]}, v{vL16}
    """)
    a.items[-1], a.items[-2] = a.items[-2], a.items[-1]
    a(f"""
    s_mul_i32 s34, s{sMT}, 48
    s_mul_i32 s35, s34, 52429
    s_lshr_b32 s35, s35, 23
    s_add_u32 s34, s34, 47
    s_min_u32 s34, s34, 1279
    s_mul_i32 s36, s34, 52429
    s_lshr_b32 s36, s36, 23
    s_lshl_b32 s35, s35, 5
    s_lshl_b32 s36, s36, 5
    v_mov_b32 {t[0]}, s35
    v_mov_b32 {t[1]}, s36
    v_cmp_eq_u32 vcc, 1, {l}
    s_nop 1
    v_cndmask_b32 v{vPOLL}, {t[0]}, {t[1]}, vcc
    """)

def wv(tag, l0=False): return f's_waitcnt vmcnt(63) ; @wv {tag}' + (' +l0' if l0 else '')
def wl(tag): return f's_waitcnt lgkmcnt(15) ; @wl {tag}'
def resolve(a, start, vq):
    from asmlib import Ins, parse_wait
    import re
    vq = list(vq); lq = []; tmp = None
    out = []
    def need(q, tag, cap):
        idx = [i for i, t in enumerate(q) if t == tag]
        if not idx: return None
        n = len(q) - 1 - idx[-1]
        del q[:idx[-1] + 1]
        return min(n, cap)
    for it in a.items[start:]:
        if not isinstance(it, Ins):
            out.append(it); continue
        txt = it.text
        cm = txt.split(';', 1)[1].strip() if ';' in txt else ''
        tag = None
        m = re.search(r'#(\S+)', cm)
        if m: tag = m.group(1)
        if cm.startswith('@wvt'):
            if cm.split()[1] == 'begin':
                tmp = list(vq); continue
            n = need(tmp, cm.split()[1], 63)
            out.append(Ins(f's_waitcnt vmcnt({n})')); continue
        if cm.startswith('@wv'):
            n = need(vq, cm.split()[1], 63)
            l0 = '+l0' in cm
            if l0: lq.clear()
            if n is None and not l0: continue
            out.append(Ins('s_waitcnt ' + (f'vmcnt({n}) ' if n is not None else '') + ('lgkmcnt(0)' if l0 else ''))); continue
        if cm.startswith('@wl'):
            n = need(lq, cm.split()[1], 14)
            if n is None: continue
            out.append(Ins(f's_waitcnt lgkmcnt({n})')); continue
        if cm.startswith('@nostores'):
            assert not any(t.startswith('S') for t in vq), vq
            continue
        if it.cls == 'wait' and '@keep' not in cm:
            vm, lg = parse_wait(it)
            if vm is not None: del vq[:max(0, len(vq) - vm)]
            if lg is not None: del lq[:max(0, len(lq) - lg)]
        elif it.cls in ('vmem', 'vst'):
            if tag != '-': vq.append(tag or 'x')
        elif it.cls in ('dsr', 'dsw', 'smem'):
            lq.append(tag or 'x')
        out.append(Ins(txt.split(';')[0].rstrip()) if cm else it)
    a.items[start:] = out

def m0w(k): return f's_add_u32 m0, s{sM0}, {slot(k)}'
def dma(k, p): return f'buffer_load_dwordx4 v{vWO[p]}, {sr(sWO)}, s{sBo} offen offset:{1024*p} lds ; #W{k}'
BADV = f's_add_u32 s{sBo}, s{sBo}, 36864'
def wgroups(k0, k1_):
    g = []
    for k in (k0, k1_):
        g += [[m0w(k), dma(k, 0)], [dma(k, 1)], [dma(k, 2)], [dma(k, 3), BADV]]
    return g
def emit_w(a, k):
    a(m0w(k)); a('s_nop 0')
    for p in range(4): a(dma(k, p))
    a(BADV)
def o_ops(k):
    return ([f'buffer_load_dwordx4 {vr(OR(k % DO, mb))}, v{vO[mb]}, {sr(sO)}, s{sA} offen sc1 ; #O{k}' for mb in range(3)],
            [f's_add_u32 s{sA}, s{sA}, 1024'])
def areads(k, early=False):
    sb = slot(k)
    return [f'ds_read_b64_tr_b16 {rtxt(WR(k, nb), 2, 2*h)}, v{vRD(sb >> 16, nb, early)} offset:{(sb & 65535) + h*2048} ; #R{k}'
            for nb in range(4) for h in range(2)]
def spread(k, first=None):
    r = areads(k, True)
    f = {0: [wv(f'W{k}')]}
    for g in (1, 1, 3, 5, 5, 7, 9, 9): f.setdefault(g, []).append(r.pop(0))
    return f
def merge(*ds):
    o = {}
    for d in ds:
        for g, l_ in d.items(): o.setdefault(g, []).extend(l_)
    return o

def send(j, n):
    if j < 3: return f'ds_write_b128 v{vSA}, {ar(OSEND(j,4+n))} offset:{(j*4+n)*1024}'
    return f'ds_write_b128 v{vSB}, {ar(OSEND(j,4+n))} offset:{((j-3)*4+n)*1024}'

def gen(a, prof):
    t = [f'v{x}' for x in vT]
    l = f'v{vLANE}'
    start = len(a.items)
    a.label('L_tail')
    stamp(a, prof)
    PST = os.environ.get('PST') is not None
    def pstamp(x):
        if PST == x: stamp(a, prof)
    step(a, 0, 'pk', tdx=wgroups(0, 1), bar=[wv('T30', True), 's_barrier'])
    pstamp(True)
    step(a, 1, 'pk', tdx=wgroups(2, 3), bar=[wv('T31', True), 's_barrier'])
    pstamp(True)
    e30 = {0: spread(0),
           4: merge(spread(1), {11: [m0w(6)], 13: [dma(6, 0)], 16: [dma(6, 1)]})}
    step(a, 2, 'p30', e30, tdx=wgroups(4, 5), bar=['s_waitcnt lgkmcnt(0)', 's_barrier'])
    pstamp(True)
    r3 = areads(3, True)
    e31 = {0: merge(spread(2), {11: [dma(6, 2)], 13: [dma(6, 3), BADV], 15: [wl('R1'), m0w(7)], 16: [dma(7, 0)]}),
           1: merge(spread(4), {11: [dma(7, 1)], 13: [dma(7, 2)], 16: [dma(7, 3), BADV]}),
           2: merge(spread(5), {11: [send(0, 0)], 13: [send(0, 1)], 15: [send(0, 2)], 16: [send(0, 3), wl('R2'), m0w(8)]}),
           3: merge({g: [send(1, n)] for n, g in enumerate((1, 5, 9, 13))},
                    {3: [dma(8, 0)], 7: [dma(8, 1)], 11: [dma(8, 2)], 15: [dma(8, 3), BADV], 16: [wl('R5'), 's_barrier']}),
           4: merge({0: [wv('W3')]}, {g: [r3[g]] for g in range(8)}, {g: [send(2, n)] for n, g in enumerate((1, 3, 5, 7))})}
    step(a, 3, 'p31', e31)
    pstamp(True)
    for j in range(4):
        a(f'v_accvgpr_read_b32 {t[j]}, a{LS(j)}')
    m = pv_mf(4, 1, 1)
    mf = [m[0]] + m[5:9] + m[1:5]
    chk = [f'v_mov_b32 {t[5]}, 0x33800000', f'v_mov_b32 {t[6]}, 0x4e800000', 's_mov_b64 s[36:37], 0']
    def check(j):
        return [f'v_cmp_nge_f32 vcc, {t[j]}, {t[5]}', 's_or_b64 s[36:37], s[36:37], vcc',
                f'v_cmp_nle_f32 vcc, {t[j]}, {t[6]}', 's_or_b64 s[36:37], s[36:37], vcc']
    r6 = areads(6, True)
    fills = {0: [send(3, 0), wv('W6')] + r6[0:2] + chk, 1: [send(3, 1)] + r6[2:4] + check(0), 2: [send(3, 2)] + r6[4:6] + check(1),
             3: [send(3, 3)] + r6[6:8] + check(2),
             4: check(3) + [wl('R3'), m0w(9)], 5: [f'v_accvgpr_read_b32 {t[4]}, a{LS(4)}', dma(9, 0)], 6: [send(4, 0), dma(9, 1)],
             7: [send(4, 1), dma(9, 2)] + check(4), 8: [send(4, 2), dma(9, 3), BADV]}
    interleave(a, mf, fills)
    a(f"""
    s_cmp_lg_u64 s[36:37], 0
    s_cselect_b32 s38, 1, 0
    v_mov_b32 {t[5]}, s38
    s_lshl_b32 s34, s{sWAVE}, 2
    s_add_u32 s34, s34, {EXL}
    v_mov_b32 {t[6]}, s34
    """)
    a(send(4, 3))
    a(f"""
    ds_write_b32 {t[6]}, {t[5]}
    s_mul_i32 s34, s{sWAVE}, 1280
    s_add_u32 s34, s34, {EXL+256}
    v_lshlrev_b32 {t[7]}, 2, {l}
    v_add_u32 {t[6]}, s34, {t[7]}
    """)
    for j in range(5):
        a(f'ds_write_b32 {t[6]}, {t[j]} offset:{256*j}')
    a(wv('W7'))
    for x in areads(7, True): a(x)
    a(wl('R6'))
    emit_w(a, 10)
    a(f"""
    s_xor_b32 s35, s{sWAVE}, 2
    s_mul_i32 s34, s35, 1280
    s_add_u32 s34, s34, {EXL+256}
    v_add_u32 v{vPL}, s34, {t[7]}
    v_mov_b32 v{vFL}, {EXL}
    """)
    PA = [EXA[w ^ 2] for w in range(4)]; PB = [EXB[w ^ 2] for w in range(4)]
    sel4(a, sXA, PA); sel4(a, sXB, PB)
    a(f'v_add_u32 v{vPA}, s{sXA}, v{vL16}')
    a(f'v_add_u32 v{vPB}, s{sXB}, v{vL16}')
    a(f"""
    s_mul_i32 s34, s{sB}, 10
    s_mul_i32 s35, s{sR}, 5
    s_add_u32 s34, s34, s35
    s_lshl_b32 s34, s34, 7
    s_lshl_b32 s35, s{sHQ}, 2
    s_add_u32 s34, s34, s35
    s_lshl_b32 s35, s{sKH}, 1
    s_add_u32 s34, s34, s35
    s_lshl_b32 s{sA}, s34, 10
    s_waitcnt lgkmcnt(0)
    s_barrier
    """)
    stamp(a, prof)
    def pread(j, n, dst):
        if j < 3: return f'ds_read_b128 {vr(dst)}, v{vPA} offset:{(j*4+n)*1024} ; #P{j}'
        return f'ds_read_b128 {vr(dst)}, v{vPB} offset:{((j-3)*4+n)*1024} ; #P{j}'
    def PD(j, n): return CI(0) + 4 * n if j == 0 else Q(j, n)
    FL = P(0); LP = S(1, 0)
    a(f'ds_read_b128 {vr(FL)}, v{vFL} ; #F')
    for j in range(5):
        a(f'ds_read_b32 v{LP+j}, v{vPL} offset:{256*j} ; #F')
    for n in range(4): a(pread(0, n, PD(0, n)))
    emit_w(a, 11)
    a(wl('F'))
    a(f"""
    v_or_b32 v{FL}, v{FL}, v{FL+1}
    v_or3_b32 v{FL}, v{FL}, v{FL+2}, v{FL+3}
    s_nop 0
    v_readfirstlane_b32 s38, v{FL}
    s_xor_b32 s39, s{sFB}, 1
    s_and_b32 s38, s38, s39
    s_cmp_lg_u32 s38, {'s38' if any(x.startswith('no') for x in k1.XP) else 0}
    s_cbranch_scc1 L_fallback
    """)
    a(wv('W8'))
    for x in areads(8, True): a(x)
    for j in range(1, 5):
        for n in range(4): a(pread(j, n, PD(j, n)))
    for jj in range(5):
        a(f'v_add_f32 {t[jj]}, {t[jj]}, v{LP+jj}')
    for jj in range(5):
        a(f'v_rcp_f32 {t[jj]}, {t[jj]}')
    a(wl('R8'))
    emit_w(a, 12)
    a(wv('W9'))
    for x in areads(9, True): a(x)
    def math(j):
        r = []
        rp = vT[j] & ~1
        sel = 'op_sel_hi:[1,0]' if vT[j] % 2 == 0 else 'op_sel:[0,1] op_sel_hi:[1,1]'
        for n in range(4):
            for i in (0, 2):
                o = OKEEP(j, n) + i
                r.append(f'v_pk_add_f32 {vr(o,2)}, {vr(o,2)}, {vr(PD(j,n)+i,2)}')
        for n in range(4):
            for i in (0, 2):
                o = OKEEP(j, n) + i
                r.append(f'v_pk_mul_f32 {vr(o,2)}, {vr(o,2)}, {vr(rp,2)} {sel}')
        for u in range(2):
            for hh in range(2):
                bb = OKEEP(j, 2*u + hh)
                r.append(f'v_cvt_pk_bf16_f32 v{Q(j,u)+2*hh}, v{bb}, v{bb+1}')
                r.append(f'v_cvt_pk_bf16_f32 v{Q(j,u)+2*hh+1}, v{bb+2}, v{bb+3}')
        return r
    def stores(j):
        for u in range(2):
            a(f'buffer_store_dwordx4 {vr(Q(j,u))}, v{vL16}, {sr(sO)}, s{sA} offen offset:{1024*u} sc1 ; #S{j}')
        if j < 4: a(f's_add_u32 s{sA}, s{sA}, {128*1024}')
    for j in range(2):
        a(wl(f'P{j}'))
        for x in math(j): a(x)
        stores(j)
    a('s_waitcnt lgkmcnt(0)')
    a('s_barrier')
    stamp(a, prof)
    EARLY = os.environ.get('EARLYS', '1') == '1'
    NPRE = int(os.environ.get('NPRE', 6))
    if not EARLY: emit_w(a, 13)
    for j in range(2, 5):
        a(wv(f'W{8+j}'))
        for x in areads(8 + j, True): a(x)
        for x in math(j): a(x)
        stores(j)
        if not EARLY:
            a(wl(f'R{8+j}'))
            emit_w(a, 12 + j)
    tile_part2(a)
    a(f"""
    s_cmp_ge_u32 s2, {NWG}
    s_cbranch_scc1 L_t_tailwg
    """)
    def signal(lbl):
        a(f"""
    s_barrier
    s_cmp_lg_u32 s{sWAVE}, 0
    s_cbranch_scc1 {lbl}
    s_lshl_b32 s34, s{sB}, 5
    v_mov_b32 v{T[0]}, s34
    v_mov_b32 v{T[1]}, 1
    s_mov_b64 exec, 1
    buffer_atomic_add v{T[1]}, v{T[0]}, {sr(sDBG)}, 0 offen sc1 ; #-
    s_mov_b64 exec, -1
    """)
        a.label(lbl)
    if EARLY:
        a(wl('R12'))
        for k in range(13, 23):
            emit_w(a, k)
            if k == 12 + NPRE:
                pstamp(False)
                a(wv('S4'))
                a('s_nop 0 ; @nostores')
                signal('L_t_nosig')
                pstamp(False)
    else:
        for k in range(17, 23): emit_w(a, k)
        pstamp(False)
    POLLS = [int(x) for x in os.environ.get('POLLS', '31').split(',')]
    SIGK = 16 if not EARLY else -1
    vP = [T[2], T[3], T[4]]
    a(wv('W13'))
    for x in areads(13): a(x)
    for k in range(13, NREG):
        nxt = k + 1
        if nxt < NREG:
            a(wv(f'W{nxt}'))
            for x in areads(nxt): a(x)
            if nxt == SIGK:
                a('s_nop 0 ; @nostores')
                signal('L_t_nosig')
                pstamp(False)
        a(wl(f'R{k}'))
        emit_w(a, k + 10)
        if k + 10 in POLLS:
            i = POLLS.index(k + 10)
            a(f'buffer_load_dword v{vP[i]}, v{vPOLL}, {sr(sDBG)}, 0 offen sc1 ; #P{i}q')
    stamp(a, prof)
    a(f's_cmp_lg_u32 s{sWAVE}, 0')
    a('s_cbranch_scc1 L_t_go')
    a('s_nop 0 ; @wvt begin')
    for i in range(len(POLLS)):
        a(f's_nop 0 ; @wvt P{i}q')
        a(f'v_cmp_gt_u32 vcc, 32, v{vP[i]}')
        a('s_cbranch_vccz L_t_go')
    a('s_mov_b32 s37, 0')
    a.label('L_t_poll')
    a(f"""
    buffer_load_dword v{vP[2]}, v{vPOLL}, {sr(sDBG)}, 0 offen sc1 ; #-
    s_add_u32 s37, s37, 1
    s_waitcnt vmcnt(0) ; @keep
    s_cmp_gt_u32 s37, 0x40000
    s_cbranch_scc1 L_t_go
    v_cmp_gt_u32 vcc, 32, v{vP[2]}
    s_cbranch_vccnz L_t_poll
    """)
    a.label('L_t_go')
    a('s_barrier')
    pstamp(False)
    for k in range(DO):
        ld, post = o_ops(k)
        for x in ld: a(x)
        a(post[0])
    for u in range(32):
        lg = u >= NREG
        if lg: a(wv(f'W{u}'))
        a(wv(f'O{u}', lg))
        rd = areads(u + 1) if NREG <= u + 1 < 32 else []
        if rd: rd = [wv(f'W{u+1}')] + rd; rd = [rd[0:3], rd[3:5], rd[5:7], rd[7:9]]
        else: rd = [[], [], [], []]
        mf = []
        for mb in range(3):
            for nb in range(4):
                c = '0' if u == 0 else vr(ACC(nb, mb))
                mf.append(f'{MF} {vr(ACC(nb,mb))}, {rtxt(WR(u,nb))}, {vr(OR(u % DO, mb))}, {c}')
        fills = {0: rd[0], 1: rd[1], 2: rd[2], 3: rd[3]}
        if u + DO < 32:
            ld, post2 = o_ops(u + DO)
            fills.setdefault(5, []).append(ld[0]); fills.setdefault(8, []).append(ld[1]); fills.setdefault(11, []).extend([ld[2]] + post2)
        interleave(a, mf, fills)
    stamp(a, prof)
    tt = [f'v{x}' for x in T]
    a(f"""
    v_lshlrev_b32 {tt[0]}, 4, {l}
    v_add_u32 {tt[1]}, s{sM0}, {tt[0]}
    s_lshl_b32 s34, s{sWAVE}, 10
    v_add_u32 {tt[4]}, s34, {tt[0]}
    s_mul_i32 s34, s{sMT}, {48*1152}
    s_lshl_b32 s35, s{sNT}, 7
    s_add_u32 s34, s34, s35
    s_lshl_b32 s35, s{sWAVE}, 5
    s_add_u32 s34, s34, s35
    v_and_b32 {tt[2]}, 15, {l}
    v_mul_u32_u24 {tt[2]}, 1152, {tt[2]}
    v_lshrrev_b32 {tt[3]}, 4, {l}
    v_lshl_add_u32 {tt[2]}, {tt[3]}, 3, {tt[2]}
    """)
    for mb in range(3):
        for nb in range(4):
            a(f'ds_write_b128 {tt[1]}, {vr(ACC(nb,mb))} offset:{mb*16384 + nb*1024}')
    a(f"""
    s_waitcnt lgkmcnt(0)
    s_barrier
    """)
    R0 = 80
    for mb in range(3):
        for w in range(4):
            a(f'ds_read_b128 {vr(R0 + (mb*4+w)*4)}, {tt[4]} offset:{mb*16384 + w*4096}')
    for mb in range(3):
        a(f's_waitcnt lgkmcnt({8 - 4*mb})')
        r = R0 + mb * 16
        for i in (0, 2):
            a(f'v_pk_add_f32 {vr(r+i,2)}, {vr(r+i,2)}, {vr(r+4+i,2)}')
            a(f'v_pk_add_f32 {vr(r+8+i,2)}, {vr(r+8+i,2)}, {vr(r+12+i,2)}')
        for i in (0, 2):
            a(f'v_pk_add_f32 {vr(r+i,2)}, {vr(r+i,2)}, {vr(r+8+i,2)}')
        a(f'v_cvt_pk_bf16_f32 v{140+2*mb}, v{r}, v{r+1}')
        a(f'v_cvt_pk_bf16_f32 v{141+2*mb}, v{r+2}, v{r+3}')
        a(f'buffer_store_dwordx2 {vr(140+2*mb,2)}, {tt[2]}, {sr(sOUT)}, s34 offen' + os.environ.get('OUTF', ''))
        if mb < 2: a(f's_add_u32 s34, s34, {16*1152}')
    resolve(a, start, ['T30'] * 8 + ['T31'] * 8)
    if prof:
        a('s_waitcnt vmcnt(0)')
        stamp(a, prof)
        k1.dump_stamps(a, tt[0])
    a('s_branch L_k1_end')
    start2 = len(a.items)
    a.label('L_t_tailwg')
    a('s_waitcnt vmcnt(0)')
    signal('L_t_nosig2')
    a('s_waitcnt vmcnt(0)')
    resolve(a, start2, [])
    a('s_branch L_k1_end')
```

```python
import os
from asmlib import Asm, Ins, Label, Raw

sX, sK, sV, sW, sO = 8, 12, 16, 20, 24
sWO = 52
sWAVE, sR, sKH, sHQ, sB = 3, 4, 5, 6, 7
sT = 30
sM0K = 31
sL = 32
sFB = 33
sXB0, sWB0, sXE = 40, 41, 42
sXo, sWo = 46, 47
sT0 = 48
sTB, sTE = 100, 101
KROT = int(os.environ.get('KROT', 0))
PAIR = int(os.environ.get('PAIR', 0))
NTP = os.environ.get('NTP', 'both')
sINC = [28, 29]
def t_adv(n=0):
    if PAIR:
        return [f's_add_u32 s{sT}, s{sT}, s{sINC[n & 1]}', f's_and_b32 s{sT}, s{sT}, 0x3ffff', f's_or_b32 s{sT}, s{sT}, s{sTB}']
    r = [f's_add_u32 s{sT}, s{sT}, 8192']
    if KROT: r += [f's_cmp_eq_u32 s{sT}, s{sTE}', f's_cselect_b32 s{sT}, s{sTB}, s{sT}']
    return r
sM0X, sM0W = 49, 50
sTW = 51
vTCH = 255
sTMP = 34
vLANE = 2
def Q(j, s): return 16 + (j * 4 + s) * 4
def OKEEP(j, n): return 96 + (j * 4 + n) * 4
def S(buf, kb): return 176 + (buf * 2 + kb) * 4
def P(buf): return 192 + buf * 4
def CI(j): return 200 + 4 * j
vONES = 220
vKA = [224, 225, 226, 227]
vVA = [228 + i for i in range(8)]
vKD = [236, 237, 238, 239]
vVD = [240, 241]
vXD = [3, 4, 5, 6, 7]
vWD = [8, 9, 10, 11]
vXR = [12, 13]
vWR = [14, 15]
vE, vEP = 242, 243
vT = list(range(244, 256))
def OSEND(j, n): return (j * 4 + (n - 4)) * 4
def LS(j): return 80 + 4 * j
def KF(buf, kb, ds): return 100 + (buf * 8 + kb * 4 + ds) * 4
def VF(buf, n): return 164 + (buf * 8 + n) * 4
def QA(buf, a): return 100 + buf * 16 + a * 4
def QB(buf, j): return 132 + buf * 20 + j * 4
def QACC(j, a): return 96 + (j * 4 + a) * 4

def vr(b, n=4): return f'v[{b}:{b+n-1}]'
def ar(b, n=4): return f'a[{b}:{b+n-1}]'
def sr(b, n=4): return f's[{b}:{b+n-1}]'
def OREG(j, n): return vr(OKEEP(j, n)) if n < 4 else ar(OSEND(j, n))

MF = 'v_mfma_f32_16x16x32_bf16'
XBUF0, XBUFS = 81920, 20480
WBUF0, WBUFS = 16384, 16384
EXQ = 122880
EXF = 131072
OOB = 0x7f000000
TOUCH_LDS = 143360
XP = os.environ.get('XP', '').split(',')
FILL0 = int(os.environ.get('FILL0', 9))
TOUCH = os.environ.get("NOTOUCH") is None
TB = int(os.environ.get('TB', 0))
LTOUCH = TOUCH and not TB
TSK = int(os.environ.get('TSK', 8))
TSHARE = (1024 - 32 * TSK) * 9 // 2
FUSED = False
QSCALE = 0x3e0293ee

NSTAMP = [0]
def stamp(a, prof, real=False):
    if not prof: return
    k = NSTAMP[0]; NSTAMP[0] += 1
    if k >= 16: return
    real = real or os.environ.get('REAL') is not None
    a(f's_mem{"real" if real else ""}time s[{60+2*k}:{61+2*k}]')
    a('s_waitcnt lgkmcnt(0)')

def interleave(a, mf, fills):
    for i, m in enumerate(mf):
        a(m)
        for f in fills.get(i, []):
            a(f)

def init(a, prof):
    a(f"""
    s_cmp_ge_u32 s2, 256
    s_cbranch_scc1 L_k1_end
    s_load_dwordx2 {sr(sX,2)}, s[0:1], 0
    s_load_dwordx2 {sr(sW,2)}, s[0:1], 24
    s_load_dwordx2 {sr(sK,2)}, s[0:1], 8
    s_load_dwordx2 {sr(sV,2)}, s[0:1], 16
    s_load_dwordx2 {sr(sO,2)}, s[0:1], 56
    s_load_dwordx2 {sr(sWO,2)}, s[0:1], 32
    """)
    if FUSED:
        a('s_load_dwordx2 s[56:57], s[0:1], 40')
        a('s_load_dwordx2 s[92:93], s[0:1], 48')
        a('s_mov_b32 s58, 1474560')
        a('s_mov_b32 s59, 0x00020000')
        a('s_mov_b32 s94, 256')
        a('s_mov_b32 s95, 0x00020000')
    if prof:
        a('s_memrealtime s[96:97]')
    stamp(a, prof)
    a(f"""
    v_lshrrev_b32 v1, 6, v0
    v_and_b32 v{vLANE}, 63, v0
    s_mov_b32 s{sX+2}, 1474560
    s_mov_b32 s{sX+3}, 0x00020000
    v_readfirstlane_b32 s{sWAVE}, v1
    s_mov_b32 s{sW+2}, 4718592
    s_mov_b32 s{sW+3}, 0x00020000
    s_mov_b32 s{sK+2}, 0x4000000
    s_mov_b32 s{sK+3}, 0x00020000
    s_mov_b32 s{sV+2}, 0x4000000
    s_mov_b32 s{sV+3}, 0x00020000
    s_mov_b32 s{sO+2}, 10485760
    s_mov_b32 s{sO+3}, 0x00020000
    s_mov_b32 s{sWO+2}, 4718592
    s_mov_b32 s{sWO+3}, 0x00020000
    s_and_b32 s34, s2, 7
    s_lshr_b32 s35, s2, 3
    s_and_b32 s36, s35, 3
    s_lshl_b32 s{sHQ}, s34, 2
    s_add_u32 s{sHQ}, s{sHQ}, s36
    s_lshr_b32 s{sB}, s35, 2
    s_and_b32 s{sR}, s{sWAVE}, 1
    s_lshr_b32 s{sKH}, s{sWAVE}, 1
    ; chunk rotation c0 = (b + 2*hl) mod 9
    """)
    ROT = os.environ.get('ROT', '3')
    if ROT == '9':
        a(f"""
    s_lshl_b32 s37, s36, 1
    s_add_u32 s37, s37, s{sB}
    s_sub_u32 s38, s37, 9
    s_cmp_ge_u32 s37, 9
    s_cselect_b32 s37, s38, s37
    """)
    elif ROT in ('97', '9m', '95'):
        a(f"""
    s_lshl_b32 s37, s36, 1
    s_cmp_eq_u32 s36, 3
    s_cselect_b32 s37, 7, s37
    """)
        if ROT == '95':
            a('s_mul_i32 s37, s36, 9\ns_lshr_b32 s37, s37, 2')
        a(f"""
    s_add_u32 s37, s37, s{sB}
    s_sub_u32 s38, s37, 9
    s_cmp_ge_u32 s37, 9
    s_cselect_b32 s37, s38, s37
    """)
    elif ROT == '3':
        a(f"""
    s_add_u32 s37, s{sB}, s36
    s_mul_i32 s38, s37, 43
    s_lshr_b32 s38, s38, 7
    s_mul_i32 s38, s38, 3
    s_sub_u32 s37, s37, s38
    s_mul_i32 s37, s37, 3
    """)
    else:
        a('s_mov_b32 s37, 0')
    a(f"""
    s_mul_i32 s{sXB0}, s{sB}, 184320
    s_lshl_b32 s{sWB0}, s{sHQ}, 8
    s_add_u32 s{sXE}, s{sXB0}, {9*128}
    s_lshl_b32 s38, s37, 7
    s_add_u32 s{sXo}, s{sXB0}, s38
    s_lshl_b32 s38, s37, 19
    s_add_u32 s{sWo}, s{sWB0}, s38
    """)
    l = f'v{vLANE}'
    t0, t1, t2, t3, t4, t5 = [f'v{x}' for x in vT[:6]]
    a(f"""
    s_lshl_b32 s34, s{sWAVE}, 3
    v_lshrrev_b32 {t0}, 3, {l}
    v_add_u32 {t0}, s34, {t0}
    v_mul_u32_u24 {t0}, 1152, {t0}
    v_and_b32 {t1}, 7, {l}
    v_lshrrev_b32 {t2}, 4, {l}
    v_xor_b32 {t1}, {t1}, {t2}
    s_lshl_b32 s35, s{sR}, 2
    v_xor_b32 {t1}, s35, {t1}
    v_lshl_add_u32 v{vXD[0]}, {t1}, 4, {t0}
    """)
    for i in range(1, 5):
        a(f'v_add_u32 v{vXD[i]}, {36864*i}, v{vXD[0]}')
    a(f"""
    s_lshl_b32 s34, s{sWAVE}, 2
    v_add_u32 {t0}, s34, {t2}
    v_lshlrev_b32 {t0}, 13, {t0}
    v_and_b32 {t3}, 15, {l}
    v_lshlrev_b32 {t1}, 2, {t2}
    v_xor_b32 {t1}, {t1}, {t3}
    v_lshl_add_u32 v{vWD[0]}, {t1}, 4, {t0}
    """)
    for i in range(1, 4):
        a(f'v_add_u32 v{vWD[i]}, {131072*i}, v{vWD[0]}')
    a(f"""
    s_lshl_b32 s34, s{sWAVE}, 10
    s_add_u32 s{sM0X}, s34, {XBUF0}
    s_add_u32 s{sM0W}, s34, {WBUF0}
    """)
    a('s_waitcnt lgkmcnt(0)')
    if os.environ.get('PSTAMP'): stamp(a, prof)

def initkv(a):
    l = f'v{vLANE}'
    t0, t1, t2, t3, t4, t5 = [f'v{x}' for x in vT[:6]]
    a(f"""
    ; K/V tile offsets
    s_lshr_b32 s34, s{sHQ}, 1
    s_lshl_b32 s35, s{sB}, 4
    s_add_u32 s34, s34, s35
    s_lshl_b32 s34, s34, 19
    s_lshl_b32 s35, s{sKH}, 18
    s_add_u32 s34, s34, s35
    s_lshl_b32 s35, s{sR}, 12
    s_add_u32 s{sTB}, s34, s35
    s_add_u32 s{sTE}, s{sTB}, 262144
    s_lshr_b32 s36, s{sHQ}, 1
    s_lshl_b32 s37, s{sB}, 4
    s_add_u32 s36, s36, s37
    s_mul_i32 s36, s36, {KROT}
    s_lshl_b32 s37, s{sKH}, 4
    s_add_u32 s36, s36, s37
    s_and_b32 s36, s36, {31 if KROT else 0}
    s_lshl_b32 s36, s36, 13
    s_add_u32 s{sT0}, s{sTB}, s36
    """)
    if PAIR:
        assert KROT % 2 == 0
        a(f"""
    s_and_b32 s36, s{sHQ}, 1
    s_lshl_b32 s37, s36, 13
    s_xor_b32 s{sT0}, s{sT0}, s37
    s_mul_i32 s37, s36, 16384
    s_sub_u32 s{sINC[0]}, 8192, s37
    s_add_u32 s{sINC[1]}, s37, 8192
    s_mov_b32 s{sTB}, s34
    """)
    a(f"""
    s_lshl_b32 s34, s{sKH}, 16
    s_add_u32 s{sM0K}, s34, s35
    s_mov_b32 s{sFB}, 0
    """)
    a(f"""
    v_lshrrev_b32 {t2}, 4, {l}
    v_and_b32 {t3}, 15, {l}
    v_lshlrev_b32 {t0}, 8, {t2}
    v_xor_b32 {t1}, {t3}, {t2}
    """)
    for j in range(4):
        a(f'v_xor_b32 {t4}, {4*j}, {t1}')
        a(f'v_lshl_add_u32 v{vKD[j]}, {t4}, 4, {t0}')
    a(f"""
    v_lshlrev_b32 {t4}, 1, {t2}
    v_xor_b32 {t1}, {t3}, {t4}
    """)
    for p in range(2):
        a(f'v_xor_b32 {t4}, {8*p}, {t1}')
        a(f'v_lshl_add_u32 v{vVD[p]}, {t4}, 4, {t0}')
    if TOUCH:
        a(f"""
    s_lshl_b32 s34, s2, 2
    s_add_u32 s34, s34, s{sWAVE}
    s_mul_i32 s{sTW}, s34, 4608
    v_lshlrev_b32 {t0}, 4, {l}
    v_mov_b32 {t1}, {hex(OOB)}
    v_cmp_gt_u32 vcc, {42 if FUSED == 4 else 36}, {l}
    s_nop 1
    v_cndmask_b32 v{vTCH}, {t1}, {t0}, vcc
    """)
        if TB: a(f'v_mov_b32 v{vTCH}, {t0}')
        if TB == 4:
            a(f"""
    s_lshl_b32 s34, s2, 2
    s_add_u32 s34, s34, s{sWAVE}
    s_lshr_b32 s35, s34, 8
    s_and_b32 s34, s34, 255
    s_mul_i32 s35, s35, 1179648
    s_mul_i32 s34, s34, {TSHARE}
    s_add_u32 s34, s34, s35
    s_add_u32 s{sTW}, s34, {TSK * 36864}
    """)

def dma_x(G, within, i, buf):
    return [f's_add_u32 m0, s{sM0X}, {buf*XBUFS + 4096*i}',
            f'buffer_load_dwordx4 v{vXD[i]}, {sr(sX)}, s{sXo} offen lds']
def dma_w(G, within, i, buf):
    return [f's_add_u32 m0, s{sM0W}, {buf*WBUFS + 4096*i}',
            f'buffer_load_dwordx4 v{vWD[i]}, {sr(sW)}, s{sWo} offen lds']
def chunk_dmas(i9):
    G, w = i9 // 3, i9 % 3
    buf = i9 % 3
    pre = [] if i9 == 0 else [f's_add_u32 s{sXo}, s{sXo}, 128', f's_add_u32 s{sWo}, s{sWo}, 0x80000', f's_cmp_eq_u32 s{sXo}, s{sXE}',
                              f's_cselect_b32 s{sXo}, s{sXB0}, s{sXo}', f's_cselect_b32 s{sWo}, s{sWB0}, s{sWo}']
    grp = []
    for i in range(4):
        grp.append(dma_w(G, w, i, buf))
        grp.append(dma_x(G, w, i, buf))
    grp.append(dma_x(G, w, 4, buf))
    return pre, grp

def tile_dmas(slot):
    g = []
    nt = {'both': ' nt', 'none': '', 'odd': ' nt' if slot & 1 else '', 'even': '' if slot & 1 else ' nt'}[NTP]
    for j in range(4):
        pre = [f's_add_u32 m0, s{sM0K}, {slot*16384}'] if j == 0 else []
        g.append(pre + [f'buffer_load_dwordx4 v{vKD[j]}, {sr(sK)}, s{sT} offen offset:{1024*j}{nt} lds'])
    for j in range(4):
        pre = [f's_add_u32 m0, s{sM0K}, {slot*16384 + 8192}'] if j == 0 else []
        g.append(pre + [f'buffer_load_dwordx4 v{vVD[j&1]}, {sr(sV)}, s{sT} offen offset:{1024*j}{nt} lds'])
    return g

def emit_groups(a, groups):
    for g in groups:
        for k, ins in enumerate(g):
            a(ins)
            if 'm0' in ins.split(',')[0]:
                a('s_nop 0')

def init2(a):
    l = f'v{vLANE}'
    t0, t1, t2, t3, t4, t5, t6 = [f'v{x}' for x in vT[:7]]
    a(f"""
    v_lshrrev_b32 {t2}, 4, {l}
    v_and_b32 {t3}, 15, {l}
    v_lshrrev_b32 {t5}, 2, {l}
    v_and_b32 {t5}, 3, {t5}
    v_and_b32 {t6}, 3, {l}
    s_mul_i32 s34, s{sR}, 10240
    s_add_u32 s34, s34, {XBUF0}
    v_lshlrev_b32 {t0}, 7, {t3}
    v_add_u32 {t0}, s34, {t0}
    v_lshrrev_b32 {t1}, 1, {t3}
    v_xor_b32 {t4}, {t2}, {t1}
    v_lshl_add_u32 v{vXR[0]}, {t4}, 4, {t0}
    v_xor_b32 {t4}, 4, {t4}
    v_lshl_add_u32 v{vXR[1]}, {t4}, 4, {t0}
    v_lshl_add_u32 {t0}, {t2}, 3, {t5}
    v_lshlrev_b32 {t0}, 8, {t0}
    v_add_u32 {t0}, {WBUF0}, {t0}
    s_lshl_b32 s34, s{sKH}, 1
    """)
    for sp in range(2):
        a(f"""
    s_add_u32 s35, s34, {sp}
    v_xor_b32 {t1}, s35, {t5}
    v_lshl_add_u32 {t1}, {t1}, 2, {t6}
    v_lshl_add_u32 v{vWR[sp]}, {t1}, 4, {t0}
    """)
    a(f"""
    s_lshl_b32 s35, s{sKH}, 16
    v_lshlrev_b32 {t0}, 8, {t3}
    v_add_u32 {t0}, s35, {t0}
    """)
    for sp in range(4):
        a(f"""
    s_xor_b32 s36, s34, {sp}
    s_lshl_b32 s36, s36, 2
    v_add_u32 {t1}, s36, {t2}
    v_xor_b32 {t1}, {t1}, {t3}
    v_lshl_add_u32 v{vKA[sp]}, {t1}, 4, {t0}
    """)
    a(f"""
    v_lshl_add_u32 {t0}, {t2}, 2, {t5}
    v_lshlrev_b32 {t0}, 8, {t0}
    s_add_u32 s35, s35, 8192
    v_add_u32 {t0}, s35, {t0}
    v_and_b32 {t1}, 1, {t6}
    v_lshl_add_u32 {t0}, {t1}, 3, {t0}
    v_lshrrev_b32 {t1}, 1, {t6}
    v_lshl_add_u32 {t0}, {t1}, 4, {t0}
    v_and_b32 {t1}, 1, {t2}
    v_lshl_add_u32 {t1}, {t1}, 2, {t5}
    s_lshl_b32 s36, s{sKH}, 2
    """)
    for n in range(8):
        a(f"""
    s_xor_b32 s37, s36, {n}
    v_xor_b32 {t4}, s37, {t1}
    v_lshl_add_u32 v{vVA[n]}, {t4}, 5, {t0}
    """)
    a(f"""
    s_mul_i32 s34, s{sWAVE}, 10240
    s_add_u32 s34, s34, {EXQ}
    v_lshlrev_b32 {t0}, 4, {l}
    v_add_u32 v{vE}, s34, {t0}
    s_xor_b32 s35, s{sWAVE}, 2
    s_mul_i32 s35, s35, 10240
    s_add_u32 s35, s35, {EXQ}
    v_add_u32 v{vEP}, s35, {t0}
    """)
    zero_acc(a, keep=False)
    for i in range(4):
        a(f'v_mov_b32 v{vONES+i}, 0x3f803f80')
    for j in range(5):
        for i in range(4):
            a(f'v_mov_b32 v{CI(j)+i}, 0')

def zero_acc(a, keep=True):
    for i in range(100):
        a(f'v_accvgpr_write_b32 a{i}, 0')
    for i in range(32):
        a(f'v_accvgpr_write_b32 a{VF(1,0)+i}, 0')
    for i in range(4):
        a(f'v_mov_b32 v{P(1)+i}, 0')
    if keep:
        for i in range(0, 80, 2):
            a(f'v_pk_mov_b32 {vr(96+i,2)}, 0, 0')

def qfrag_reads(u):
    i9, ks = u // 2, u % 2
    buf, fb = i9 % 3, u % 2
    r = []
    for j in range(5):
        r.append(f'ds_read_b128 {ar(QB(fb, j))}, v{vXR[ks]} offset:{XBUFS*buf + 2048*j}')
    for sp in range(2):
        for t in range(2):
            for h in range(2):
                r.append(f'ds_read_b64_tr_b16 {ar(QA(fb, 2*sp+t)+2*h, 2)}, v{vWR[sp]} offset:{WBUFS*buf + 8192*ks + 1024*h + 8*t}')
    A = r[5:]; B = r[:5]
    return [A[0], A[1], B[0], B[1], B[2], B[3], B[4]] + A[2:]

class VQ:
    def __init__(self): self.q = []
    def add(self, tag): self.q.append(tag)
    def need(self, tags):
        last = -1
        for i, t in enumerate(self.q):
            if t in tags: last = i
        n = len(self.q) - 1 - last
        self.q = self.q[last + 1:]
        return min(n, 63)

T0LATE = int(os.environ.get('T0LATE', '0'))
INIT2 = int(os.environ.get('INIT2', '0'))
def qproj(a, prof):
    q = VQ()
    def tagged(groups, tag): return [(g, tag) for g in groups]
    groups = []
    late = []
    for i9 in range(3):
        pre, grp = chunk_dmas(i9)
        g_ = tagged([pre + grp[0]] + grp[1:], ('C', i9))
        if INIT2 and i9 == 2:
            groups += g_[:INIT2 - 1]; late = g_[INIT2 - 1:]
        else: groups += g_
    td = tile_dmas(0)
    t0 = tagged([[f's_mov_b32 s{sT}, s{sT0}'] + td[0]] + td[1:-1] + [td[-1] + t_adv(0)], ('T', 0))
    if not T0LATE: groups += t0; t0 = []
    tl = []
    if T0LATE in (2, 3):
        tl = t0; t0 = []
        for n_ in (1, 2):
            td = tile_dmas(n_)
            tl += tagged(td[:-1] + [td[-1] + t_adv(n_)], ('T', n_))
    tmp = Asm(); initkv(tmp); init2(tmp)
    fill = [i.text for i in tmp.items]
    per = -(-len(fill) // (len(groups) - FILL0))
    for d, (g, tag) in enumerate(groups):
        for k_, ins in enumerate(g):
            a(ins)
            if 'm0' in ins.split(',')[0]: a('s_nop 0')
            if ins.startswith('buffer'): q.add(tag)
        if d >= FILL0 - 1:
            for ins in fill[:per]: a(ins)
            fill = fill[per:]
        if os.environ.get('PSTAMP') and d in (0, 8, 17, 26): stamp(a, prof)
    assert not fill
    TP = os.environ.get("TPOL", "")
    tch = [[f'buffer_load_dwordx4 {ar(228+4*i)}, v{vTCH}, {sr(sWO)}, s{sTW} offen offset:{1024*i}{TP}'] for i in range(4)]
    tch[3] = tch[3] + [f's_add_u32 s{sTW}, s{sTW}, 4096']
    tch.append([f'buffer_load_dwordx4 a[244:247], v{vTCH}, {sr(sWO)}, s{sTW} offen{TP}'])
    if TB == 4:
        n = -(-TSHARE // 1024); assert n <= 4 and TSHARE % 16 == 0
        nl = (TSHARE - 1024 * (n - 1)) // 16
        a(f"""
    v_mov_b32 v254, {hex(OOB)}
    v_cmp_gt_u32 vcc, {nl}, v{vLANE}
    s_nop 1
    v_cndmask_b32 v254, v254, v{vTCH}, vcc
    """)
        for i in range(n):
            a(f'buffer_load_dwordx4 {ar(228+4*i)}, v{vTCH if i < n - 1 else 254}, {sr(sWO)}, s{sTW} offen offset:{1024*i}{TP}')
            q.add(('X', 0))
    if TB == 3:
        for g in tch:
            for ins in g: a(ins)
            q.add(('X', 0))
    stamp(a, prof)
    a(f's_waitcnt vmcnt({q.need([("C", 0)])})')
    a('s_barrier')
    stamp(a, prof)
    for r in qfrag_reads(0): a(r)
    pend = late
    T_done = [False]
    for u in range(18):
        fb = u % 2
        if u % 2 == 1:
            c = u // 2
            if c + 1 <= 8: a(f's_waitcnt vmcnt({q.need([("C", c + 1)])}) lgkmcnt(0)')
            elif T0LATE == 2: a(f's_waitcnt vmcnt({q.need([("T", 0)])}) lgkmcnt(0)')
            else: a('s_waitcnt lgkmcnt(0)')
            a('s_barrier')
            if u in (1, 17): stamp(a, prof)
            assert not pend or (INIT2 and u == 1)
            if c + 3 <= 8:
                pre, grp = chunk_dmas(c + 3)
                pend = pend + tagged([pre + grp[0]] + grp[1:], ('C', c + 3))
                if c >= 2 and t0:
                    sl = t0[:3]; t0 = t0[3:]
                    n0 = 8 - len(t0) - len(sl)
                    g0, tg = sl[0]
                    if not any('m0' in x.split(',')[0] for x in g0):
                        g0 = [f's_add_u32 m0, s{sM0K}, {0 if n0 < 4 else 8192}'] + g0
                    pend += [(g0, tg)] + sl[1:]
            elif T0LATE == 4:
                if u == 17: pend = tagged(tile_dmas(1) + [t_adv(1)], ('T', 1))
            elif c + 3 == 9 and T0LATE < 2:
                pend = tagged(tile_dmas(1) + [t_adv(1)], ('T', 1))
                if TB == 1: pend += tagged(tch[:3], ('X', 0))
            elif c + 3 == 10 and T0LATE < 2:
                pend = tagged(tile_dmas(2) + [t_adv(2)], ('T', 2))
                if TB == 1: pend = tagged(tch[3:], ('X', 0)) + pend
            elif u == 17 and TB == 2:
                pend = tagged(tch, ('X', 0))
            if tl and c >= 5:
                n_ = min(len(tl), 12 - len(pend))
                pend += tl[:n_]; tl = tl[n_:] or []
                if not tl: tl = []; T_done[0] = True
        else:
            a('s_waitcnt lgkmcnt(0)')
        mf = []
        for t in range(4):
            for j in range(5):
                c_ = '0' if u == 0 else vr(QACC(j, t))
                mf.append(f'{MF} {vr(QACC(j,t))}, {ar(QA(fb,t))}, {ar(QB(fb,j))}, {c_}')
        fills = {}
        reads = qfrag_reads(u + 1) if u < 17 else []
        g = 0
        while reads:
            fills.setdefault(g, []).extend(reads[:2]); reads = reads[2:]; g += 1
        g = 7
        nmax = 6 if u % 2 == 1 else 99
        if T0LATE == 4 and u == 17: g, nmax = 1, 99
        cnt = 0
        while pend and g < 19 and cnt < nmax:
            grp, tag = pend.pop(0)
            bi = [n for n, x in enumerate(grp) if x.startswith('buffer')]
            if bi:
                fills.setdefault(g, []).extend(grp[:bi[0]])
                fills.setdefault(g + 1, []).extend(grp[bi[0]:])
                q.add(tag)
                g += 2
            else:
                fills.setdefault(g, []).extend(grp); g += 1
            cnt += 1
        if u % 2 == 0 and not (INIT2 and u == 0): assert not pend, (u, pend)
        interleave(a, mf, fills)
    assert not pend and not t0
    assert q.need([('T', 1)]) == (0 if T0LATE == 4 else 13 if TB in (1, 2) else 8)

def qfin(a, prof):
    stamp(a, prof)
    a(f's_mov_b32 s34, {hex(QSCALE)}')
    a(f's_mov_b32 s35, {hex(QSCALE)}')
    if T0LATE != 3:
        for r in k_reads(0, 0) + v_reads(0, 0): a(r)
    for j in range(5):
        for t in range(4):
            for i in (0, 2):
                a(f'v_pk_mul_f32 {vr(QACC(j,t)+i,2)}, {vr(QACC(j,t)+i,2)}, s[34:35]')
        for sp in range(2):
            for t in range(2):
                b = QACC(j, 2*sp + t)
                a(f'v_cvt_pk_bf16_f32 v{Q(j,sp)+2*t}, v{b}, v{b+1}')
                a(f'v_cvt_pk_bf16_f32 v{Q(j,sp)+2*t+1}, v{b+2}, v{b+3}')
        for sp in range(2):
            a(f'ds_write_b128 v{vE}, {vr(Q(j,sp))} offset:{(j*2+sp)*1024}')
    for i in range(0, 48, 2):
        a(f'v_pk_mov_b32 {vr(96+i,2)}, 0, 0')
    a('s_waitcnt lgkmcnt(0)' if T0LATE == 4 else f's_waitcnt vmcnt({13 if TB in (1, 2) else 8}) lgkmcnt(0)')
    a('s_barrier')
    t2 = tile_dmas(2) + [t_adv(2)] if T0LATE == 4 else []
    if T0LATE == 3:
        for r in k_reads(0, 0): a(r)
    for j in range(5):
        for sp in range(2):
            a(f'ds_read_b128 {vr(Q(j,2+sp))}, v{vEP} offset:{(j*2+sp)*1024}')
        if t2: emit_groups(a, t2[:1]); t2 = t2[1:]
    if T0LATE == 3:
        for r in v_reads(0, 0): a(r)
    for i in range(48, 80, 2):
        a(f'v_pk_mov_b32 {vr(96+i,2)}, 0, 0')
        if t2 and i % 8 == 2: emit_groups(a, t2[:1]); t2 = t2[1:]
    assert not t2
    if FUSED == 3:
        import tail3
        tail3.tile_part1(a)
    if FUSED == 4:
        import tail4
        tail4.tile_part1(a)
    if T0LATE == 4:
        a('s_waitcnt vmcnt(8) lgkmcnt(8)')
        a('s_barrier')
    else:
        a('s_waitcnt lgkmcnt(8)')

def k_reads(buf, slot):
    return [f'ds_read_b128 {ar(KF(buf,kb,ds))}, v{vKA[ds]} offset:{slot*16384 + kb*4096}' for kb in range(2) for ds in range(4)]
def v_reads(buf, slot):
    return [f'ds_read_b64_tr_b16 {ar(VF(buf,n)+2*h, 2)}, v{vVA[n]} offset:{slot*16384 + h*4096}' for n in range(8) for h in range(2)]
def qk_mf(j, kbuf, sbuf, cinit=True):
    m = []
    order = [(kb, ds) for kb in range(2) for ds in range(4)]
    if 'il' in XP: order = [(kb, ds) for ds in range(4) for kb in range(2)]
    for kb, ds in order:
        c = (vr(CI(j)) if cinit and 'c0' not in XP else '0') if ds == 0 else vr(S(sbuf, kb))
        m.append(f'{MF} {vr(S(sbuf,kb))}, {ar(KF(kbuf,kb,ds))}, {vr(Q(j,ds))}, {c}')
    return m
def pv_mf(j, vbuf, pbuf):
    m = [f'{MF} {ar(LS(j))}, {vr(vONES)}, {vr(P(pbuf))}, {ar(LS(j))}']
    for n in range(8):
        m.append(f'{MF} {OREG(j,n)}, {ar(VF(vbuf,n))}, {vr(P(pbuf))}, {OREG(j,n)}')
    return m

def pre_loop(a, prof):
    a.label('L_attn0')
    stamp(a, prof)
    mf = qk_mf(0, 0, 0)
    kr = k_reads(1, 1)
    td = tile_dmas(3)
    fills = {}
    for i in range(8):
        fills[i] = [kr[i]]
    interleave(a, mf, fills)
    a('s_waitcnt lgkmcnt(8)')
    a('s_barrier')
    emit_groups(a, td)
    for x in t_adv(3): a(x)
    a(f's_mov_b32 s{sL}, 0')
    if SWAP:
        a(f's_and_b32 s34, s{sHQ}, 1')
        a('s_cmp_eq_u32 s34, 1')
        a('s_cbranch_scc1 L_loopB')

SWAP = int(os.environ.get('SWAP', 0))
def step(a, t, mode='loop', extra=None, tdx=None, bar=None, swap=False):
    extra = extra or {}
    td = tdx or tile_dmas(t % 4)
    if swap: td = td[4:] + td[:4]
    vreads = v_reads((t + 1) & 1, (t + 1) % 4)
    kreads = k_reads(t & 1, (t + 2) % 4)
    for j in range(5):
        pn = (t + j) & 1
        if j < 4: qk = qk_mf(j + 1, t & 1, (pn + 1) & 1)
        else: qk = qk_mf(0, (t + 1) & 1, (pn + 1) & 1)
        if j == 0: pv = pv_mf(4, (t - 1) & 1, (pn + 1) & 1)
        else: pv = pv_mf(j - 1, t & 1, (pn + 1) & 1)
        if mode == 'p31' and j == 4:
            fills = {g: [] for g in range(9)}
            for e in range(8):
                reg = S(pn, e // 4) + (e % 4)
                fills[e].append(f'v_exp_f32 v{reg}, v{reg}')
            for g, l_ in extra.get(j, {}).items(): fills[g] += l_
            interleave(a, pv, fills)
            for c in range(4):
                b = S(pn, c // 2) + 2 * (c % 2)
                a(f'v_cvt_pk_bf16_f32 v{P(pn)+c}, v{b}, v{b+1}')
            continue
        mf = qk + pv
        fills = {g: [] for g in range(17)}
        for e in range(8):
            reg = S(pn, e // 4) + (e % 4)
            fills[2 * e].append(f'v_exp_f32 v{reg}, v{reg}')
        cv = []
        for c in range(4):
            b = S(pn, c // 2) + 2 * (c % 2)
            cv.append(f'v_cvt_pk_bf16_f32 v{P(pn)+c}, v{b}, v{b+1}')
        free2 = [1, 5, 9, 13, 16]
        free1 = [3, 7, 11, 15]
        rd = []
        if j in (1, 2): rd = [vreads.pop(0) for _ in range(6)]
        elif j == 3: rd = [vreads.pop(0) for _ in range(4)]
        elif j == 4: rd = list(kreads)
        if mode == 'p31' or (mode == 'p30' and j == 4): rd = []
        order = [(1, 2), (3, 1), (5, 2), (7, 1), (9, 2)]
        for g, k in order:
            for _ in range(k):
                if rd: fills[g].append(rd.pop(0))
        assert not rd
        for c, g in enumerate(free1):
            fills[g].append(cv[c])
        if mode != 'loop':
            if tdx and j < 4:
                d0 = td[2 * j]; d1 = td[2 * j + 1]
                n0 = [n for n, x in enumerate(d0) if x.startswith('buffer')][0]
                n1 = [n for n, x in enumerate(d1) if x.startswith('buffer')][0]
                gA, gB = (13, 16) if j < 3 else (9, 13)
                fills[11 if j < 3 else 7] += d0[:n0]
                fills[gA] += d0[n0:]; fills[gB] += d1[n1:]
                assert n1 == 0
            if bar and j == 3: fills[16] += bar
            for g, l_ in extra.get(j, {}).items(): fills[g] += l_
            interleave(a, mf, fills)
            continue
        if j < 4:
            d0 = td[2 * j]; d1 = td[2 * j + 1]
            if len(d0) == 2:
                fills[11].append(d0[0])
            gA, gB = (13, 16) if j < 3 else (9, 13)
            fills[gA].append(d0[-1]); fills[gB].append(d1[-1])
        if j == 3:
            fills[16] += [f's_waitcnt vmcnt({17 if (LTOUCH and t in (1, 2)) else 16}) lgkmcnt(0)', 's_barrier']
        if j == 4:
            ta = t_adv(t)
            fills[11 if (KROT or PAIR) else 13].append(ta[0])
            fills[13] += ta[1:]
            if LTOUCH and t == 0:
                fills[15].append(f's_mov_b32 m0, {TOUCH_LDS}')
                fills[16].append(f'buffer_load_dwordx4 v{vTCH}, {sr(sWO)}, s{sTW} offen{os.environ.get("TPOL", "")} lds')
            if LTOUCH and t == 1:
                fills[15].append(f's_add_u32 s{sTW}, s{sTW}, {672 if FUSED == 4 else 576}')
            if FUSED == 3 and t == 1:
                fills[16] += [f's_cmp_eq_u32 s{sL}, 7', 's_cbranch_scc1 L_peel']
        for g in fills:
            if 'nobar' in XP: fills[g] = [x for x in fills[g] if x != 's_barrier']
            if 'nodma' in XP: fills[g] = [x for x in fills[g] if not x.startswith('buffer_load')]
            if 'noexp' in XP: fills[g] = [x for x in fills[g] if not x.startswith('v_exp')]
            if 'nords' in XP: fills[g] = [x for x in fills[g] if not x.startswith('ds_read')]
            if 'nocvt' in XP: fills[g] = [x for x in fills[g] if not x.startswith('v_cvt')]
            if 'nowait' in XP: fills[g] = [x for x in fills[g] if not x.startswith('s_waitcnt')]
        if 'nols' in XP: mf = [m for n, m in enumerate(mf) if n != 8]
        interleave(a, mf, fills)

def loop(a):
    a.label('L_loop')
    for t in range(4): step(a, t)
    if FUSED == 4:
        a(f"""
    s_add_u32 s{sL}, s{sL}, 1
    s_cmp_lt_u32 s{sL}, 7
    s_cbranch_scc1 L_loop
    """)
        return
    a(f"""
    s_add_u32 s{sL}, s{sL}, 1
    s_cmp_eq_u32 s{sL}, 7
    s_cselect_b32 s{sT}, {hex(OOB)}, s{sT}
    """)
    if FUSED == 3:
        a('s_branch L_loop')
    else:
        a(f"""
    s_cmp_lt_u32 s{sL}, 8
    s_cbranch_scc1 L_loop
    """)

def loopB(a):
    if not SWAP: return
    assert FUSED == 4
    a.label('L_loopB')
    for t in range(4): step(a, t, swap=True)
    a(f"""
    s_add_u32 s{sL}, s{sL}, 1
    s_cmp_lt_u32 s{sL}, 7
    s_cbranch_scc1 L_loopB
    s_branch L_tail
    """)

def final_pv(a):
    if FUSED in (3, 4): return
    for m in pv_mf(4, 1, 1): a(m)

def epilogue(a, prof):
    if FUSED == 2:
        import tail2
        return tail2.gen(a, prof)
    if FUSED == 3:
        import tail3
        return tail3.gen(a, prof)
    if FUSED == 4:
        import tail4
        return tail4.gen(a, prof)
    t = [f'v{x}' for x in vT]
    l = f'v{vLANE}'
    stamp(a, prof)
    a('s_nop 7')
    for j in range(5):
        a(f'v_accvgpr_read_b32 {t[j]}, a{LS(j)}')
    a(f"""
    v_mov_b32 {t[5]}, 0x33800000
    v_mov_b32 {t[6]}, 0x4e800000
    s_mov_b64 s[36:37], 0
    """)
    for j in range(5):
        a(f'v_cmp_nge_f32 vcc, {t[j]}, {t[5]}')
        a(f's_or_b64 s[36:37], s[36:37], vcc')
        a(f'v_cmp_nle_f32 vcc, {t[j]}, {t[6]}')
        a(f's_or_b64 s[36:37], s[36:37], vcc')
    a(f"""
    s_cmp_lg_u64 s[36:37], 0
    s_cselect_b32 s38, 1, 0
    v_mov_b32 {t[5]}, s38
    s_lshl_b32 s34, s{sWAVE}, 2
    s_add_u32 s34, s34, {EXF}
    v_mov_b32 {t[6]}, s34
    ds_write_b32 {t[6]}, {t[5]}
    s_mul_i32 s34, s{sWAVE}, 1280
    s_add_u32 s34, s34, {EXF+256}
    v_lshlrev_b32 {t[7]}, 2, {l}
    v_add_u32 {t[6]}, s34, {t[7]}
    """)
    for j in range(5):
        a(f'ds_write_b32 {t[6]}, {t[j]} offset:{256*j}')
    a(f"""
    s_xor_b32 s35, s{sWAVE}, 2
    s_mul_i32 s34, s35, 1280
    s_add_u32 s34, s34, {EXF+256}
    v_add_u32 {t[7]}, s34, {t[7]}
    v_mov_b32 {t[8]}, {EXF}
    s_waitcnt vmcnt(0) lgkmcnt(0)
    s_barrier
    ds_read_b128 v[{S(0,0)}:{S(0,0)+3}], {t[8]}
    """)
    for j in range(5):
        a(f'ds_read_b32 v{S(1,0)+j}, {t[7]} offset:{256*j}')
    a(f"""
    s_mul_i32 s34, s{sWAVE}, 20480
    v_lshlrev_b32 {t[9]}, 4, {l}
    v_add_u32 {t[6]}, s34, {t[9]}
    s_mul_i32 s34, s35, 20480
    v_add_u32 {t[7]}, s34, {t[9]}
    """)
    for j in range(5):
        for n in range(4):
            a(f'ds_write_b128 {t[6]}, {ar(OSEND(j,4+n))} offset:{(j*4+n)*1024}')
        if j == 0:
            a('s_waitcnt lgkmcnt(4)')
            b = S(0, 0)
            a(f"""
    v_or_b32 v{b}, v{b}, v{b+1}
    v_or3_b32 v{b}, v{b}, v{b+2}, v{b+3}
    s_nop 0
    v_readfirstlane_b32 s38, v{b}
    s_xor_b32 s39, s{sFB}, 1
    s_and_b32 s38, s38, s39
    s_cmp_lg_u32 s38, 0
    s_cbranch_scc1 L_fallback
    """)
            for jj in range(5):
                a(f'v_add_f32 {t[jj]}, {t[jj]}, v{S(1,0)+jj}')
            for jj in range(5):
                a(f'v_rcp_f32 {t[jj]}, {t[jj]}')
    a('s_waitcnt lgkmcnt(0)')
    a('s_barrier')
    for j in range(5):
        for n in range(4):
            a(f'ds_read_b128 {vr(Q(j,n))}, {t[7]} offset:{(j*4+n)*1024}')
    a(f"""
    s_mul_i32 s34, s{sB}, 10
    s_mul_i32 s35, s{sR}, 5
    s_add_u32 s34, s34, s35
    s_lshl_b32 s34, s34, 7
    s_lshl_b32 s35, s{sHQ}, 2
    s_add_u32 s34, s34, s35
    s_lshl_b32 s35, s{sKH}, 1
    s_add_u32 s34, s34, s35
    s_lshl_b32 s34, s34, 10
    """)
    for j in range(5):
        a(f's_waitcnt lgkmcnt({min(12, 16-4*j)})')
        for n in range(4):
            for i in range(4):
                a(f'v_add_f32 v{OKEEP(j,n)+i}, v{OKEEP(j,n)+i}, v{Q(j,n)+i}')
        for n in range(4):
            for i in range(4):
                a(f'v_mul_f32 v{OKEEP(j,n)+i}, {t[j]}, v{OKEEP(j,n)+i}')
        for u in range(2):
            for hh in range(2):
                b = OKEEP(j, 2*u + hh)
                a(f'v_cvt_pk_bf16_f32 v{Q(j,u)+2*hh}, v{b}, v{b+1}')
                a(f'v_cvt_pk_bf16_f32 v{Q(j,u)+2*hh+1}, v{b+2}, v{b+3}')
        if j > 0: a(f's_add_u32 s34, s34, {128*1024}')
        for u in range(2):
            a(f'buffer_store_dwordx4 {vr(Q(j,u))}, {t[9]}, {sr(sO)}, s34 offen offset:{1024*u}' + (' sc1' if FUSED else ''))
    if FUSED:
        import tail
        tail.gen_tail(a, prof)
    elif prof:
        a('s_waitcnt vmcnt(0)')
        stamp(a, prof)
        dump_stamps(a, t[0])
    a('s_branch L_k1_end')

def dump_dbg(a, tv):
    sel = [int(x) for x in os.environ['DBGP'].split(',')]
    slots = [1, 2, 3, 4, 5, 6, 7, 9, 10, 11, 12, 13, 14, 15]
    a(f's_cmp_lg_u32 s{sWAVE}, 0')
    a('s_cbranch_scc1 L_k1_end')
    a(f's_cmp_lg_u32 s2, {os.environ.get("DBGW", "100")}')
    a('s_cbranch_scc1 L_k1_end')
    a('s_mov_b64 exec, 1')
    a(f'v_mov_b32 {tv}, 0')
    for n, k in enumerate(sel):
        a(f's_sub_u32 s34, s{60+2*k}, s60')
        a(f'v_mov_b32 v{201+n}, s34')
        a(f'buffer_store_dword v{201+n}, {tv}, s[92:95], 0 offen offset:{4*slots[n]}')

def dump_stamps(a, tv):
    if os.environ.get('DBGP'): return dump_dbg(a, tv)
    if True:
        a('s_memrealtime s[98:99]')
        a('s_waitcnt lgkmcnt(0)')
        a(f"""
    s_lshl_b32 s34, s2, 2
    s_add_u32 s34, s34, s{sWAVE}
    s_lshl_b32 s34, s34, 7
    s_add_u32 s34, s34, 0x1000000
    s_mov_b32 s{sO+2}, 0x2000000
    v_mov_b32 {tv}, s34
    """)
        for k in range(NSTAMP[0]):
            a(f's_sub_u32 s35, s{60+2*k}, s60')
            a(f'v_mov_b32 v{200+k}, s35')
            a(f'buffer_store_dword v{200+k}, {tv}, {sr(sO)}, 0 offen offset:{4*k}')
        a('v_mov_b32 v230, s96')
        a('v_mov_b32 v231, s98')
        a(f'buffer_store_dword v230, {tv}, {sr(sO)}, 0 offen offset:120')
        a(f'buffer_store_dword v231, {tv}, {sr(sO)}, 0 offen offset:124')

def fallback(a):
    t = [f'v{x}' for x in vT]
    l = f'v{vLANE}'
    a.label('L_fallback')
    a('s_waitcnt vmcnt(0) lgkmcnt(0)')
    a('s_barrier')
    for j in range(5):
        a(f'v_mov_b32 {t[j]}, 0xff800000')
    a(f's_sub_u32 s{sT}, s{sTE}, 262144')
    a(f's_mov_b32 s{sL}, 0')
    a.label('L_fb_loop')
    a(f's_mov_b32 m0, s{sM0K}')
    a('s_nop 0')
    for j in range(4):
        a(f'buffer_load_dwordx4 v{vKD[j]}, {sr(sK)}, s{sT} offen offset:{1024*j} lds')
    a('s_waitcnt vmcnt(0)')
    a('s_barrier')
    for r in k_reads(0, 0): a(r)
    a('s_waitcnt lgkmcnt(0)')
    a('s_barrier')
    for j in range(5):
        for m in qk_mf(j, 0, 0, cinit=False): a(m)
        a('s_nop 7')
        b0, b1 = S(0, 0), S(0, 1)
        a(f'v_max3_f32 {t[j]}, {t[j]}, v{b0}, v{b0+1}')
        a(f'v_max3_f32 {t[j]}, {t[j]}, v{b0+2}, v{b0+3}')
        a(f'v_max3_f32 {t[j]}, {t[j]}, v{b1}, v{b1+1}')
        a(f'v_max3_f32 {t[j]}, {t[j]}, v{b1+2}, v{b1+3}')
    a(f"""
    s_add_u32 s{sT}, s{sT}, 8192
    s_add_u32 s{sL}, s{sL}, 1
    s_cmp_lt_u32 s{sL}, 32
    s_cbranch_scc1 L_fb_loop
    """)
    a(f"""
    s_mul_i32 s34, s{sWAVE}, 1280
    s_add_u32 s34, s34, {EXF}
    v_lshlrev_b32 {t[7]}, 2, {l}
    v_add_u32 {t[6]}, s34, {t[7]}
    """)
    for j in range(5):
        a(f'ds_write_b32 {t[6]}, {t[j]} offset:{256*j}')
    a(f"""
    s_waitcnt lgkmcnt(0)
    s_barrier
    v_and_b32 {t[7]}, 15, {l}
    v_lshlrev_b32 {t[7]}, 2, {t[7]}
    s_mul_i32 s34, s{sR}, 1280
    s_add_u32 s34, s34, {EXF}
    v_add_u32 {t[7]}, s34, {t[7]}
    """)
    for j in range(5):
        regs = [S(0,0)+i for i in range(8)]
        k = 0
        for kh in range(2):
            for g in range(4):
                a(f'ds_read_b32 v{regs[k]}, {t[7]} offset:{kh*2560 + j*256 + g*64}')
                k += 1
        a('s_waitcnt lgkmcnt(0)')
        a(f'v_max3_f32 {t[8]}, v{regs[0]}, v{regs[1]}, v{regs[2]}')
        a(f'v_max3_f32 {t[8]}, {t[8]}, v{regs[3]}, v{regs[4]}')
        a(f'v_max3_f32 {t[8]}, {t[8]}, v{regs[5]}, v{regs[6]}')
        a(f'v_max_f32 {t[8]}, {t[8]}, v{regs[7]}')
        for i in range(4):
            a(f'v_sub_f32 v{CI(j)+i}, 0, {t[8]}')
    zero_acc(a, keep=True)
    a(f's_mov_b32 s{sFB}, 1')
    if FUSED == 3:
        import tail3
        a(f's_mul_i32 s{tail3.sBo}, s{sWAVE}, 1179648')
    if FUSED == 4:
        import tail4
        a(f's_mov_b32 s{tail4.sBo}, s{tail4.sBoI}' if tail4.OROT else f's_mul_i32 s{tail4.sBo}, s{sWAVE}, 1179648')
    a(f's_mov_b32 s{sT}, s{sT0}')
    a('s_barrier')
    for slot in range(3):
        emit_groups(a, tile_dmas(slot))
        for x in t_adv(slot): a(x)
    a('s_waitcnt vmcnt(8)')
    a('s_barrier')
    for r in k_reads(0, 0) + v_reads(0, 0): a(r)
    a('s_waitcnt lgkmcnt(0)')
    a('s_branch L_attn0')

def gen_k1(prof=False):
    NSTAMP[0] = 0
    segs = {}
    def seg(name, f, *args):
        x = Asm(); f(x, *args); segs[name] = x; return x
    seg('init', init, prof)
    seg('qproj', qproj, prof)
    seg('qfin', qfin, prof)
    seg('pre', pre_loop, prof)
    seg('loop', loop)
    seg('fin', final_pv)
    seg('epi', epilogue, prof)
    seg('fb', fallback)
    seg('loopB', loopB)
    order = ['init', 'qproj', 'qfin', 'pre', 'loop', 'fin', 'epi', 'fb', 'loopB']
    return segs, order
```

```python
import os
from asmlib import Asm
import k1
from k1 import (vr, ar, sr, MF, sWAVE, sB, sO, sWO, sR, sKH, sHQ, sFB, vLANE, stamp, vT, LS, S, P, Q, OKEEP, OSEND, CI,
                step, pv_mf, interleave, vONES, VF, OREG)
sOUT, sDBG = 56, 92
sMT, sNT, sA, sBo, sM0 = 40, 41, 42, 43, 44
sXA, sXB = 45, 46
NWG = 243
MAP = os.environ.get('MAP', 'C')
DO = int(os.environ.get('DO', 5))
OLF = os.environ.get('OLF', ' sc1')
WPOL = os.environ.get('WPOL', '')
OROT = int(os.environ.get('OROT', 0))
sBoS, sBoE, sAS, sAE, sBoI, sRO = 60, 61, 62, 63, 64, 65
WFIRST = int(os.environ.get('WFIRST', 0))
NREG = 22
K_ = 1024
ASL = [0, 16*K_, 64*K_, 80*K_]
XSL = [32*K_, 48*K_, 96*K_, 112*K_, 128*K_, 144*K_]
A0, A1, A2, A3 = ASL
X0, X1, X2, X3, X4, X5 = XSL
SLOT = [A0, A2, A1, A3, X0, X2, A0, A2, A1, A3, A0, A2, A1, A3, A0, A2, A1, X0, X1, X2, X3, X4, X5,
        A3, A0, A2, A1, X0, X1, X2, X3, X4]
def slot(k): return SLOT[k]
assert len(set(SLOT[22:])) == 10
EXA = [48*K_, 112*K_, 128*K_, 140*K_]
EXB = [32*K_, 40*K_, 96*K_, 104*K_]
EXL = 152*K_
vWO = [3, 4, 5, 6]; vO = [7, 8, 9]; T = [10, 11, 12, 13, 14, 15]
vSA, vSB, vL16 = 7, 8, 9
vPA, vPB, vPL, vFL = 252, 253, 254, 251
vPOLL = 1
RDE = [10, 11, 12, 13, 14, 15, 242, 243]
def vRD(base, nb, early=False): return RDE[base * 4 + nb] if early else 16 + base * 4 + nb
def ACC(nb, mb): return 28 + (nb * 3 + mb) * 4
def OR(slot_, mb): return 76 + (slot_ * 3 + mb) * 4
assert 76 + DO * 12 <= 160
def WR(k, nb):
    tab = {0: 228, 1: 100, 2: 116, 4: 164, 5: 180, 3: 132, 6: 148, 7: 212, 8: 196, 9: 0, 10: 16, 11: 32, 12: 48, 13: 64, 14: 80}
    if k in tab: return ('a', tab[k] + nb * 4)
    if k == 15: return ('a', [96, 244, 248, 252][nb])
    if k < NREG: return ('v', 160 + (k - 16) * 16 + nb * 4)
    return WR(k & 1, nb)
def rtxt(r, n=4, off=0): return f'{r[0]}[{r[1]+off}:{r[1]+off+n-1}]'

def sel4(a, dst, vals):
    a(f's_mov_b32 s{dst}, {vals[0]}')
    for w in range(1, 4):
        a(f's_cmp_eq_u32 s{sWAVE}, {w}')
        a(f's_cselect_b32 s{dst}, {vals[w]}, s{dst}')

def tile_part1(a):
    t = [f'v{x}' for x in vT]
    l = f'v{vLANE}'
    a(f"""
    s_and_b32 s34, s2, 7
    s_lshr_b32 s35, s2, 3
    s_mul_i32 s36, s34, 30
    s_min_u32 s37, s34, 3
    s_add_u32 s36, s36, s37
    s_add_u32 s36, s36, s35
    """)
    if MAP == 'B':
        a(f"""
    s_mul_i32 s37, s36, 7282
    s_lshr_b32 s{sMT}, s37, 16
    s_mul_i32 s38, s{sMT}, 9
    s_sub_u32 s{sNT}, s36, s38
    """)
    elif MAP == 'C':
        a(f"""
    s_lshr_b32 s{sMT}, s36, 2
    s_and_b32 s{sNT}, s36, 3
    s_sub_u32 s37, s36, 108
    s_mul_i32 s38, s37, 13108
    s_lshr_b32 s38, s38, 16
    s_mul_i32 s39, s38, 5
    s_sub_u32 s39, s37, s39
    s_add_u32 s39, s39, 4
    s_cmp_ge_u32 s36, 108
    s_cselect_b32 s{sMT}, s38, s{sMT}
    s_cselect_b32 s{sNT}, s39, s{sNT}
    """)
    else:
        a(f"""
    s_mul_i32 s37, s36, 811
    s_lshr_b32 s37, s37, 16
    s_mul_i32 s38, s37, 81
    s_sub_u32 s38, s36, s38
    s_mul_i32 s39, s38, 171
    s_lshr_b32 s{sMT}, s39, 9
    s_mul_i32 s39, s{sMT}, 3
    s_sub_u32 s39, s38, s39
    s_mul_i32 s37, s37, 3
    s_add_u32 s{sNT}, s37, s39
    """)
    if OROT:
        a(f"""
    s_lshl_b32 s34, s{sNT}, 3
    s_sub_u32 s35, s{sNT}, 4
    s_mul_i32 s35, s35, 13
    s_lshr_b32 s35, s35, 1
    s_cmp_lt_u32 s{sNT}, 4
    s_cselect_b32 s{sRO}, s34, s35
    s_and_b32 s{sRO}, s{sRO}, 31
    s_mul_i32 s{sBoS}, s{sWAVE}, 1179648
    s_add_u32 s{sBoE}, s{sBoS}, 1179648
    s_mul_i32 s34, s{sRO}, 36864
    s_add_u32 s{sBoI}, s{sBoS}, s34
    """)
    a(f"""
    {f's_mov_b32 s{sBo}, s{sBoI}' if OROT else f's_mul_i32 s{sBo}, s{sWAVE}, 1179648'}
    s_lshl_b32 s{sM0}, s{sWAVE}, 12
    s_lshl_b32 s34, s{sNT}, 7
    v_lshrrev_b32 {t[0]}, 3, {l}
    v_mul_u32_u24 {t[0]}, 1152, {t[0]}
    v_add_u32 {t[0]}, s34, {t[0]}
    v_lshrrev_b32 {t[1]}, 4, {l}
    v_lshlrev_b32 {t[1]}, 1, {t[1]}
    v_and_b32 {t[2]}, 7, {l}
    v_xor_b32 {t[1]}, {t[1]}, {t[2]}
    v_lshl_add_u32 v{vWO[0]}, {t[1]}, 4, {t[0]}
    """)
    for p in range(1, 4):
        a(f'v_add_u32 v{vWO[p]}, {p*(8*1152-1024)}, v{vWO[0]}')
    a(f'v_lshlrev_b32 v{vL16}, 4, {l}')
    sel4(a, sXA, EXA); sel4(a, sXB, EXB)
    a(f'v_add_u32 v{vSA}, s{sXA}, v{vL16}')
    a(f'v_add_u32 v{vSB}, s{sXB}, v{vL16}')
    rd_addr(a, True)

def rd_addr(a, early):
    t = [f'v{x}' for x in vT[5:8]]
    l = f'v{vLANE}'
    a(f"""
    v_lshrrev_b32 {t[0]}, 4, {l}
    v_lshrrev_b32 {t[1]}, 2, {l}
    v_and_b32 {t[1]}, 3, {t[1]}
    v_lshl_add_u32 {t[0]}, {t[0]}, 2, {t[1]}
    v_lshrrev_b32 {t[1]}, 1, {t[0]}
    v_and_b32 {t[1]}, 3, {t[1]}
    v_lshlrev_b32 {t[0]}, 7, {t[0]}
    v_add_u32 {t[0]}, s{sM0}, {t[0]}
    v_and_b32 {t[2]}, 1, {l}
    v_lshl_add_u32 {t[0]}, {t[2]}, 3, {t[0]}
    v_lshrrev_b32 {t[2]}, 1, {l}
    v_and_b32 {t[2]}, 1, {t[2]}
    v_lshl_add_u32 {t[0]}, {t[2]}, 4, {t[0]}
    """)
    for nb in range(4):
        a(f'v_xor_b32 {t[2]}, {nb}, {t[1]}')
        a(f'v_lshl_add_u32 v{vRD(0,nb,early)}, {t[2]}, 5, {t[0]}')
        a(f'v_add_u32 v{vRD(1,nb,early)}, 65536, v{vRD(0,nb,early)}')

def tile_part2(a):
    t = [f'v{x}' for x in T]
    l = f'v{vLANE}'
    for nb in range(4):
        a(f'v_mov_b32 v{vRD(0,nb)}, v{vRD(0,nb,True)}')
        a(f'v_mov_b32 v{vRD(1,nb)}, v{vRD(1,nb,True)}')
        a(f'v_add_u32 v{vRD(2,nb)}, 65536, v{vRD(1,nb,True)}')
    a(f"""
    s_mul_i32 s34, s{sMT}, {3*131072}
    s_lshl_b32 s35, s{sWAVE}, 15
    s_add_u32 s{sA}, s34, s35
    {f'''s_mov_b32 s{sAS}, s{sA}
    s_add_u32 s{sAE}, s{sA}, 32768
    s_lshl_b32 s34, s{sRO}, 10
    s_add_u32 s{sA}, s{sA}, s34''' if OROT else ''}
    v_add_u32 v{vO[1]}, 131072, v{vL16}
    v_add_u32 v{vO[2]}, 262144, v{vL16}
    v_mov_b32 v{vO[0]}, v{vL16}
    """)
    a.items[-1], a.items[-2] = a.items[-2], a.items[-1]
    a(f"""
    s_mul_i32 s34, s{sMT}, 48
    s_mul_i32 s35, s34, 52429
    s_lshr_b32 s35, s35, 23
    s_add_u32 s34, s34, 47
    s_min_u32 s34, s34, 1279
    s_mul_i32 s36, s34, 52429
    s_lshr_b32 s36, s36, 23
    s_lshl_b32 s35, s35, 5
    s_lshl_b32 s36, s36, 5
    v_mov_b32 {t[0]}, s35
    v_mov_b32 {t[1]}, s36
    v_cmp_eq_u32 vcc, 1, {l}
    s_nop 1
    v_cndmask_b32 v{vPOLL}, {t[0]}, {t[1]}, vcc
    """)

def wv(tag, l0=False): return f's_waitcnt vmcnt(63) ; @wv {tag}' + (' +l0' if l0 else '')
def wl(tag): return f's_waitcnt lgkmcnt(15) ; @wl {tag}'
def resolve(a, start, vq):
    from asmlib import Ins, parse_wait
    import re
    vq = list(vq); vq0 = list(vq); lq = []; tmp = None
    out = []
    def need(q, tag, cap):
        idx = [i for i, t in enumerate(q) if t == tag]
        if not idx: return None
        n = len(q) - 1 - idx[-1]
        del q[:idx[-1] + 1]
        return min(n, cap)
    for it in a.items[start:]:
        if not isinstance(it, Ins):
            out.append(it); continue
        txt = it.text
        cm = txt.split(';', 1)[1].strip() if ';' in txt else ''
        tag = None
        m = re.search(r'#(\S+)', cm)
        if m: tag = m.group(1)
        if cm.startswith('@wvt'):
            if cm.split()[1] == 'begin':
                tmp = list(vq0); continue
            n = need(tmp, cm.split()[1], 63)
            out.append(Ins(f's_waitcnt vmcnt({n})')); continue
        if cm.startswith('@wv'):
            n = need(vq, cm.split()[1], 63)
            if n is not None: del vq0[:max(0, len(vq0) - n)]
            l0 = '+l0' in cm
            if l0: lq.clear()
            if n is None and not l0: continue
            out.append(Ins('s_waitcnt ' + (f'vmcnt({n}) ' if n is not None else '') + ('lgkmcnt(0)' if l0 else ''))); continue
        if cm.startswith('@wl'):
            n = need(lq, cm.split()[1], 14)
            if n is None: continue
            out.append(Ins(f's_waitcnt lgkmcnt({n})')); continue
        if cm.startswith('@nostores'):
            assert not any(t.startswith('S') for t in vq), vq
            continue
        if it.cls == 'wait' and '@keep' not in cm:
            vm, lg = parse_wait(it)
            if vm is not None:
                del vq[:max(0, len(vq) - vm)]; del vq0[:max(0, len(vq0) - vm)]
            if lg is not None: del lq[:max(0, len(lq) - lg)]
        elif it.cls in ('vmem', 'vst'):
            if tag != '-':
                if tag and tag.startswith('0:'): vq0.append(tag[2:])
                else: vq.append(tag or 'x'); vq0.append(tag or 'x')
        elif it.cls in ('dsr', 'dsw', 'smem'):
            lq.append(tag or 'x')
        out.append(Ins(txt.split(';')[0].rstrip()) if cm else it)
    a.items[start:] = out

def m0w(k): return f's_add_u32 m0, s{sM0}, {slot(k)}'
def dma(k, p): return f'buffer_load_dwordx4 v{vWO[p]}, {sr(sWO)}, s{sBo} offen offset:{1024*p}{WPOL} lds ; #W{k}'
BADV = f's_add_u32 s{sBo}, s{sBo}, 36864'
if OROT: BADV += f'\ns_cmp_eq_u32 s{sBo}, s{sBoE}\ns_cselect_b32 s{sBo}, s{sBoS}, s{sBo}'
AADV = f's_add_u32 s{sA}, s{sA}, 1024'
if OROT: AADV += f'\ns_cmp_eq_u32 s{sA}, s{sAE}\ns_cselect_b32 s{sA}, s{sAS}, s{sA}'
def wgroups(k0, k1_):
    g = []
    for k in (k0, k1_):
        g += [[m0w(k), dma(k, 0)], [dma(k, 1)], [dma(k, 2)], [dma(k, 3), BADV]]
    return g
def emit_w(a, k, sreg=None):
    a(m0w(k)); a('s_nop 0')
    for p in range(4): a(dma(k, p) if sreg is None else dma(k, p).replace(f', s{sBo} offen', f', s{sreg} offen'))
    a(BADV if sreg is None else f's_add_u32 s{sreg}, s{sreg}, 36864')
def o_ops(k):
    return ([f'buffer_load_dwordx4 {vr(OR(k % DO, mb))}, v{vO[mb]}, {sr(sO)}, s{sA} offen{OLF} ; #O{k}' for mb in range(3)],
            [AADV])
def areads(k, early=False):
    sb = slot(k)
    return [f'ds_read_b64_tr_b16 {rtxt(WR(k, nb), 2, 2*h)}, v{vRD(sb >> 16, nb, early)} offset:{(sb & 65535) + h*2048} ; #R{k}'
            for nb in range(4) for h in range(2)]
def spread(k, first=None):
    r = areads(k, True)
    f = {0: [wv(f'W{k}')]}
    for g in (1, 1, 3, 5, 5, 7, 9, 9): f.setdefault(g, []).append(r.pop(0))
    return f
def merge(*ds):
    o = {}
    for d in ds:
        for g, l_ in d.items(): o.setdefault(g, []).extend(l_)
    return o

def send(j, n):
    if j < 3: return f'ds_write_b128 v{vSA}, {ar(OSEND(j,4+n))} offset:{(j*4+n)*1024}'
    return f'ds_write_b128 v{vSB}, {ar(OSEND(j,4+n))} offset:{((j-3)*4+n)*1024}'

def gen(a, prof):
    t = [f'v{x}' for x in vT]
    l = f'v{vLANE}'
    start = len(a.items)
    a.label('L_tail')
    stamp(a, prof)
    PST = os.environ.get('PST') is not None
    def pstamp(x):
        if PST == x: stamp(a, prof)
    step(a, 0, 'pk', tdx=wgroups(0, 1), bar=[wv('T30', True), 's_barrier'])
    pstamp(True)
    step(a, 1, 'pk', tdx=wgroups(2, 3), bar=[wv('T31', True), 's_barrier'])
    pstamp(True)
    e30 = {0: spread(0),
           4: merge(spread(1), {11: [m0w(6)], 13: [dma(6, 0)], 16: [dma(6, 1)]})}
    step(a, 2, 'p30', e30, tdx=wgroups(4, 5), bar=['s_waitcnt lgkmcnt(0)', 's_barrier'])
    pstamp(True)
    r3 = areads(3, True)
    e31 = {0: merge(spread(2), {11: [dma(6, 2)], 13: [dma(6, 3), BADV], 15: [wl('R1'), m0w(7)], 16: [dma(7, 0)]}),
           1: merge(spread(4), {11: [dma(7, 1)], 13: [dma(7, 2)], 16: [dma(7, 3), BADV]}),
           2: merge(spread(5), {11: [send(0, 0)], 13: [send(0, 1)], 15: [send(0, 2)], 16: [send(0, 3), wl('R2'), m0w(8)]}),
           3: merge({g: [send(1, n)] for n, g in enumerate((1, 5, 9, 13))},
                    {3: [dma(8, 0)], 7: [dma(8, 1)], 11: [dma(8, 2)], 15: [dma(8, 3), BADV], 16: [wl('R5'), 's_barrier']}),
           4: merge({0: [wv('W3')]}, {g: [r3[g]] for g in range(8)}, {g: [send(2, n)] for n, g in enumerate((1, 3, 5, 7))})}
    step(a, 3, 'p31', e31)
    pstamp(True)
    for j in range(4):
        a(f'v_accvgpr_read_b32 {t[j]}, a{LS(j)}')
    m = pv_mf(4, 1, 1)
    mf = [m[0]] + m[5:9] + m[1:5]
    chk = [f'v_mov_b32 {t[5]}, 0x33800000', f'v_mov_b32 {t[6]}, 0x4e800000', 's_mov_b64 s[36:37], 0']
    def check(j):
        return [f'v_cmp_nge_f32 vcc, {t[j]}, {t[5]}', 's_or_b64 s[36:37], s[36:37], vcc',
                f'v_cmp_nle_f32 vcc, {t[j]}, {t[6]}', 's_or_b64 s[36:37], s[36:37], vcc']
    r6 = areads(6, True)
    fills = {0: [send(3, 0), wv('W6')] + r6[0:2] + chk, 1: [send(3, 1)] + r6[2:4] + check(0), 2: [send(3, 2)] + r6[4:6] + check(1),
             3: [send(3, 3)] + r6[6:8] + check(2),
             4: check(3) + [wl('R3'), m0w(9)], 5: [f'v_accvgpr_read_b32 {t[4]}, a{LS(4)}', dma(9, 0)], 6: [send(4, 0), dma(9, 1)],
             7: [send(4, 1), dma(9, 2)] + check(4), 8: [send(4, 2), dma(9, 3), BADV]}
    interleave(a, mf, fills)
    a(f"""
    s_cmp_lg_u64 s[36:37], 0
    s_cselect_b32 s38, 1, 0
    v_mov_b32 {t[5]}, s38
    s_lshl_b32 s34, s{sWAVE}, 2
    s_add_u32 s34, s34, {EXL}
    v_mov_b32 {t[6]}, s34
    """)
    a(send(4, 3))
    a(f"""
    ds_write_b32 {t[6]}, {t[5]}
    s_mul_i32 s34, s{sWAVE}, 1280
    s_add_u32 s34, s34, {EXL+256}
    v_lshlrev_b32 {t[7]}, 2, {l}
    v_add_u32 {t[6]}, s34, {t[7]}
    """)
    for j in range(5):
        a(f'ds_write_b32 {t[6]}, {t[j]} offset:{256*j}')
    a(wv('W7'))
    for x in areads(7, True): a(x)
    a(wl('R6'))
    emit_w(a, 10)
    a(f"""
    s_xor_b32 s35, s{sWAVE}, 2
    s_mul_i32 s34, s35, 1280
    s_add_u32 s34, s34, {EXL+256}
    v_add_u32 v{vPL}, s34, {t[7]}
    v_mov_b32 v{vFL}, {EXL}
    """)
    PA = [EXA[w ^ 2] for w in range(4)]; PB = [EXB[w ^ 2] for w in range(4)]
    sel4(a, sXA, PA); sel4(a, sXB, PB)
    a(f'v_add_u32 v{vPA}, s{sXA}, v{vL16}')
    a(f'v_add_u32 v{vPB}, s{sXB}, v{vL16}')
    a(f"""
    s_mul_i32 s34, s{sB}, 10
    s_mul_i32 s35, s{sR}, 5
    s_add_u32 s34, s34, s35
    s_lshl_b32 s34, s34, 7
    s_lshl_b32 s35, s{sHQ}, 2
    s_add_u32 s34, s34, s35
    s_lshl_b32 s35, s{sKH}, 1
    s_add_u32 s34, s34, s35
    s_lshl_b32 s{sA}, s34, 10
    s_waitcnt lgkmcnt(0)
    s_barrier
    """)
    stamp(a, prof)
    def pread(j, n, dst):
        if j < 3: return f'ds_read_b128 {vr(dst)}, v{vPA} offset:{(j*4+n)*1024} ; #P{j}'
        return f'ds_read_b128 {vr(dst)}, v{vPB} offset:{((j-3)*4+n)*1024} ; #P{j}'
    def PD(j, n): return CI(0) + 4 * n if j == 0 else Q(j, n)
    FL = P(0); LP = S(1, 0)
    a(f'ds_read_b128 {vr(FL)}, v{vFL} ; #F')
    for j in range(5):
        a(f'ds_read_b32 v{LP+j}, v{vPL} offset:{256*j} ; #F')
    for n in range(4): a(pread(0, n, PD(0, n)))
    emit_w(a, 11)
    a(wl('F'))
    a(f"""
    v_or_b32 v{FL}, v{FL}, v{FL+1}
    v_or3_b32 v{FL}, v{FL}, v{FL+2}, v{FL+3}
    s_nop 0
    v_readfirstlane_b32 s38, v{FL}
    s_xor_b32 s39, s{sFB}, 1
    s_and_b32 s38, s38, s39
    s_cmp_lg_u32 s38, {'s38' if any(x.startswith('no') for x in k1.XP) else 0}
    s_cbranch_scc1 L_fallback
    """)
    a(wv('W8'))
    for x in areads(8, True): a(x)
    for j in range(1, 5):
        for n in range(4): a(pread(j, n, PD(j, n)))
    for jj in range(5):
        a(f'v_add_f32 {t[jj]}, {t[jj]}, v{LP+jj}')
    for jj in range(5):
        a(f'v_rcp_f32 {t[jj]}, {t[jj]}')
    a(wl('R8'))
    emit_w(a, 12)
    a(wv('W9'))
    for x in areads(9, True): a(x)
    def math(j):
        r = []
        rp = vT[j] & ~1
        sel = 'op_sel_hi:[1,0]' if vT[j] % 2 == 0 else 'op_sel:[0,1] op_sel_hi:[1,1]'
        for n in range(4):
            for i in (0, 2):
                o = OKEEP(j, n) + i
                r.append(f'v_pk_add_f32 {vr(o,2)}, {vr(o,2)}, {vr(PD(j,n)+i,2)}')
        for n in range(4):
            for i in (0, 2):
                o = OKEEP(j, n) + i
                r.append(f'v_pk_mul_f32 {vr(o,2)}, {vr(o,2)}, {vr(rp,2)} {sel}')
        for u in range(2):
            for hh in range(2):
                bb = OKEEP(j, 2*u + hh)
                r.append(f'v_cvt_pk_bf16_f32 v{Q(j,u)+2*hh}, v{bb}, v{bb+1}')
                r.append(f'v_cvt_pk_bf16_f32 v{Q(j,u)+2*hh+1}, v{bb+2}, v{bb+3}')
        return r
    def stores(j):
        for u in range(2):
            a(f'buffer_store_dwordx4 {vr(Q(j,u))}, v{vL16}, {sr(sO)}, s{sA} offen offset:{1024*u} sc1 ; #S{j}')
        if j < 4: a(f's_add_u32 s{sA}, s{sA}, {128*1024}')
    WF = int(os.environ.get('WF', 0))
    sB2 = 96
    for j in range(2):
        a(wl(f'P{j}'))
        for x in math(j): a(x)
        if WF < 2: stores(j)
    a('s_waitcnt lgkmcnt(0)')
    a('s_barrier')
    stamp(a, prof)
    EARLY = os.environ.get('EARLYS', '1') == '1'
    NPRE = int(os.environ.get('NPRE', 6))
    if WF:
        assert not OROT
        EARLY = False
        emit_w(a, 13)
        a(f's_add_u32 s{sB2}, s{sBo}, {3*36864}')
        for k in range(17, 23): emit_w(a, k, sB2)
        if WF == 2:
            stores(0); stores(1)
    elif not EARLY: emit_w(a, 13)
    for j in range(2, 5):
        a(wv(f'W{8+j}'))
        for x in areads(8 + j, True): a(x)
        for x in math(j): a(x)
        stores(j)
        if not EARLY:
            a(wl(f'R{8+j}'))
            emit_w(a, 12 + j)
    tile_part2(a)
    a(f"""
    s_cmp_ge_u32 s2, {NWG}
    s_cbranch_scc1 L_t_tailwg
    """)
    def signal(lbl):
        a(f"""
    s_barrier
    s_cmp_lg_u32 s{sWAVE}, 0
    s_cbranch_scc1 {lbl}
    s_lshl_b32 s34, s{sB}, 5
    v_mov_b32 v{T[0]}, s34
    v_mov_b32 v{T[1]}, 1
    s_mov_b64 exec, 1
    buffer_atomic_add v{T[1]}, v{T[0]}, {sr(sDBG)}, 0 offen sc1 ; #0:A
    s_mov_b64 exec, -1
    """)
        a.label(lbl)
    if EARLY:
        a(wl('R12'))
        for k in range(13, 23):
            emit_w(a, k)
            if k == 12 + NPRE:
                pstamp(False)
                a(wv('S4'))
                a('s_nop 0 ; @nostores')
                signal('L_t_nosig')
                pstamp(False)
    elif WF:
        a(f's_add_u32 s{sBo}, s{sBo}, {6*36864}')
        pstamp(False)
        a(wv('S4'))
        a('s_nop 0 ; @nostores')
        signal('L_t_nosig')
        pstamp(False)
    else:
        for k in range(17, 23): emit_w(a, k)
        pstamp(False)
    POLLS = [int(x) for x in os.environ.get('POLLS', '31').split(',')]
    SIGK = 16 if not (EARLY or WF) else -1
    W0POLL = os.environ.get('W0POLL', '1') == '1'
    vP = [T[2], T[3], T[4]]
    a(wv('W13'))
    for x in areads(13): a(x)
    for k in range(13, NREG):
        nxt = k + 1
        if nxt < NREG:
            a(wv(f'W{nxt}'))
            for x in areads(nxt): a(x)
            if nxt == SIGK:
                a('s_nop 0 ; @nostores')
                signal('L_t_nosig')
                pstamp(False)
        a(wl(f'R{k}'))
        emit_w(a, k + 10)
        if k + 10 in POLLS:
            i = POLLS.index(k + 10)
            if W0POLL:
                a(f's_cmp_lg_u32 s{sWAVE}, 0')
                a(f's_cbranch_scc1 L_t_np{i}')
                a('s_mov_b64 exec, 3')
                a(f'buffer_load_dword v{vP[i]}, v{vPOLL}, {sr(sDBG)}, 0 offen sc1 ; #0:P{i}q')
                a('s_mov_b64 exec, -1')
                a.label(f'L_t_np{i}')
            else:
                a(f'buffer_load_dword v{vP[i]}, v{vPOLL}, {sr(sDBG)}, 0 offen sc1 ; #P{i}q')
    stamp(a, prof)
    a(f's_cmp_lg_u32 s{sWAVE}, 0')
    a('s_cbranch_scc1 L_t_go')
    if W0POLL: a('s_mov_b64 exec, 3')
    a('s_nop 0 ; @wvt begin')
    for i in range(len(POLLS)):
        a(f's_nop 0 ; @wvt P{i}q')
        a(f'v_cmp_gt_u32 vcc, 32, v{vP[i]}')
        a('s_cbranch_vccz L_t_go')
    a('s_mov_b32 s37, 0')
    a.label('L_t_poll')
    a(f"""
    buffer_load_dword v{vP[2]}, v{vPOLL}, {sr(sDBG)}, 0 offen sc1 ; #-
    s_add_u32 s37, s37, 1
    s_waitcnt vmcnt(0) ; @keep
    s_cmp_gt_u32 s37, 0x40000
    s_cbranch_scc1 L_t_go
    v_cmp_gt_u32 vcc, 32, v{vP[2]}
    s_cbranch_vccnz L_t_poll
    """)
    a.label('L_t_go')
    if W0POLL: a('s_mov_b64 exec, -1')
    a('s_barrier')
    pstamp(False)
    for k in range(DO):
        ld, post = o_ops(k)
        for x in ld: a(x)
        a(post[0])
    for u in range(32):
        lg = u >= NREG
        if lg: a(wv(f'W{u}'))
        a(wv(f'O{u}', lg))
        rd = areads(u + 1) if NREG <= u + 1 < 32 else []
        if rd: rd = [wv(f'W{u+1}')] + rd; rd = [rd[0:3], rd[3:5], rd[5:7], rd[7:9]]
        else: rd = [[], [], [], []]
        mf = []
        for mb in range(3):
            for nb in range(4):
                c = '0' if u == 0 else vr(ACC(nb, mb))
                mf.append(f'{MF} {vr(ACC(nb,mb))}, {rtxt(WR(u,nb))}, {vr(OR(u % DO, mb))}, {c}')
        fills = {0: rd[0], 1: rd[1], 2: rd[2], 3: rd[3]}
        if u + DO < 32:
            ld, post2 = o_ops(u + DO)
            fills.setdefault(5, []).append(ld[0]); fills.setdefault(8, []).append(ld[1]); fills.setdefault(11, []).extend([ld[2]] + post2)
        interleave(a, mf, fills)
    stamp(a, prof)
    tt = [f'v{x}' for x in T]
    a(f"""
    v_lshlrev_b32 {tt[0]}, 4, {l}
    v_add_u32 {tt[1]}, s{sM0}, {tt[0]}
    s_lshl_b32 s34, s{sWAVE}, 10
    v_add_u32 {tt[4]}, s34, {tt[0]}
    s_mul_i32 s34, s{sMT}, {48*1152}
    s_lshl_b32 s35, s{sNT}, 7
    s_add_u32 s34, s34, s35
    s_lshl_b32 s35, s{sWAVE}, 5
    s_add_u32 s34, s34, s35
    v_and_b32 {tt[2]}, 15, {l}
    v_mul_u32_u24 {tt[2]}, 1152, {tt[2]}
    v_lshrrev_b32 {tt[3]}, 4, {l}
    v_lshl_add_u32 {tt[2]}, {tt[3]}, 3, {tt[2]}
    """)
    for mb in range(3):
        for nb in range(4):
            a(f'ds_write_b128 {tt[1]}, {vr(ACC(nb,mb))} offset:{mb*16384 + nb*1024}')
    a(f"""
    s_waitcnt lgkmcnt(0)
    s_barrier
    """)
    R0 = 80
    for mb in range(3):
        for w in range(4):
            a(f'ds_read_b128 {vr(R0 + (mb*4+w)*4)}, {tt[4]} offset:{mb*16384 + w*4096}')
    for mb in range(3):
        a(f's_waitcnt lgkmcnt({8 - 4*mb})')
        r = R0 + mb * 16
        for i in (0, 2):
            a(f'v_pk_add_f32 {vr(r+i,2)}, {vr(r+i,2)}, {vr(r+4+i,2)}')
            a(f'v_pk_add_f32 {vr(r+8+i,2)}, {vr(r+8+i,2)}, {vr(r+12+i,2)}')
        for i in (0, 2):
            a(f'v_pk_add_f32 {vr(r+i,2)}, {vr(r+i,2)}, {vr(r+8+i,2)}')
        a(f'v_cvt_pk_bf16_f32 v{140+2*mb}, v{r}, v{r+1}')
        a(f'v_cvt_pk_bf16_f32 v{141+2*mb}, v{r+2}, v{r+3}')
        a(f'buffer_store_dwordx2 {vr(140+2*mb,2)}, {tt[2]}, {sr(sOUT)}, s34 offen' + os.environ.get('OUTF', ''))
        if mb < 2: a(f's_add_u32 s34, s34, {16*1152}')
    resolve(a, start, ['T30'] * 8 + ['T31'] * 8)
    if prof:
        a('s_waitcnt vmcnt(0)')
        stamp(a, prof)
        k1.dump_stamps(a, tt[0])
    a('s_branch L_k1_end')
    start2 = len(a.items)
    a.label('L_t_tailwg')
    a('s_waitcnt vmcnt(0)')
    signal('L_t_nosig2')
    a('s_waitcnt vmcnt(0)')
    resolve(a, start2, [])
    a('s_branch L_k1_end')
```
